```python
import torch

def _softmax(x, axis=-1):
    return torch.softmax(x, dim=axis)
def _gelu(x):
    return torch.nn.functional.gelu(x, approximate="tanh")
def _silu(x):
    return torch.nn.functional.silu(x)
def _sigmoid(x):
    return torch.sigmoid(x)
def _layernorm(x, axis=-1, eps=1e-5):
    m = x.mean(dim=axis, keepdim=True)
    v = x.var(dim=axis, keepdim=True, unbiased=False)
    return (x - m) / torch.sqrt(v + eps)
def _scatter_add(tgt, idx, src, axis=0):
    return tgt.clone().index_add_(axis, idx, src)
def _segment_sum(src, seg, n):
    out = torch.zeros((n,) + src.shape[1:], dtype=src.dtype)
    return out.index_add_(0, seg, src)
def _pad(x, pw):
    flat = tuple(v for pair in reversed(pw) for v in pair)
    return torch.nn.functional.pad(x, flat)

kernel_name = 'recurrent_scan__sliding_block_cached__mixer_token_mlp__prompt'

def setup_inputs():

    _w = (lambda a: (lambda t: t.to(torch.bfloat16) if t.is_floating_point() else t)(torch.as_tensor(a)))
    def _A_setup():
        B, Sq, D = 1, 2048, 576
        Hq, Hkv, Sk, Dh = 32, 16, 2048, 128
        assert Hq % Hkv == 0, (Hq, Hkv)
        return {
            "x": _w((lambda *s: torch.randn(*s, dtype=torch.bfloat16) * 0.05)(B, Sq, D)),
            "k_cache": _w((lambda *s: torch.randn(*s, dtype=torch.bfloat16) * 3.2)(B, Hkv, Sk, Dh)),
            "v_cache": _w((lambda *s: torch.randn(*s, dtype=torch.bfloat16) * 3.2)(B, Hkv, Sk, Dh)),
            "wq": _w((lambda *s: torch.randn(*s, dtype=torch.bfloat16) * 3.2)(D, Hq * Dh) * (D ** -0.5)),
            "wo": _w((lambda *s: torch.randn(*s, dtype=torch.bfloat16) * 3.2)(Hq * Dh, D) * ((Hq * Dh) ** -0.5)),
        }
    _A_in = _A_setup()

    def _B_setup():
        B, S, D, F = 1, 2048, 576, 4608
        return {
            "x": _w((lambda *s: torch.randn(*s, dtype=torch.bfloat16) * 0.05)(B, S, D)),
            "w1": _w((lambda *s: torch.randn(*s, dtype=torch.bfloat16) * 3.2)(S, F) * (S ** -0.5)),
            "b1": _w((lambda *s: torch.randn(*s, dtype=torch.bfloat16) * 3.2)(F) * 0.02),
            "w2": _w((lambda *s: torch.randn(*s, dtype=torch.bfloat16) * 0.4)(F, S) * (F ** -0.5)),
            "b2": _w((lambda *s: torch.randn(*s, dtype=torch.bfloat16) * 0.4)(S) * 0.02),
        }
    _B_in = _B_setup()

    return {
        "A_x": _A_in["x"],
        "A_k_cache": _A_in["k_cache"],
        "A_v_cache": _A_in["v_cache"],
        "A_wq": _A_in["wq"],
        "A_wo": _A_in["wo"],
        "B_x": _B_in["x"],
        "B_w1": _B_in["w1"],
        "B_b1": _B_in["b1"],
        "B_w2": _B_in["w2"],
        "B_b2": _B_in["b2"],
    }

def reference(A_x, A_k_cache, A_v_cache, A_wq, A_wo, B_x, B_w1, B_b1, B_w2, B_b2):
    def _A_ref(x, k_cache, v_cache, wq, wo):
        B, Sq, D = x.shape
        Hq, Dh = 32, 128
        Hkv, Sk = k_cache.shape[1], k_cache.shape[2]
        W = min(4096, max(256, Sk // 4))
        rep = Hq // Hkv
        q = (lambda x, *d: x.permute(*d))((x @ wq).reshape(B, Sq, Hq, Dh), 0, 2, 1, 3)
        k = (lambda x, n, axis: torch.repeat_interleave(x, n, dim=axis))(k_cache[:, :, Sk - W:, :], rep, axis=1)
        v = (lambda x, n, axis: torch.repeat_interleave(x, n, dim=axis))(v_cache[:, :, Sk - W:, :], rep, axis=1)
        scores = torch.einsum("bhqd,bhkd->bhqk", q, k) * (Dh ** -0.5)
        p = _softmax(scores, axis=-1)
        o = torch.einsum("bhqk,bhkd->bhqd", p, v)
        return (lambda x, *d: x.permute(*d))(o, 0, 2, 1, 3).reshape(B, Sq, Hq * Dh) @ wo

    def _B_ref(x, w1, b1, w2, b2):
        B, S, D = x.shape
        h = _layernorm(x, axis=-1)
        u = torch.einsum("bsd,sf->bdf", h, w1) + b1
        u = _gelu(u)
        y = torch.einsum("bdf,fs->bds", u, w2) + b2
        return (lambda x, *d: x.permute(*d))(y, 0, 2, 1)

    x = A_x
    xn = _layernorm(x, axis=-1)
    s = _A_ref(xn, A_k_cache, A_v_cache, A_wq, A_wo)
    g = _silu(_B_ref(xn, B_w1, B_b1, B_w2, B_b2))
    return x + s * g
```

```python
HEADER_COMMENT = """; Kernarg layout for this problem (104 bytes, ptrs only, base s[0:1]):
"""
ARG = dict(x=0, k=8, v=16, wq=24, wo=32, bx=40, w1=48, b1=56, w2=64, b2=72, out=80, dbg=88, ws=96)
SIZE = dict(x=2048*576*2, k=16*2048*128*2, v=16*2048*128*2, wq=576*4096*2, wo=4096*576*2,
            w1=2048*4608*2, b1=4608*2, w2=4608*2048*2, b2=2048*2, out=2048*576*2, dbg=256, ws=268435456)

import struct
def f2u(x):
    return struct.unpack("<I", struct.pack("<f", x))[0]
def fhex(x):
    return "0x%08x" % f2u(x)

def vr(b, n=1):
    return f"v{b}" if n == 1 else f"v[{b}:{b+n-1}]"
def ar(b, n=1):
    return f"a{b}" if n == 1 else f"a[{b}:{b+n-1}]"
def sr(b, n=1):
    return f"s{b}" if n == 1 else f"s[{b}:{b+n-1}]"
def ur(b, n=1):
    if b >= 256:
        return ar(b - 256, n)
    assert b + n <= 256
    return vr(b, n)

class Kernel:
    def __init__(self, name, grid, block, lds, vgpr=512, sgpr=102, accum=256):
        self.name = name; self.grid = grid; self.block = block; self.lds = lds
        self.vgpr = vgpr; self.sgpr = sgpr; self.accum = accum
        self.lines = []
    def e(self, s):
        for l in s.split("\n"):
            self.lines.append(l)
    def label(self, n):
        self.lines.append(f"{self.name}_{n}:")
    def L(self, n):
        return f"{self.name}_{n}"
    def text(self):
        return (f".globl {self.name}\n.p2align 8\n.type {self.name},@function\n{self.name}:\n"
                + "\n".join(("  " + l if not l.endswith(":") else l) for l in self.lines) + "\n")
    def desc(self):
        return f""".amdhsa_kernel {self.name}
  .amdhsa_next_free_vgpr {self.vgpr}
  .amdhsa_next_free_sgpr {self.sgpr}
  .amdhsa_accum_offset {self.accum}
  .amdhsa_group_segment_fixed_size 0
  .amdhsa_kernarg_size 104
  .amdhsa_user_sgpr_count 2
  .amdhsa_user_sgpr_kernarg_segment_ptr 1
  .amdhsa_system_sgpr_workgroup_id_x 1
  .amdhsa_float_denorm_mode_32 3
  .amdhsa_float_denorm_mode_16_64 3
.end_amdhsa_kernel
"""
    def launch(self):
        return f"; @launch kernel={self.name} grid=({self.grid},1,1) block=({self.block},1,1) lds={self.lds}\n"
    def srd(self, d, p, off, size):
        if off:
            self.e(f"s_add_u32 s{d}, s{p}, {off}")
            self.e(f"s_addc_u32 s{d+1}, s{p+1}, 0")
        else:
            self.e(f"s_mov_b32 s{d}, s{p}")
            self.e(f"s_mov_b32 s{d+1}, s{p+1}")
        self.e(f"s_mov_b32 s{d+2}, {size}")
        self.e(f"s_mov_b32 s{d+3}, 0x20000")

def assemble_file(kernels, order=None):
    order = order or kernels
    s = HEADER_COMMENT
    for k in order:
        s += k.launch()
    s += '.amdgcn_target "amdgcn-amd-amdhsa--gfx950"\n.text\n'
    for k in kernels:
        s += k.text()
    s += '.section .rodata,"a"\n'
    for k in kernels:
        s += ".p2align 6\n" + k.desc()
    return s
```

```python
import sys, math
from asmlib import *
MIMIC = int(sys.argv[1]) if len(sys.argv) > 1 else 0
NOISE = float(sys.argv[3]) if len(sys.argv) > 3 else 0.0
LOG2E = 1.4426950408889634
WS_XN = 0
WS_H = WS_XN + 2048*576*2
WS_Q = WS_H + 2048*576*2
WS_O = WS_Q + 2048*4096*2
WS_SS = WS_O + 2048*4096*2
WS_U = WS_SS + 2048*576*2
WS_L = WS_U + 576*4608*2
WS_P = WS_L + 32*2048*4
WS_S = WS_P + 32*2048*512*2
assert WS_S + 32*2048*512*4 <= SIZE["ws"]

def wave_reduce(k, v, tmp, adr, op):
    for x in [1,2,4,8,16,32]:
        k.e(f"v_xor_b32 v{adr}, {x}, v0")
        k.e(f"v_lshlrev_b32 v{adr}, 2, v{adr}")
        k.e(f"ds_bpermute_b32 v{tmp}, v{adr}, v{v}")
        k.e("s_waitcnt lgkmcnt(0)")
        k.e(f"{op} v{v}, v{v}, v{tmp}")
def rnd(k, v):
    k.e(f"v_cvt_pk_bf16_f32 v{v}, 0, v{v}")

def ln_kernel():
    k = Kernel("ln_kernel", 2048, 64, 0, vgpr=64, accum=64)
    k.e("s_cmp_ge_u32 s2, 2048"); k.e(f"s_cbranch_scc1 {k.L('end')}")
    k.e(f"s_load_dwordx2 s[4:5], s[0:1], {ARG['x']}")
    k.e(f"s_load_dwordx2 s[6:7], s[0:1], {ARG['ws']}")
    k.e("s_waitcnt lgkmcnt(0)")
    k.srd(8, 4, 0, SIZE['x']); k.srd(12, 6, WS_XN, 2048*576*2); k.srd(16, 6, WS_H, 2048*576*2)
    k.e("s_mul_i32 s3, s2, 1152")
    k.e("v_lshlrev_b32 v1, 1, v0")
    for j in range(9):
        k.e(f"buffer_load_ushort v{10+j}, v1, s[8:11], s3 offen offset:{128*j}")
    k.e("s_waitcnt vmcnt(0)")
    for j in range(9):
        k.e(f"v_lshlrev_b32 v{10+j}, 16, v{10+j}")
    for p in range(2):
        k.e("v_mov_b32 v2, 0")
        for j in range(9): k.e(f"v_add_f32 v2, v2, v{10+j}")
        wave_reduce(k, 2, 3, 4, "v_add_f32")
        k.e(f"v_mul_f32 v2, {fhex(1/576)}, v2")
        k.e("v_mov_b32 v5, 0")
        for j in range(9):
            k.e(f"v_sub_f32 v6, v{10+j}, v2"); k.e("v_fmac_f32 v5, v6, v6")
        wave_reduce(k, 5, 3, 4, "v_add_f32")
        k.e(f"v_mul_f32 v5, {fhex(1/576)}, v5")
        rnd(k, 2); rnd(k, 5)
        k.e(f"v_add_f32 v5, {fhex(1e-5)}, v5"); rnd(k, 5)
        k.e("v_sqrt_f32 v5, v5"); k.e("s_nop 0"); rnd(k, 5)
        k.e("v_rcp_f32 v5, v5"); k.e("s_nop 0")
        for j in range(9):
            k.e(f"v_sub_f32 v{10+j}, v{10+j}, v2"); rnd(k, 10+j)
            k.e(f"v_mul_f32 v{10+j}, v{10+j}, v5"); rnd(k, 10+j)
            k.e(f"buffer_store_short_d16_hi v{10+j}, v1, s[{12+4*p}:{15+4*p}], s3 offen offset:{128*j}")
        k.e("s_waitcnt vmcnt(0)")
    k.label("end"); k.e("s_endpgm")
    return k

def gemm(name, M, N, K, batch, A, B, epi):
    MT, NT = M//16, N//16
    k = Kernel(name, batch*MT*NT, 64, 0, vgpr=64, accum=64)
    k.e(f"s_cmp_ge_u32 s2, {batch*MT*NT}"); k.e(f"s_cbranch_scc1 {k.L('end')}")
    k.e(f"s_load_dwordx2 s[4:5], s[0:1], {ARG[A[0]]}")
    k.e(f"s_load_dwordx2 s[6:7], s[0:1], {ARG[B[0]]}")
    k.e(f"s_load_dwordx2 s[40:41], s[0:1], {ARG['ws']}")
    k.e(f"s_load_dwordx2 s[42:43], s[0:1], {ARG['out']}")
    k.e(f"s_load_dwordx2 s[44:45], s[0:1], {ARG['x']}")
    k.e(f"s_load_dwordx2 s[46:47], s[0:1], {ARG['b1']}")
    k.e(f"s_load_dwordx2 s[48:49], s[0:1], {ARG['b2']}")
    k.e("s_waitcnt lgkmcnt(0)")
    k.srd(8, 4, A[1], A[2]); k.srd(12, 6, B[1], B[2])
    def divmod_(q, r, x, d):
        m = (2**32 + d - 1)//d
        k.e(f"s_mov_b32 s30, {m}"); k.e(f"s_mul_hi_u32 s{q}, s{x}, s30")
        k.e(f"s_mul_i32 s31, s{q}, {d}"); k.e(f"s_sub_u32 s{r}, s{x}, s31")
    divmod_(20, 21, 2, NT)
    divmod_(22, 23, 20, MT)
    k.e("v_and_b32 v1, 15, v0"); k.e("v_lshrrev_b32 v2, 4, v0")
    for (X, t, base, so) in [(A, 23, 20, 24), (B, 21, 28, 25)]:
        k.e(f"s_lshl_b32 s30, s{t}, 4"); k.e("v_add_u32 v3, s30, v1")
        k.e(f"s_mov_b32 s30, {X[3]}"); k.e("v_mul_lo_u32 v3, v3, s30")
        k.e(f"s_mov_b32 s30, {8*X[4]}"); k.e("v_mul_lo_u32 v4, v2, s30")
        k.e("v_add_u32 v3, v3, v4")
        for j in range(8):
            k.e(f"v_add_u32 v{base+j}, {j*X[4]}, v3")
        sh, mul = X[5]
        k.e(f"s_lshr_b32 s30, s22, {sh}"); k.e(f"s_mul_i32 s{so}, s30, {mul}")
    for r in range(4): k.e(f"v_mov_b32 v{40+r}, 0")
    k.e(f"s_mov_b32 s26, {K//32}")
    k.label("loop")
    for j in range(8):
        k.e(f"buffer_load_ushort v{48+j}, v{20+j}, s[8:11], s24 offen")
        k.e(f"buffer_load_ushort v{56+j}, v{28+j}, s[12:15], s25 offen")
    k.e("s_waitcnt vmcnt(0)")
    for j in range(4):
        k.e(f"v_lshl_or_b32 v{8+j}, v{49+2*j}, 16, v{48+2*j}")
        k.e(f"v_lshl_or_b32 v{12+j}, v{57+2*j}, 16, v{56+2*j}")
    k.e("s_nop 1")
    k.e("v_mfma_f32_16x16x32_bf16 v[40:43], v[8:11], v[12:15], v[40:43]")
    k.e(f"s_add_u32 s24, s24, {32*A[4]}"); k.e(f"s_add_u32 s25, s25, {32*B[4]}")
    k.e("s_sub_u32 s26, s26, 1"); k.e("s_cmp_lg_u32 s26, 0"); k.e(f"s_cbranch_scc1 {k.L('loop')}")
    k.e("s_nop 15")
    k.e("s_lshl_b32 s30, s23, 4"); k.e("v_lshlrev_b32 v5, 2, v2"); k.e("v_add_u32 v5, s30, v5")
    k.e("s_lshl_b32 s30, s21, 4"); k.e("v_add_u32 v6, s30, v1")
    epi(k)
    k.e("s_waitcnt vmcnt(0)")
    k.label("end"); k.e("s_endpgm")
    return k

def store_bf16(k, off, size, ldm, ldn, boff=None, ptr=40):
    k.srd(16, ptr, off, size)
    k.e(f"s_mov_b32 s30, {ldm}"); k.e("v_mul_lo_u32 v7, v5, s30")
    k.e(f"s_mov_b32 s30, {ldn}"); k.e("v_mul_lo_u32 v4, v6, s30"); k.e("v_add_u32 v7, v7, v4")
    k.e(f"s_mul_i32 s27, s22, {boff or 0}")
    for r in range(4):
        rnd(k, 40+r)
        k.e(f"buffer_store_short_d16_hi v{40+r}, v7, s[16:19], s27 offen")
        k.e(f"v_add_u32 v7, {ldm}, v7")

def epi_q(k):
    if not MIMIC:
        for r in range(4): k.e(f"v_mul_f32 v{40+r}, {fhex(128**-0.5*LOG2E)}, v{40+r}")
    store_bf16(k, WS_Q, 2048*4096*2, 8192, 2)
def epi_s(k):
    k.srd(16, 40, WS_S, 32*2048*512*4)
    k.e("v_lshlrev_b32 v7, 11, v5"); k.e("v_lshlrev_b32 v4, 2, v6"); k.e("v_add_u32 v7, v7, v4")
    k.e(f"s_mul_i32 s27, s22, {2048*512*4}")
    for r in range(4):
        k.e(f"buffer_store_dword v{40+r}, v7, s[16:19], s27 offen")
        k.e(f"v_add_u32 v7, 2048, v7")
def epi_o(k):
    k.srd(16, 40, WS_L, 32*2048*4)
    k.e("v_lshlrev_b32 v7, 2, v5"); k.e(f"s_mul_i32 s27, s22, {2048*4}")
    k.e("buffer_load_dwordx4 v[44:47], v7, s[16:19], s27 offen"); k.e("s_waitcnt vmcnt(0)")
    for r in range(4):
        k.e(f"v_rcp_f32 v{44+r}, v{44+r}"); k.e("s_nop 0"); k.e(f"v_mul_f32 v{40+r}, v{40+r}, v{44+r}")
    store_bf16(k, WS_O, 2048*4096*2, 8192, 2, boff=256)
def epi_ss(k):
    store_bf16(k, WS_SS, 2048*576*2, 1152, 2)
def epi_u(k):
    k.srd(16, 46, 0, SIZE['b1'])
    k.e("v_lshlrev_b32 v7, 1, v6"); k.e("buffer_load_ushort v44, v7, s[16:19], 0 offen"); k.e("s_waitcnt vmcnt(0)")
    k.e("v_lshlrev_b32 v44, 16, v44")
    c0 = -2*math.sqrt(2/math.pi)*LOG2E
    for r in range(4):
        u = 40+r
        k.e(f"v_add_f32 v{u}, v{u}, v44")
        k.e(f"v_mul_f32 v45, v{u}, v{u}")
        k.e(f"v_mov_b32 v46, {fhex(c0)}")
        k.e(f"v_fmac_f32 v46, {fhex(c0*0.044715)}, v45")
        k.e(f"v_mul_f32 v46, v46, v{u}")
        k.e("v_exp_f32 v46, v46"); k.e("s_nop 0")
        k.e("v_add_f32 v46, 1.0, v46"); k.e("v_rcp_f32 v46, v46"); k.e("s_nop 0")
        k.e(f"v_mul_f32 v{u}, v{u}, v46")
    store_bf16(k, WS_U, 576*4608*2, 9216, 2)
def epi_fin(k):
    k.srd(16, 48, 0, SIZE['b2'])
    k.e("v_lshlrev_b32 v7, 1, v6"); k.e("buffer_load_ushort v44, v7, s[16:19], 0 offen")
    k.srd(32, 44, 0, SIZE['x']); k.srd(36, 40, WS_SS, 2048*576*2)
    k.e("s_mov_b32 s30, 1152"); k.e("v_mul_lo_u32 v7, v6, s30"); k.e("v_lshlrev_b32 v4, 1, v5"); k.e("v_add_u32 v7, v7, v4")
    for r in range(4):
        k.e(f"buffer_load_ushort v{48+r}, v7, s[32:35], 0 offen offset:{2*r}")
        k.e(f"buffer_load_ushort v{52+r}, v7, s[36:39], 0 offen offset:{2*r}")
    k.e("s_waitcnt vmcnt(0)")
    k.e("v_lshlrev_b32 v44, 16, v44")
    for r in range(4):
        u = 40+r
        k.e(f"v_lshlrev_b32 v{48+r}, 16, v{48+r}"); k.e(f"v_lshlrev_b32 v{52+r}, 16, v{52+r}")
        k.e(f"v_add_f32 v{u}, v{u}, v44")
        k.e(f"v_mul_f32 v46, {fhex(-LOG2E)}, v{u}")
        k.e("v_exp_f32 v46, v46"); k.e("s_nop 0")
        k.e("v_add_f32 v46, 1.0, v46"); k.e("v_rcp_f32 v46, v46"); k.e("s_nop 0")
        k.e(f"v_mul_f32 v{u}, v{u}, v46")
        if NOISE:
            k.e(f"v_mul_f32 v{u}, {fhex(1+NOISE)}, v{u}")
        k.e(f"v_fma_f32 v{u}, v{u}, v{52+r}, v{48+r}")
    store_bf16(k, 0, SIZE['out'], 2, 1152, ptr=42)

def softmax_kernel():
    k = Kernel("sm_kernel", 32*2048, 64, 0, vgpr=64, accum=64)
    k.e(f"s_cmp_ge_u32 s2, {32*2048}"); k.e(f"s_cbranch_scc1 {k.L('end')}")
    k.e(f"s_load_dwordx2 s[6:7], s[0:1], {ARG['ws']}")
    k.e("s_waitcnt lgkmcnt(0)")
    k.srd(8, 6, WS_S, 32*2048*512*4); k.srd(12, 6, WS_P, 32*2048*512*2); k.srd(16, 6, WS_L, 32*2048*4)
    k.e("s_lshl_b32 s3, s2, 11"); k.e("v_lshlrev_b32 v1, 2, v0")
    for j in range(8):
        k.e(f"buffer_load_dword v{10+j}, v1, s[8:11], s3 offen offset:{256*j}")
    k.e("s_waitcnt vmcnt(0)")
    if MIMIC:
        for j in range(8):
            if MIMIC in (1,2): rnd(k, 10+j)
            k.e(f"v_mul_f32 v{10+j}, {fhex(128**-0.5)}, v{10+j}")
            if MIMIC in (1,3): rnd(k, 10+j)
            k.e(f"v_mul_f32 v{10+j}, {fhex(LOG2E)}, v{10+j}")
    k.e("v_mov_b32 v2, v10")
    wave_reduce(k, 2, 3, 4, "v_max_f32")
    k.e("v_mov_b32 v5, 0")
    k.e("s_lshl_b32 s3, s2, 10"); k.e("v_lshlrev_b32 v1, 1, v0")
    for j in range(8):
        k.e(f"v_sub_f32 v{10+j}, v{10+j}, v2"); k.e(f"v_exp_f32 v{10+j}, v{10+j}"); k.e("s_nop 0")
        k.e(f"v_add_f32 v5, v5, v{10+j}"); rnd(k, 10+j)
        k.e(f"buffer_store_short_d16_hi v{10+j}, v1, s[12:15], s3 offen offset:{128*j}")
    wave_reduce(k, 5, 3, 4, "v_add_f32")
    k.e("s_lshl_b32 s3, s2, 2"); k.e("v_mov_b32 v1, 0")
    k.e("buffer_store_dword v5, v1, s[16:19], s3 offen")
    k.e("s_waitcnt vmcnt(0)")
    k.label("end"); k.e("s_endpgm")
    return k

ks = [ln_kernel(),
  gemm("q_kernel", 2048, 4096, 576, 1, ("ws", WS_XN, 2048*576*2, 1152, 2, (0,0)), ("wq", 0, SIZE['wq'], 2, 8192, (0,0)), epi_q),
  gemm("s_kernel", 2048, 512, 128, 32, ("ws", WS_Q, 2048*4096*2, 8192, 2, (0,256)), ("k", 1536*256, SIZE['k']-1536*256, 256, 2, (1,524288)), epi_s),
  softmax_kernel(),
  gemm("o_kernel", 2048, 128, 512, 32, ("ws", WS_P, 32*2048*512*2, 1024, 2, (0,2048*512*2)), ("v", 1536*256, SIZE['v']-1536*256, 2, 256, (1,524288)), epi_o),
  gemm("ss_kernel", 2048, 576, 4096, 1, ("ws", WS_O, 2048*4096*2, 8192, 2, (0,0)), ("wo", 0, SIZE['wo'], 2, 1152, (0,0)), epi_ss),
  gemm("u_kernel", 576, 4608, 2048, 1, ("ws", WS_H, 2048*576*2, 2, 1152, (0,0)), ("w1", 0, SIZE['w1'], 2, 9216, (0,0)), epi_u),
  gemm("fin_kernel", 576, 2048, 4608, 1, ("ws", WS_U, 576*4608*2, 9216, 2, (0,0)), ("w2", 0, SIZE['w2'], 2, 4096, (0,0)), epi_fin),
]
open(sys.argv[2], "w").write(assemble_file(ks))
```

```python
from asmlib import *
import math
LOG2E = 1.4426950408889634
QSCALE = 128**-0.5 * LOG2E
WS_XN = 0
XN_BYTES = 18*128*1024
WS_H = WS_XN + XN_BYTES
H_BYTES = 2048*576*2
WS_O = WS_H + H_BYTES
O_BYTES = 128*128*1024
WS_U = WS_O + O_BYTES
U_BYTES = 144*36*1024
WS_P = WS_U + U_BYTES
P_BYTES = 64*3*4*9*1024*2

class EK(Kernel):
    def __init__(self, *a, **k):
        super().__init__(*a, **k)
        self.vm = []; self.lg = []
    def vmem(self, text, tag=None):
        self.e(text); self.vm.append(tag)
        assert len(self.vm) <= 63 or True
    def dsop(self, text, tag=None):
        self.e(text); self.lg.append(tag)
    def _cnt(self, q, tags):
        idx = -1
        for i, t in enumerate(q):
            if t in tags: idx = i
        if idx < 0: return None
        n = len(q) - 1 - idx
        del q[:idx + 1]
        return n
    def wait(self, vm=(), lg=()):
        a = self._cnt(self.vm, set(vm)) if vm else None
        b = self._cnt(self.lg, set(lg)) if lg else None
        s = ""
        if a is not None: s += f" vmcnt({min(a, 63)})"
        if b is not None: s += f" lgkmcnt({min(b, 15)})"
        if s: self.e("s_waitcnt" + s)
        return bool(s)
    def wait_all(self):
        self.e("s_waitcnt vmcnt(0) lgkmcnt(0)"); self.vm = []; self.lg = []

import sys
STAMPS = "--stamps" in sys.argv
NST = 8
def stamp(k, i):
    if STAMPS:
        k.e(f"s_memtime s[{80+2*i}:{81+2*i}]")
        if i == 0: k.e("s_memrealtime s[96:97]")
def stamp_flush(k, n, pws, region=0):
    if not STAMPS: return
    e = k.e
    e("s_waitcnt vmcnt(0)")
    e(f"s_memtime s[{80+2*(n-1)}:{81+2*(n-1)}]")
    e("s_memrealtime s[98:99]")
    e("s_waitcnt lgkmcnt(0)")
    e(f"s_add_u32 s8, s{pws}, {(200<<20) + region*65536}"); e(f"s_addc_u32 s9, s{pws+1}, 0"); e("s_mov_b32 s10, 65536"); e("s_mov_b32 s11, 0x20000")
    e(f"s_mul_i32 s3, s2, {NST*4}")
    e("v_mov_b32 v2, 0")
    e("s_sub_u32 s98, s98, s96"); e("v_mov_b32 v3, s98"); e("buffer_store_dword v3, v2, s[8:11], s3 offen")
    for i in range(1, n):
        e(f"s_sub_u32 s4, s{80+2*i}, s80"); e("v_mov_b32 v3, s4")
        e(f"buffer_store_dword v3, v2, s[8:11], s3 offen offset:{4*i}")
```

```python
import re
TRANS = ("v_exp_f32", "v_log_f32", "v_rcp_f32", "v_rsq_f32", "v_sqrt_f32", "v_sin_f32", "v_cos_f32")
def regs(tok):
    tok = tok.strip()
    if tok.startswith("-"): tok = tok[1:]
    m = re.fullmatch(r"abs\((.*)\)", tok)
    if m: tok = m.group(1)
    m = re.fullmatch(r"\|(.*)\|", tok)
    if m: tok = m.group(1)
    m = re.fullmatch(r"([vas])(\d+)", tok)
    if m: return {(m.group(1), int(m.group(2)))}
    m = re.fullmatch(r"([vas])\[(\d+):(\d+)\]", tok)
    if m: return {(m.group(1), i) for i in range(int(m.group(2)), int(m.group(3)) + 1)}
    if tok == "vcc": return {("s", 106), ("s", 107)}
    if tok == "m0": return {("s", 124)}
    if tok == "exec": return {("s", 126), ("s", 127)}
    return set()
class I: pass
def parse(line):
    line = line.split(";")[0].strip()
    if not line or line.endswith(":") or line.startswith("."): return None
    p = line.split(None, 1)
    op = p[0]; rest = p[1] if len(p) > 1 else ""
    ops = []; cur = ""; depth = 0
    for ch in rest:
        if ch == "[": depth += 1
        if ch == "]": depth -= 1
        if ch == "," and depth == 0: ops.append(cur); cur = ""
        else: cur += ch
    ops.append(cur)
    last = ops[-1].strip().split()
    mods = last[1:] if last else []
    if last: ops[-1] = last[0]
    ops = [o.strip() for o in ops]
    i = I(); i.op = op; i.line = line; i.mods = mods
    i.w = set(); i.r = set(); i.srcc = set(); i.ab = set(); i.kind = "other"; i.ws = 1
    R = [regs(o) for o in ops]
    if op == "s_nop":
        i.ws = int(ops[0], 0) + 1; i.kind = "nop"
    elif op.startswith("v_mfma"):
        i.kind = "mfma"; i.w = R[0]; i.ab = R[1] | R[2]; i.srcc = R[3]; i.r = i.ab | i.srcc
        i.passes = 4 if "16x16x32" in op else 8
    elif op.startswith("v_cmp"):
        i.kind = "valu"; i.w = R[0]; i.r = set().union(*R[1:])
    elif op.startswith("v_permlane"):
        i.kind = "valu"; i.w = R[0] | R[1]; i.r = R[0] | R[1]
    elif op.startswith("v_"):
        i.kind = "valu"; i.w = R[0]; i.r = set().union(*R[1:]) if len(R) > 1 else set()
        if op.startswith(("v_fmac", "v_dot2c", "v_pk_fmac")): i.r |= R[0]
        if "_co_" in op: i.w |= R[1]
    elif op.startswith("ds_read") or op.startswith("ds_bpermute") or op.startswith("ds_swizzle"):
        i.kind = "ds"; i.w = R[0]; i.r = set().union(*R[1:])
    elif op.startswith("ds_"):
        i.kind = "ds"; i.r = set().union(*R)
    elif op.startswith("buffer_load") or op.startswith("global_load"):
        i.kind = "vmem"
        if "lds" in mods or "_lds_" in op:
            i.r = set().union(*R) | {("s", 124)}; i.dma = True
        else:
            i.w = R[0]; i.r = set().union(*R[1:])
    elif op.startswith("buffer_store") or op.startswith("global_store") or "atomic" in op and not op.startswith("s_"):
        i.kind = "vmem"; i.r = set().union(*R)
        if op.endswith("x4") or op.endswith("x3"):
            i.wide = R[0] if op.startswith("buffer") else R[1]
        if "atomic" in op and "sc0" in mods: i.w = R[0]
    elif op.startswith("s_"):
        i.kind = "salu"
        if op.startswith(("s_cmp", "s_waitcnt", "s_barrier", "s_cbranch", "s_branch", "s_endpgm", "s_sleep", "s_setprio")):
            i.r = set().union(*R) if R else set()
        else:
            i.w = R[0]; i.r = set().union(*R[1:]) if len(R) > 1 else set()
    return i
def check(lines, name=""):
    ins = [x for x in (parse(l) for l in lines) if x is not None]
    errs = []
    W = 24
    for n, c in enumerate(ins):
        dist = 0
        for m in range(n - 1, max(-1, n - W), -1):
            p = ins[m]
            need = 0; why = ""
            def req(k, s):
                nonlocal need, why
                if k > need: need = k; why = s
            vw = {x for x in p.w if x[0] in "va"}
            sw = {x for x in p.w if x[0] == "s"}
            if p.kind == "valu":
                if c.kind == "mfma" and vw & c.r: req(2, "valu->mfma")
                if p.op.startswith(TRANS) and c.kind == "valu" and not c.op.startswith(TRANS) and vw & c.r: req(1, "trans->valu")
                if c.op.startswith("v_permlane") and vw & c.r: req(2, "valu->permlane")
                if c.kind == "valu" and ("_dpp" in c.op) and vw & c.r: req(2, "valu->dpp")
                if c.op.startswith(("v_readlane", "v_readfirstlane")) and vw & c.r: req(1, "valu->readlane")
                if c.kind == "valu" and sw & c.r: req(2, "valu sgpr->valu")
                if c.kind == "vmem" and sw & c.r: req(5, "valu sgpr->vmem")
                if c.kind == "mfma" and ("s", 126) in sw: req(4, "exec->mfma")
            if p.kind == "mfma":
                big = {4: 8, 8: 12}[p.passes]; ov = {4: 6, 8: 10}[p.passes]; war = {4: 3, 8: 7}[p.passes]
                if c.kind == "mfma":
                    if p.w & c.ab: req(big, "mfma D->mfma AB")
                    if p.w & c.srcc and p.w != c.srcc: req(ov, "mfma D->mfma C overlap")
                if c.kind == "valu" and p.w & (c.r | c.w): req(big, "mfma D->valu")
                if c.kind in ("ds", "vmem") and p.w & (c.r | c.w): req(big, "mfma D->mem")
                if c.kind == "valu" and p.srcc & c.w: req(war, "mfma C WAR valu")
            if p.kind == "salu" and ("s", 124) in p.w and getattr(c, "dma", False): req(1, "m0->dma")
            if p.kind == "vmem" and getattr(p, "wide", None) and p.wide & c.w:
                req(2 if c.kind == "valu" else 1, "wide store WAR")
            if need > dist:
                errs.append(f"{name}: {why} need {need} have {dist}: [{p.line}] -> [{c.line}]")
            dist += p.ws
            if dist >= 20: break
    return errs

def needed(ins, n):
    c = ins[n]; dist = 0; extra = 0
    for m in range(n - 1, max(-1, n - 24), -1):
        p = ins[m]
        need = 0
        vw = {x for x in p.w if x[0] in "va"}
        sw = {x for x in p.w if x[0] == "s"}
        if p.kind == "valu":
            if c.kind == "mfma" and vw & c.r: need = max(need, 2)
            if p.op.startswith(TRANS) and c.kind == "valu" and not c.op.startswith(TRANS) and vw & c.r: need = max(need, 1)
            if c.op.startswith("v_permlane") and vw & c.r: need = max(need, 2)
            if c.kind == "valu" and ("_dpp" in c.op) and vw & c.r: need = max(need, 2)
            if c.op.startswith(("v_readlane", "v_readfirstlane")) and vw & c.r: need = max(need, 1)
            if c.kind == "valu" and sw & c.r: need = max(need, 2)
            if c.kind == "vmem" and sw & c.r: need = max(need, 5)
            if c.kind == "mfma" and ("s", 126) in sw: need = max(need, 4)
        if p.kind == "mfma":
            big = {4: 8, 8: 12}[p.passes]; ov = {4: 6, 8: 10}[p.passes]; war = {4: 3, 8: 7}[p.passes]
            if c.kind == "mfma":
                if p.w & c.ab: need = max(need, big)
                if p.w & c.srcc and p.w != c.srcc: need = max(need, ov)
            if c.kind == "valu" and p.w & (c.r | c.w): need = max(need, big)
            if c.kind in ("ds", "vmem") and p.w & (c.r | c.w): need = max(need, big)
            if c.kind == "valu" and p.srcc & c.w: need = max(need, war)
        if p.kind == "salu" and ("s", 124) in p.w and getattr(c, "dma", False): need = max(need, 1)
        if p.kind == "vmem" and getattr(p, "wide", None) and p.wide & c.w:
            need = max(need, 2 if c.kind == "valu" else 1)
        extra = max(extra, need - dist)
        dist += p.ws
        if dist >= 20: break
    return extra

def fix(lines, verbose=False):
    out = []; ins = []; cnt = 0
    for l in lines:
        i = parse(l)
        if i is None:
            out.append(l); continue
        ins.append(i)
        x = needed(ins, len(ins) - 1)
        if x > 0:
            nop = f"s_nop {x-1}"
            ins.insert(len(ins) - 1, parse(nop))
            out.append(nop); cnt += 1
            if verbose: print("nop", x, "before", l)
        out.append(l)
    return out, cnt
```

```python
from common import *
def k0():
    k = EK("ln_kernel", 256, 128, 0, vgpr=96, sgpr=48, accum=96)
    e = k.e
    e("s_cmp_ge_u32 s2, 256"); e(f"s_cbranch_scc1 {k.L('end')}")
    e(f"s_load_dwordx2 s[4:5], s[0:1], {ARG['x']}")
    e(f"s_load_dwordx2 s[6:7], s[0:1], {ARG['ws']}")
    e("v_lshrrev_b32 v1, 4, v0")
    e("s_lshl_b32 s3, s2, 3")
    e("v_add_u32 v1, s3, v1")
    e("v_and_b32 v2, 15, v0")
    e("v_mul_u32_u24 v3, 1152, v1")
    e("v_lshl_add_u32 v3, v2, 3, v3")
    e("v_lshrrev_b32 v4, 3, v2"); e("v_lshlrev_b32 v4, 17, v4")
    e("v_lshrrev_b32 v5, 4, v1"); e("v_lshl_add_u32 v4, v5, 10, v4")
    e("v_bfe_u32 v5, v2, 1, 2"); e("v_lshl_add_u32 v4, v5, 8, v4")
    e("v_and_b32 v5, 15, v1"); e("v_lshl_add_u32 v4, v5, 4, v4")
    e("v_and_b32 v5, 1, v2"); e("v_lshl_add_u32 v4, v5, 3, v4")
    e("s_waitcnt lgkmcnt(0)")
    k.srd(8, 4, 0, SIZE['x'])
    for i in range(9):
        e(f"buffer_load_dwordx2 v[{10+2*i}:{11+2*i}], v3, s[8:11], 0 offen offset:{128*i}")
    k.srd(12, 6, WS_XN, XN_BYTES); k.srd(16, 6, WS_H, H_BYTES)
    for i in range(1, 9):
        e(f"s_mov_b32 s{24+i}, {i*262144}")
    e("s_mov_b32 s20, 0xffff0000")
    F = 32
    for i in range(9):
        e(f"s_waitcnt vmcnt({8-i})")
        for h in range(2):
            e(f"v_lshlrev_b32 v{F+4*i+2*h}, 16, v{10+2*i+h}")
            e(f"v_and_b32 v{F+4*i+2*h+1}, s20, v{10+2*i+h}")
    def red16(v):
        for mode in ["quad_perm:[1,0,3,2]", "quad_perm:[2,3,0,1]", "row_half_mirror", "row_mirror"]:
            e("s_nop 1")
            e(f"v_add_f32_dpp v{v}, v{v}, v{v} {mode} row_mask:0xf bank_mask:0xf")
    e(f"v_pk_add_f32 v[6:7], v[{F}:{F+1}], v[{F+2}:{F+3}]")
    e(f"v_pk_add_f32 v[8:9], v[{F+4}:{F+5}], v[{F+6}:{F+7}]")
    for p in range(4, 18):
        d = 6 + 2*(p % 2)
        e(f"v_pk_add_f32 v[{d}:{d+1}], v[{d}:{d+1}], v[{F+2*p}:{F+2*p+1}]")
    e("v_pk_add_f32 v[6:7], v[6:7], v[8:9]")
    e("v_add_f32 v6, v6, v7")
    red16(6)
    e(f"v_mul_f32 v6, {fhex(1/576)}, v6")
    for p in range(18):
        e(f"v_pk_add_f32 v[{F+2*p}:{F+2*p+1}], v[{F+2*p}:{F+2*p+1}], v[6:7] op_sel_hi:[1,0] neg_lo:[0,1] neg_hi:[0,1]")
    e(f"v_pk_mul_f32 v[6:7], v[{F}:{F+1}], v[{F}:{F+1}]")
    e(f"v_pk_mul_f32 v[8:9], v[{F+2}:{F+3}], v[{F+2}:{F+3}]")
    for p in range(2, 18):
        d = 6 + 2*(p % 2)
        e(f"v_pk_fma_f32 v[{d}:{d+1}], v[{F+2*p}:{F+2*p+1}], v[{F+2*p}:{F+2*p+1}], v[{d}:{d+1}]")
    e("v_pk_add_f32 v[6:7], v[6:7], v[8:9]")
    e("v_add_f32 v6, v6, v7")
    red16(6)
    e(f"v_mul_f32 v6, {fhex(1/576)}, v6")
    e(f"v_add_f32 v7, {fhex(1e-5)}, v6")
    e("v_rsq_f32 v7, v7")
    e("s_nop 0")
    e("v_mul_f32 v6, v6, v7"); e("v_mul_f32 v6, v6, v7")
    e(f"v_add_f32 v6, {fhex(1e-5)}, v6")
    e("v_rsq_f32 v6, v6")
    e(f"v_mul_f32 v8, {fhex(QSCALE)}, v7")
    e("v_mul_f32 v6, v6, v7")
    T = 70
    for i in range(9):
        t = T + 8*(i % 2)
        e(f"v_pk_mul_f32 v[{t}:{t+1}], v[{F+4*i}:{F+4*i+1}], v[8:9] op_sel_hi:[1,0]")
        e(f"v_pk_mul_f32 v[{t+2}:{t+3}], v[{F+4*i+2}:{F+4*i+3}], v[8:9] op_sel_hi:[1,0]")
        e(f"v_pk_mul_f32 v[{t+4}:{t+5}], v[{F+4*i}:{F+4*i+1}], v[6:7] op_sel_hi:[1,0]")
        e(f"v_pk_mul_f32 v[{t+6}:{t+7}], v[{F+4*i+2}:{F+4*i+3}], v[6:7] op_sel_hi:[1,0]")
        e(f"v_cvt_pk_bf16_f32 v{F+4*i}, v{t}, v{t+1}")
        e(f"v_cvt_pk_bf16_f32 v{F+4*i+1}, v{t+2}, v{t+3}")
        e(f"v_cvt_pk_bf16_f32 v{F+4*i+2}, v{t+4}, v{t+5}")
        e(f"v_cvt_pk_bf16_f32 v{F+4*i+3}, v{t+6}, v{t+7}")
        so = f"s{24+i}" if i else "0"
        e(f"buffer_store_dwordx2 v[{F+4*i}:{F+4*i+1}], v4, s[12:15], {so} offen")
        e(f"buffer_store_dwordx2 v[{F+4*i+2}:{F+4*i+3}], v3, s[16:19], 0 offen offset:{128*i}")
    k.label("end"); e("s_endpgm")
    return k
```

```python
from common import *
import hazard

class Gaps:
    def __init__(self, k):
        self.k = k; self.m = {}; self.h = {}; self.b = {}
    def mfma(self, u, t): assert u not in self.m; self.m[u] = t
    def head(self, u, t): self.h.setdefault(u, []).append(t)
    def body(self, u, t): self.b.setdefault(u, []).append(t)
    def _do(self, t):
        if callable(t): t()
        else: self.k.e(t)
    def emit(self, lo, hi):
        for u in range(lo, hi):
            if u in self.m: self._do(self.m[u])
            for t in self.h.get(u, []): self._do(t)
            for t in self.b.get(u, []): self._do(t)

MF = "v_mfma_f32_16x16x32_bf16"
def OPT(name, default):
    for a in sys.argv:
        if a.startswith(f"--{name}="): return int(a.split("=")[1])
    return default
NT = " nt" if OPT("nt", 1) else ""
FL = ["", " nt", " sc1", " sc0 sc1", " sc0", " sc1 nt"]
NTT = FL[OPT("ntt", 0)]
NTD = FL[OPT("ntd", 0)]
P_X, P_K, P_V, P_WQ, P_WO, P_BX, P_W1, P_B1, P_W2, P_B2, P_OUT, P_DBG, P_WS = 36, 38, 40, 42, 44, 46, 48, 50, 52, 54, 56, 58, 60
S_WAVE, S_XCD, S_SLOT = 28, 29, 30

def load_args(k):
    k.e("s_load_dwordx16 s[36:51], s[0:1], 0")
    k.e("s_load_dwordx8 s[52:59], s[0:1], 64")
    k.e("s_load_dwordx2 s[60:61], s[0:1], 96")

def code_prefetch(k, start, end, sreg=62, vt=2):
    e = k.e
    e(f"s_getpc_b64 s[{sreg}:{sreg+1}]")
    k.label(f"pc_{start}")
    e(f"s_mov_b32 s{sreg+2}, {k.L(end)}-{k.L('pc_'+start)}")
    e(f"s_mov_b32 s{sreg+3}, 0x20000")
    e(f"v_lshlrev_b32 v{vt}, 7, v0")
    k.vmem(f"buffer_load_dword v{vt+1}, v{vt}, s[{sreg}:{sreg+3}], 0 offen", "pf")
    e(f"v_add_u32 v{vt}, 0x8000, v{vt}")
    k.vmem(f"buffer_load_dword v{vt+1}, v{vt}, s[{sreg}:{sreg+3}], 0 offen", "pf")

def gelu_pairs(k, regs_pairs, dst, tmp, C0, C1, ONE):
    e = k.e
    n = len(regs_pairs)
    T = lambda i: tmp + 2*i
    for i, u in enumerate(regs_pairs): e(f"v_pk_mul_f32 {vr(T(i),2)}, {vr(u,2)}, {vr(u,2)}")
    for i, u in enumerate(regs_pairs): e(f"v_pk_fma_f32 {vr(T(i),2)}, {vr(T(i),2)}, {vr(C1,2)}, {vr(C0,2)}")
    for i, u in enumerate(regs_pairs): e(f"v_pk_mul_f32 {vr(T(i),2)}, {vr(T(i),2)}, {vr(u,2)}")
    for i in range(n):
        e(f"v_exp_f32 v{T(i)}, v{T(i)}"); e(f"v_exp_f32 v{T(i)+1}, v{T(i)+1}")
    for i in range(n): e(f"v_pk_add_f32 {vr(T(i),2)}, {vr(T(i),2)}, {vr(ONE,2)}")
    for i in range(n):
        e(f"v_rcp_f32 v{T(i)}, v{T(i)}"); e(f"v_rcp_f32 v{T(i)+1}, v{T(i)+1}")
    for i, u in enumerate(regs_pairs): e(f"v_pk_mul_f32 {vr(T(i),2)}, {vr(T(i),2)}, {vr(u,2)}")
    for i in range(n): e(f"v_cvt_pk_bf16_f32 v{dst[i]}, v{T(i)}, v{T(i)+1}")

def mlp1(k, UNROLL=8, DIST=OPT('mdist', 4), LA=OPT('mla', 0), TOUCH=OPT('mtouch', 1)):
    e = k.e
    SW, SH, SU, SB = 8, 12, 16, 20
    sUB, sOW, sOH, sOWm, sOHm, sRD, sWR, sWB, sCNT, sOT, sOTm = 68, 69, 70, 71, 72, 73, 74, 75, 76, 77, 78
    vT, vTD = 2, 3
    SLOT = 24576; NS = 6
    ACC = 112
    vW, vH = 4, 7
    RAb, RBb, RA, RB = 10, 14, 18, 22
    BIAS = 32
    k.label("mlp1")
    k.vm = []; k.lg = []
    code_prefetch(k, "mlp1", "mlp1_end", 64)
    e(f"s_sub_u32 s3, s{S_SLOT}, 22")
    e("s_mul_i32 s4, s3, 11"); e("s_lshr_b32 s4, s4, 5")
    e("s_mul_i32 s5, s4, 3"); e("s_sub_u32 s5, s3, s5")
    e(f"s_mul_i32 s6, s{S_XCD}, 3"); e("s_add_u32 s6, s6, s4")
    e(f"s_mul_i32 s{sOW}, s6, 384")
    e(f"s_mul_i32 s{sOH}, s5, 384")
    e(f"s_add_u32 s{sOWm}, s{sOW}, {63*32*9216}")
    e(f"s_add_u32 s{sOHm}, s{sOH}, {63*32*1152}")
    e(f"s_mul_i32 s{sWB}, s{S_WAVE}, 3072")
    e("v_and_b32 v1, 63, v0")
    e(f"s_lshl_b32 s7, s{S_WAVE}, 3")
    for i in range(3):
        e(f"v_add_u32 v26, {64*i}, v1")
        e("v_mul_u32_u24 v27, 2731, v26"); e("v_lshrrev_b32 v27, 16, v27")
        e("v_mul_u32_u24 v28, 24, v27"); e("v_sub_u32 v28, v26, v28")
        e("v_and_b32 v29, 6, v27"); e("v_xor_b32 v28, v28, v29")
        e("v_add_u32 v27, s7, v27")
        e("v_lshlrev_b32 v28, 4, v28")
        if i: e(f"v_subrev_u32 v28, {1024*i}, v28")
        e(f"v_mul_u32_u24 v29, 9216, v27"); e(f"v_add_u32 v{vW+i}, v29, v28")
        e(f"v_mul_u32_u24 v29, 1152, v27"); e(f"v_add_u32 v{vH+i}, v29, v28")
    e(f"s_and_b32 s4, s{S_WAVE}, 1")
    e(f"s_lshr_b32 s7, s{S_WAVE}, 1")
    e("s_mul_i32 s3, s6, 384"); e("s_mul_i32 s31, s4, 192"); e("s_add_u32 s3, s3, s31")
    e("v_lshrrev_b32 v26, 4, v1"); e("v_lshlrev_b32 v27, 3, v26")
    e("s_waitcnt lgkmcnt(0)")
    k.srd(SW, P_W1, 0, SIZE['w1']); k.srd(SH, P_WS, WS_H, H_BYTES); k.srd(SB, P_B1, 0, SIZE['b1'])
    for fb in range(6):
        k.vmem(f"buffer_load_dwordx2 v[{56+2*fb}:{57+2*fb}], v27, s[{SB}:{SB+3}], s3 offen offset:{32*fb}", "bias")
    def dma(i, which, tag):
        if which == 0:
            k.vmem(f"buffer_load_dwordx4 v{vW+i}, s[{SW}:{SW+3}], s{sOW} offen offset:{1024*i}{NTD} lds", tag)
        else:
            k.vmem(f"buffer_load_dwordx4 v{vH+i}, s[{SH}:{SH+3}], s{sOH} offen offset:{1024*i} lds", tag)
    e("v_lshrrev_b32 v26, 3, v1"); e("v_and_b32 v28, 7, v1"); e("v_lshl_add_u32 v26, v26, 5, v28")
    e(f"s_lshl_b32 s31, s{S_WAVE}, 3"); e("v_add_u32 v26, s31, v26")
    e("v_mul_u32_u24 v26, 9216, v26"); e("s_lshl_b32 s31, s5, 7"); e(f"v_add_u32 v{vT}, s31, v26")
    def stage_dma(st):
        e(f"s_add_u32 m0, s{sWB}, {st*SLOT}")
        e("s_nop 0")
        for i in range(3): dma(i, 0, ("st", st))
        e(f"s_add_u32 m0, s{sWB}, {st*SLOT+12288}")
        e(f"s_add_u32 s{sOW}, s{sOW}, {32*9216}")
        for i in range(3): dma(i, 1, ("st", st))
        e(f"s_add_u32 s{sOH}, s{sOH}, {32*1152}")
    e(f"s_add_u32 s{sOT}, s{sOW}, {2*32*9216}")
    stage_dma(0); stage_dma(1)
    k.vmem(f"buffer_load_dword v{vTD}, v{vT}, s[{SW}:{SW+3}], s{sOT} offen{NTT}", "touch")
    e(f"s_sub_u32 s{sOTm}, s{sOWm}, {7*32*9216}")
    k.srd(SU, P_WS, WS_U, U_BYTES)
    e("s_mul_i32 s3, s6, 6"); e("s_mul_i32 s31, s4, 3"); e("s_add_u32 s3, s3, s31"); e("s_mul_i32 s3, s3, 36")
    e("s_mul_i32 s31, s5, 12"); e("s_add_u32 s3, s3, s31"); e("s_mul_i32 s31, s7, 6"); e("s_add_u32 s3, s3, s31")
    e(f"s_lshl_b32 s{sUB}, s3, 10")
    e("v_lshrrev_b32 v27, 2, v1")
    e("v_bfe_u32 v28, v27, 1, 2")
    e("v_mul_u32_u24 v27, 384, v27")
    e("v_and_b32 v29, 3, v1"); e("v_lshl_add_u32 v27, v29, 3, v27")
    e("s_mul_i32 s4, s4, 6"); e("s_mul_i32 s7, s7, 6")
    for q in range(4):
        e(f"s_add_u32 s3, s4, {q}"); e("v_xor_b32 v29, s3, v28"); e(f"v_lshl_add_u32 v{RAb+q}, v29, 5, v27")
        e(f"s_add_u32 s3, s7, {q}"); e("v_xor_b32 v29, s3, v28"); e(f"v_lshl_add_u32 v{RBb+q}, v29, 5, v27")
        e(f"v_add_u32 v{RBb+q}, 12288, v{RBb+q}")
    def acc(fb, db): return ACC + (((fb >> 1)*6 + db)*2 + (fb & 1))*4
    def A(buf, i): return buf*48 + 4*i
    def B(buf, i): return buf*48 + 24 + 4*i
    k.wait(vm=["bias"])
    e("s_mov_b32 s3, 0xffff0000")
    for fb in range(6):
        for h in range(2):
            e(f"v_lshlrev_b32 v{BIAS+4*fb+2*h}, 16, v{56+2*fb+h}")
            e(f"v_and_b32 v{BIAS+4*fb+2*h+1}, s3, v{56+2*fb+h}")
    for fb in range(6):
        for db in range(6):
            for r in range(4): e(f"v_mov_b32 v{acc(fb,db)+r}, v{BIAS+4*fb+r}")
    def reads(ra, rb, buf):
        L = []
        for i in range(6):
            for h in range(2):
                L.append(f"ds_read_b64_tr_b16 {ar(B(buf,i)+2*h,2)}, v{rb+(i&3)} offset:{(i>>2)*128+h*6144}")
        for i in range(6):
            for h in range(2):
                L.append(f"ds_read_b64_tr_b16 {ar(A(buf,i)+2*h,2)}, v{ra+(i&3)} offset:{(i>>2)*128+h*6144}")
        return L
    for st in range(2, DIST):
        stage_dma(st)
    k.wait(vm=[("st", 0)])
    e("s_barrier")
    for t in reads(RAb, RBb, 0): e(t)
    for q in range(4):
        e(f"v_add_u32 v{RA+q}, {SLOT}, v{RAb+q}"); e(f"v_add_u32 v{RB+q}, {SLOT}, v{RBb+q}")
    e(f"s_mov_b32 s{sWR}, {(DIST % NS)*SLOT}"); e(f"s_mov_b32 s{sRD}, {SLOT}")
    e(f"s_mov_b32 s{sCNT}, {64//UNROLL}")
    k.wait(vm=[("st", 1)]); e("s_waitcnt lgkmcnt(0)"); e("s_barrier")
    stamp(k, 1)
    e(".p2align 6")
    k.label("mlp1_loop")
    body0 = len(k.lines)
    for st in range(UNROLL):
        buf = st & 1
        g = Gaps(k)
        u = 0
        for fb in range(6):
            for db in range(6):
                c = vr(acc(fb, db), 4)
                g.mfma(u, f"{MF} {c}, {ar(A(buf,fb),4)}, {ar(B(buf,db),4)}, {c}"); u += 1
        dg = [2, 8, 14, 20, 26, 32]
        rg = [x for x in range(36) if x not in dg][:24]
        for n, t in enumerate(reads(RA, RB, buf ^ 1)): g.body(rg[n], t)
        g.head(0, f"s_add_u32 m0, s{sWR}, s{sWB}")
        g.head(1, f"s_min_u32 s{sOW}, s{sOW}, s{sOWm}")
        g.head(3, f"s_add_u32 s{sWR}, s{sWR}, {SLOT}")
        g.head(4, f"s_cmp_eq_u32 s{sWR}, {NS*SLOT}")
        g.head(5, f"s_cselect_b32 s{sWR}, 0, s{sWR}")
        if st == LA:
            g.head(6, f"s_add_u32 s{sOT}, s{sOT}, {8*32*9216}")
            g.head(7, f"s_min_u32 s{sOT}, s{sOT}, s{sOTm}")
        g.head(9, f"s_add_u32 s{sRD}, s{sRD}, {SLOT}")
        g.head(10, f"s_cmp_eq_u32 s{sRD}, {NS*SLOT}")
        g.head(11, f"s_cselect_b32 s{sRD}, 0, s{sRD}")
        for i in range(3): g.body(dg[i], (lambda i=i: dma(i, 0, None)))
        g.head(15, f"s_add_u32 m0, m0, 12288")
        g.head(16, f"s_add_u32 s{sOW}, s{sOW}, {32*9216}")
        g.head(17, f"s_min_u32 s{sOH}, s{sOH}, s{sOHm}")
        for i in range(3): g.body(dg[3 + i], (lambda i=i: dma(i, 1, None)))
        g.head(33, f"s_add_u32 s{sOH}, s{sOH}, {32*1152}")
        if TOUCH and st == LA: g.body(29, f"buffer_load_dword v{vTD}, v{vT}, s[{SW}:{SW+3}], s{sOT} offen{NTT}")
        for q in range(4): g.body(15 + q, f"v_add_u32 v{RB+q}, s{sRD}, v{RBb+q}")
        for q in range(4): g.body(30 + q//2, f"v_add_u32 v{RA+q}, s{sRD}, v{RAb+q}")
        if st == UNROLL - 1:
            g.head(31, f"s_sub_u32 s{sCNT}, s{sCNT}, 1")
            g.head(34, f"s_cmp_lg_u32 s{sCNT}, 0")
        g.head(35, f"s_waitcnt vmcnt({(DIST-2)*6}) lgkmcnt(0)")
        g.head(35, "s_barrier")
        if st == UNROLL - 1:
            g.head(35, f"s_cbranch_scc1 {k.L('mlp1_loop')}")
        g.emit(0, 36)
    k.loops.append((body0, len(k.lines)))
    k.vm = []; k.lg = []
    stamp(k, 2)
    C0, C1, ONE, TMP = 26, 28, 30, 32
    c0 = -2*math.sqrt(2/math.pi)*LOG2E
    for r in range(2):
        e(f"v_mov_b32 v{C0+r}, {fhex(c0)}"); e(f"v_mov_b32 v{C1+r}, {fhex(c0*0.044715)}"); e(f"v_mov_b32 v{ONE+r}, 1.0")
    e("v_lshlrev_b32 v1, 4, v1")
    for j in range(3):
        for db in range(0, 6, 2):
            base = [acc(2*j, db), acc(2*j, db+1)]
            pairs = [b + 2*p for b in base for p in range(4)]
            dst = [b + p for b in base for p in range(4)]
            gelu_pairs(k, pairs, dst, TMP + 16*((db//2) & 1), C0, C1, ONE)
            for q in range(2):
                off = (db + q)*1024
                so = f"s{sUB}"
                if off >= 4096:
                    e(f"s_add_u32 s3, s{sUB}, 4096"); so = "s3"; off -= 4096
                k.vmem(f"buffer_store_dwordx4 {vr(base[q],4)}, v1, s[{SU}:{SU+3}], {so} offen offset:{off}")
        e(f"s_add_u32 s{sUB}, s{sUB}, {36*1024}")
    stamp(k, 3)
    stamp_flush(k, 5, P_WS)
    e("s_endpgm")
    k.label("mlp1_end")

LTHRESH = 2.0**80
FINE = '--fine' in sys.argv

def attn(k, DISTQ=OPT('qdist', 4)):
    e = k.e
    SQ, SX, SK, SV, SO = 8, 12, 16, 20, 24
    sOQ, sOQ2, sOX, sOKV, sW4, sW3, sOB, sNV, sHQ = 68, 69, 70, 71, 72, 73, 74, 75, 76
    QS = 28672
    KR, VR = 98304, 0
    vQA, vQB, vLIN, vKE, vKO, vTQ, vTK, vTD = 4, 5, 6, 7, 8, 9, 15, 21
    sTQ, sTK = 77, 78
    RQ, RX = 10, 14
    RK, RV = 22, 26
    LS, NM, QF, SS = 34, 40, 64, 160
    FK, FV = 192, 224
    k.label("attn")
    k.vm = []; k.lg = []
    code_prefetch(k, "attn", "attn_end", 64)
    e(f"s_cmp_ge_u32 s{S_SLOT}, 11"); e("s_cselect_b32 s3, 1, 0")
    e("s_mul_i32 s4, s3, 11"); e(f"s_sub_u32 s4, s{S_SLOT}, s4")
    e(f"s_lshl_b32 s5, s{S_XCD}, 1"); e("s_add_u32 s5, s5, s3")
    e(f"s_and_b32 s{sHQ}, s{S_WAVE}, 1"); e(f"s_lshr_b32 s7, s{S_WAVE}, 1")
    e(f"s_lshl_b32 s{sW4}, s{S_WAVE}, 12")
    e(f"s_mul_i32 s{sW3}, s{S_WAVE}, 3072"); e(f"s_add_u32 s{sW3}, s{sW3}, 16384")
    e(f"s_lshl_b32 s{sOQ}, s5, 9")
    e(f"s_lshl_b32 s3, s{S_WAVE}, 16"); e(f"s_add_u32 s{sOQ}, s{sOQ}, s3")
    e(f"s_add_u32 s{sOQ2}, s{sOQ}, {4*8192-2048}")
    e("s_mul_i32 s6, s4, 12")
    e(f"s_mul_i32 s3, s{S_WAVE}, 3"); e("s_add_u32 s3, s3, s6"); e(f"s_lshl_b32 s{sOX}, s3, 10")
    e(f"s_lshl_b32 s{sOKV}, s5, 19"); e(f"s_add_u32 s{sOKV}, s{sOKV}, {1536*256}"); e(f"s_add_u32 s{sOKV}, s{sOKV}, s{sW4}")
    e("v_and_b32 v1, 63, v0")
    e(f"v_lshlrev_b32 v{vLIN}, 4, v1")
    e("v_lshrrev_b32 v16, 5, v1"); e("v_and_b32 v17, 31, v1")
    e("v_lshlrev_b32 v18, 2, v16"); e("v_xor_b32 v18, v17, v18"); e("v_lshlrev_b32 v18, 4, v18")
    e(f"v_lshl_add_u32 v{vQA}, v16, 13, v18")
    e(f"v_xor_b32 v{vQB}, 128, v{vQA}"); e(f"v_add_u32 v{vQB}, {2*8192-1024}, v{vQB}")
    e("s_waitcnt lgkmcnt(0)")
    if FINE: stamp(k, 3)
    k.srd(SQ, P_WQ, 0, SIZE['wq']); k.srd(SX, P_WS, WS_XN, XN_BYTES)
    def qdma(n):
        slot = (n % 5)*QS; tag = ("q", n)
        L = []
        L.append(([f"s_add_u32 m0, s{sW4}, {slot}"], None))
        for i in range(4):
            v = vQA if i % 2 == 0 else vQB
            so = sOQ if i < 2 else sOQ2
            L.append(([], (lambda v=v, so=so, i=i: k.vmem(f"buffer_load_dwordx4 v{v}, s[{SQ}:{SQ+3}], s{so} offen offset:{1024*i}{NT} lds", tag))))
        L.append(([f"s_add_u32 m0, s{sW3}, {slot}"], None))
        hs = [f"s_add_u32 s{sOQ}, s{sOQ}, {32*8192}", f"s_add_u32 s{sOQ2}, s{sOQ2}, {32*8192}", None]
        for i in range(3):
            L.append(([hs[i]] if hs[i] else [], (lambda i=i: k.vmem(f"buffer_load_dwordx4 v{vLIN}, s[{SX}:{SX+3}], s{sOX} offen offset:{1024*i} lds", tag))))
        L.append(([f"s_add_u32 s{sOX}, s{sOX}, {128*1024}"], None))
        return L
    def kvdma(which, s):
        base = KR + ((s + 3) % 4)*16384 if which == "K" else VR + (s % 4)*16384
        srd = SK if which == "K" else SV
        tag = (which, s)
        L = [([f"s_add_u32 m0, s{sW4}, {base}"], None), ([f"s_add_u32 s3, s{sOKV}, {s*16384}"], None)]
        for i in range(4):
            v = vKE if i % 2 == 0 else vKO
            L.append(([], (lambda v=v, i=i: k.vmem(f"buffer_load_dwordx4 v{v}, s[{srd}:{srd+3}], s3 offen offset:{1024*i}{NT} lds", tag))))
        return L
    def run_now(L):
        for hs, b in L:
            for h in hs: e(h)
            if b: b()
    e(f"s_lshl_b32 s31, s4, 2"); e(f"s_add_u32 s31, s31, s{S_WAVE}")
    e("v_mul_u32_u24 v16, 21846, v1"); e("v_lshrrev_b32 v16, 16, v16")
    e("v_mul_u32_u24 v17, 3, v16"); e("v_sub_u32 v17, v1, v17")
    e("s_mul_i32 s3, s31, 3"); e("v_add_u32 v17, s3, v17")
    e("v_lshrrev_b32 v18, 2, v17"); e("v_lshl_add_u32 v18, v16, 5, v18")
    e("v_and_b32 v19, 3, v17"); e("v_lshlrev_b32 v19, 7, v19"); e(f"v_lshl_add_u32 v{vTQ}, v18, 13, v19")
    e("v_cmp_gt_u32 vcc, 128, v17"); e("v_cmp_gt_u32 s[32:33], 24, v1"); e("s_and_b64 vcc, vcc, s[32:33]")
    e("v_mov_b32 v20, 0x7fffff00"); e(f"v_cndmask_b32 v{vTQ}, v20, v{vTQ}, vcc")
    e("s_mul_i32 s3, s31, 24"); e("v_add_u32 v17, s3, v1"); e(f"v_lshlrev_b32 v{vTK}, 7, v17")
    e("v_cmp_gt_u32 vcc, 1024, v17"); e("s_and_b64 vcc, vcc, s[32:33]"); e(f"v_cndmask_b32 v{vTK}, v20, v{vTK}, vcc")
    e(f"s_lshl_b32 s{sTQ}, s5, 9"); e(f"s_add_u32 s{sTQ}, s{sTQ}, {2*32*8192}")
    e(f"s_lshl_b32 s{sTK}, s5, 19"); e(f"s_add_u32 s{sTK}, s{sTK}, {1536*256}")
    run_now(qdma(0)); run_now(qdma(1))
    k.vmem(f"buffer_load_dword v{vTD}, v{vTQ}, s[{SQ}:{SQ+3}], s{sTQ} offen{NT}", "touch")
    e(f"s_add_u32 s{sTQ}, s{sTQ}, {8*32*8192}")
    k.srd(SK, P_K, 0, SIZE['k']); k.srd(SV, P_V, 0, SIZE['v']); k.srd(SO, P_WS, WS_O, O_BYTES)
    e(f"s_lshl_b32 s3, s5, 1"); e(f"s_add_u32 s3, s3, s{sHQ}"); e("s_lshl_b32 s3, s3, 9")
    e("s_mul_i32 s31, s7, 6"); e("s_add_u32 s31, s31, s6")
    e("s_add_u32 s3, s3, s31"); e(f"s_lshl_b32 s{sOB}, s3, 10")
    e(f"s_sub_u32 s{sNV}, 128, s31")
    e("v_lshrrev_b32 v16, 4, v1"); e("v_and_b32 v17, 15, v1")
    e("v_lshlrev_b32 v18, 1, v16"); e("v_xor_b32 v18, v17, v18"); e("v_lshlrev_b32 v18, 4, v18")
    e(f"v_lshl_add_u32 v{vKE}, v16, 8, v18"); e(f"v_xor_b32 v{vKO}, 128, v{vKE}")
    e("v_and_b32 v18, 7, v17"); e("v_lshlrev_b32 v18, 1, v18"); e("v_xor_b32 v18, v16, v18"); e("v_lshlrev_b32 v18, 4, v18")
    e("v_lshl_add_u32 v18, v17, 8, v18"); e(f"v_add_u32 v18, {KR}, v18")
    for j in range(4): e(f"v_xor_b32 v{RK+j}, {64*j}, v18")
    e("v_lshrrev_b32 v18, 2, v1"); e("v_and_b32 v19, 7, v18"); e("v_lshlrev_b32 v19, 5, v19")
    e("v_lshl_add_u32 v19, v18, 8, v19"); e("v_and_b32 v20, 3, v1"); e("v_lshl_add_u32 v19, v20, 3, v19")
    for et in range(8): e(f"v_xor_b32 v{RV+et}, {32*et}, v19")
    e("v_bfe_u32 v18, v1, 2, 2"); e("v_lshl_add_u32 v19, v16, 3, v18"); e("v_lshlrev_b32 v19, 9, v19")
    e("v_lshl_add_u32 v19, v18, 6, v19"); e("v_lshl_add_u32 v19, v20, 4, v19")
    e(f"s_lshl_b32 s3, s{sHQ}, 8"); e("v_add_u32 v19, s3, v19")
    for j in range(4): e(f"v_xor_b32 v{RQ+j}, {64*j}, v19")
    e("s_mul_i32 s3, s7, 6144"); e("s_add_u32 s3, s3, 16384"); e(f"v_add_u32 v{RX}, s3, v{vLIN}")
    for t in range(6): e(f"v_mov_b32 v{LS+t}, 0")
    def qacc(t, eb): return QF + ((t*4 + (eb >> 1))*2 + (eb & 1))*4
    def QA(buf, eb): return buf*56 + 4*eb
    def QB(buf, t): return buf*56 + 32 + 4*t
    cur = [0]
    def qreads(n):
        buf = n & 1; off = (n % 5)*QS - cur[0]
        assert 0 <= off and off + QS <= 65536
        L = []
        for t in range(6):
            L.append(f"ds_read_b128 {ar(QB(buf,t),4)}, v{RX} offset:{off + 1024*t}")
        for eb in range(8):
            for h in range(2):
                L.append(f"ds_read_b64_tr_b16 {ar(QA(buf,eb)+2*h,2)}, v{RQ+(eb>>1)} offset:{off + h*2048 + (eb&1)*8}")
        return L
    def rebase(n):
        off = (n % 5)*QS - cur[0]
        if 0 <= off and off + QS <= 65536: return []
        d = off; cur[0] += d
        return [f"v_add_u32 v{r}, {d & 0xffffffff}, v{r}" for r in [RQ, RQ+1, RQ+2, RQ+3, RX]]
    for n in range(2, DISTQ): run_now(qdma(n))
    if FINE: stamp(k, 4)
    if FINE: k.wait(vm=["pf"]); stamp(k, 5)
    k.wait(vm=[("q", 0)]);
    if FINE: stamp(k, 6)
    e("s_barrier")
    for t in qreads(0): e(t)
    k.wait(vm=[("q", 1)]); e("s_waitcnt lgkmcnt(0)"); e("s_barrier")
    stamp(k, 1)
    def kread(b, n):
        kb, j = n >> 2, n & 3
        off = ((b//2 + 3) % 4)*16384 + ((b & 1)*2 + kb)*4096
        return lambda: k.dsop(f"ds_read_b128 {ar(FK+4*n,4)}, v{RK+j} offset:{off}", ("k", b, n))
    def vread(b, et, h):
        off = ((b//2) % 4)*16384 + (b & 1)*8192 + h*4096
        return lambda: k.dsop(f"ds_read_b64_tr_b16 {ar(FV+4*et+2*h,2)}, v{RV+et} offset:{off}", ("v", b, et))
    if DISTQ == 5:
        extra = {13: kvdma("K", 0) + kvdma("K", 1), 14: kvdma("K", 2) + kvdma("K", 3), 15: kvdma("V", 0),
                 16: kvdma("V", 1) + kvdma("V", 2), 17: kvdma("V", 3)}
    else:
        assert DISTQ == 4
        extra = {14: kvdma("K", 0) + kvdma("K", 1), 15: kvdma("V", 0) + kvdma("K", 2),
                 16: kvdma("V", 1) + kvdma("K", 3), 17: kvdma("V", 2) + kvdma("V", 3)}
    for n in range(18):
        buf = n & 1
        g = Gaps(k); u = 0
        for eb in range(8):
            for t in range(6):
                c = vr(qacc(t, eb), 4)
                g.mfma(u, f"{MF} {c}, {ar(QA(buf,eb),4)}, {ar(QB(buf,t),4)}, {c if n else 0}"); u += 1
        L = (qdma(n + DISTQ) if n + DISTQ < 18 else []) + extra.get(n, [])
        if n == 1: L.append(([], lambda: k.vmem(f"buffer_load_dword v{vTD}, v{vTQ}, s[{SQ}:{SQ+3}], s{sTQ} offen{NT}", "touch")))
        if n == 5: L.append(([], lambda: k.vmem(f"buffer_load_dword v{vTD}, v{vTK}, s[{SK}:{SK+3}], s{sTK} offen{NT}", "touch")))
        if n == 8: L.append(([], lambda: k.vmem(f"buffer_load_dword v{vTD}, v{vTK}, s[{SV}:{SV+3}], s{sTK} offen{NT}", "touch")))
        nd = sum(1 for hs, b in L if b)
        sp = max(3, min(6, 44 // max(nd, 1)))
        dg = [3 + sp*i for i in range(nd)]
        assert not dg or dg[-1] <= 45, (n, dg)
        di = 0; hp = 0
        for hs, b in L:
            for h in hs:
                g.head(hp, h); hp += 1
            if b:
                assert hp <= dg[di], (n, hp, dg, di)
                g.body(dg[di], b); hp = dg[di] + 1; di += 1
        rg = [x for x in range(48) if x not in dg]
        if n < 17:
            for i, t in enumerate(qreads(n + 1)): g.body(rg[i], t)
            if n < 16:
                for i, t in enumerate(rebase(n + 2)): g.body(rg[22 + i], t)
        if n < 16:
            g.head(46, (lambda n=n: (k.wait(vm=[("q", n + 2)]), e("s_waitcnt lgkmcnt(0)"))))
            g.head(47, "s_barrier")
        elif n == 16:
            g.head(46, (lambda: (k.wait(vm=[("K", 0)]), e("s_waitcnt lgkmcnt(0)"))))
            g.head(47, "s_barrier")
        else:
            for i in range(4): g.body(rg[30 + 2*i], kread(0, i))
        g.emit(0, 48)
    stamp(k, 2)
    for t in range(6):
        for j in range(4):
            src = QF + (t*4 + j)*8; dst = QF + (t*4 + j)*4
            for p in range(4): e(f"v_cvt_pk_bf16_f32 v{dst+p}, v{src+2*p}, v{src+2*p+1}")
    k.wait(vm=[("K", 1), ("V", 0)]); e("s_barrier")
    def Q(t, j): return QF + (t*4 + j)*4
    def S(b, t): return SS + (b & 1)*48 + t*8
    def O(t, et): return ((t*4 + (et >> 1))*2 + (et & 1))*4
    g = Gaps(k)
    U0 = 44
    for b in range(16):
        base = 96*b
        for n in range(8):
            kb, j = n >> 2, n & 3
            for t in range(6):
                d = vr(S(b, t) + 4*kb, 4)
                c = d if j else (vr(NM + 4*t, 4) if b else "0")
                g.mfma(base + 6*n + t, f"{MF} {d}, {ar(FK+4*n,4)}, {vr(Q(t,j),4)}, {c}")
            g.head(base + 6*n - 1, (lambda b=b, n=n: k.wait(lg=[("k", b, n)])))
            if not (b == 0 and n < 4): g.body(base + 4*n - 13, kread(b, n))
        pb = base + 96 + 48
        for et in range(8):
            for t in range(6):
                d = ar(O(t, et), 4)
                g.mfma(pb + 6*et + t, f"{MF} {d}, {ar(FV+4*et,4)}, {vr(S(b,t),4)}, {d if b else 0}")
            g.head(pb + 6*et - 1, (lambda b=b, et=et: k.wait(lg=[("v", b, et)])))
            for h in range(2): g.body(base + 96 + 4*(8 + 2*et + h) - 13, vread(b, et, h))
    for b in range(16):
        base = 96*b + U0
        for t in range(6):
            s = S(b, t)
            for r in range(8):
                m = 8*t + r
                ue, ua = base + 2*m, base + 2*m + 1
                if b == 0: ue, ua = max(ue, 48), max(ua, 48)
                g.body(ue, f"v_exp_f32 v{s+r}, v{s+r}")
                g.body(ua, f"v_add_f32 v{LS+t}, v{LS+t}, v{s+r}")
        for t in range(6):
            s = S(b, t)
            for c in range(4):
                g.body(base + 5 + 4*(4*t + c), f"v_cvt_pk_bf16_f32 v{s+c}, v{s+2*c}, v{s+2*c+1}")
    for s in range(7):
        ub = 96*(2*s + 2) + 95
        need = [("V", s + 1)] + ([("K", s + 2)] if s + 2 < 8 else [])
        g.head(ub - 1, (lambda need=need: k.wait(vm=need)))
        g.head(ub - 1, "s_barrier")
        if s + 4 < 8:
            L = kvdma("K", s + 4) + kvdma("V", s + 4)
            for i, (hs, bd) in enumerate(L):
                uu = ub + 1 + 8*i
                for h in hs: g.head(uu, h)
                if bd: g.b.setdefault(uu, []).insert(0, bd)
    g.emit(-1, 48)
    T = 16
    for t in range(6):
        s = S(0, t); m = NM + 4*t
        e(f"v_max3_f32 v{m}, v{s}, v{s+1}, v{s+2}"); e(f"v_max3_f32 v{m+1}, v{s+3}, v{s+4}, v{s+5}")
        e(f"v_max3_f32 v{m}, v{m}, v{s+6}, v{s+7}")
    for t in range(6):
        m = NM + 4*t
        e(f"v_max_f32 v{m}, v{m}, v{m+1}")
    for sw in ["v_permlane32_swap_b32", "v_permlane16_swap_b32"]:
        for t in range(6): e(f"v_mov_b32 v{NM+4*t+1}, v{NM+4*t}")
        for t in range(6): e(f"{sw} v{NM+4*t}, v{NM+4*t+1}")
        for t in range(6): e(f"v_max_f32 v{NM+4*t}, v{NM+4*t}, v{NM+4*t+1}")
    for t in range(6):
        m = NM + 4*t
        for r in (1, 2, 3, 0): e(f"v_mul_f32 v{m+r}, -1.0, v{m}")
    for t in range(6):
        s = S(0, t)
        for r in range(0, 8, 2): e(f"v_pk_add_f32 {vr(s+r,2)}, {vr(s+r,2)}, {vr(NM+4*t,2)}")
    g.emit(48, 96)
    if not FINE: stamp(k, 3)
    g.emit(96, 96*16)
    if not FINE: stamp(k, 4)
    g.emit(96*16, 96*17)
    if not FINE: stamp(k, 5)
    k.label("attn_fin")
    for sw in ["v_permlane32_swap_b32", "v_permlane16_swap_b32"]:
        for t in range(6): e(f"v_mov_b32 v{NM+t}, v{LS+t}")
        for t in range(6): e(f"{sw} v{LS+t}, v{NM+t}")
        for t in range(6): e(f"v_add_f32 v{LS+t}, v{LS+t}, v{NM+t}")
    for t in range(6): e(f"v_rcp_f32 v{NM+2*t}, v{LS+t}")
    for t in range(6):
        if t >= 2:
            e(f"s_cmp_le_u32 s{sNV}, {t}"); e(f"s_cbranch_scc1 {k.L('attn_done')}")
        for j in range(4):
            T = SS + ((t*4 + j) % 8)*8
            for r in range(8): e(f"v_accvgpr_read_b32 v{T+r}, a{O(t,2*j)+r}")
            for r in range(0, 8, 2): e(f"v_pk_mul_f32 {vr(T+r,2)}, {vr(T+r,2)}, {vr(NM+2*t,2)} op_sel_hi:[1,0]")
            for p in range(4): e(f"v_cvt_pk_bf16_f32 v{T+p}, v{T+2*p}, v{T+2*p+1}")
            e(f"s_add_u32 s3, s{sOB}, {j*131072 + t*1024}")
            k.vmem(f"buffer_store_dwordx4 {vr(T,4)}, v{vLIN}, s[{SO}:{SO+3}], s3 offen")
    k.label("attn_done")
    if not FINE: stamp(k, 6)
    stamp_flush(k, 8, P_WS)
    e("s_endpgm")
    k.label("attn_end")

def k1():
    k = EK("k1_kernel", 256, 256, 163840, vgpr=512, sgpr=102, accum=256)
    k.loops = []
    e = k.e
    e("s_cmp_ge_u32 s2, 248"); e(f"s_cbranch_scc1 {k.L('exit')}")
    stamp(k, 0)
    load_args(k)
    e(f"s_and_b32 s{S_XCD}, s2, 7"); e(f"s_lshr_b32 s{S_SLOT}, s2, 3")
    e("v_lshrrev_b32 v1, 6, v0"); e("s_nop 0"); e(f"v_readfirstlane_b32 s{S_WAVE}, v1")
    e(f"s_cmp_lt_u32 s{S_SLOT}, 22"); e(f"s_cbranch_scc1 {k.L('exit' if '--noattn' in sys.argv else 'attn')}")
    e(f"s_branch {k.L('mlp1')}")
    k.label("exit"); e("s_endpgm")
    e(".p2align 6")
    mlp1(k)
    e(".p2align 6")
    attn(k)
    return k
```

```python
from common import *
from k1 import Gaps, MF, OPT, load_args, code_prefetch, P_X, P_WO, P_W2, P_B2, P_OUT, P_DBG, P_WS

NB0 = OPT("nb0", 34)
ACC = 112
def acc(db, sb): return ACC + (sb >> 1)*72 + db*8 + (sb & 1)*4
S_WAVE, S_ROLE, S_SB, S_DB, S_RH, S_KP, S_TILE = 28, 29, 30, 31, 32, 33, 34
SA, SB_, SP, SX, SO = 8, 12, 16, 20, 24
sOA, sOB, sM0A, sM0B, sCNT, sSZA, sSZB = 68, 69, 70, 71, 72, 73, 74
vLIN = 4
OOB = 0x7fffff00

def mainloop(k, role):
    e = k.e
    isA = role == "A"
    vD = 5
    vP = 10
    RS = 12
    RP = 14
    k.label("role" + role)
    k.vm = []; k.lg = []
    code_prefetch(k, "role" + role, "end", 64)
    e("v_and_b32 v1, 63, v0"); e(f"v_lshlrev_b32 v{vLIN}, 4, v1")
    if isA:
        e(f"s_lshl_b32 s3, s{S_ROLE}, 6"); e(f"s_mov_b32 s{sCNT}, 16")
    else:
        e(f"s_cmp_eq_u32 s{S_ROLE}, 2"); e(f"s_cselect_b32 s3, 0, {2*NB0}"); e(f"s_cselect_b32 s{sCNT}, {NB0//2}, {(72-NB0)//2}")
    e(f"s_add_u32 s3, s3, s{S_KP}")
    e(f"s_mul_i32 s{sM0A}, s{S_KP}, 10240"); e(f"s_mul_i32 s4, s{S_RH}, 5120"); e(f"s_add_u32 s{sM0A}, s{sM0A}, s4")
    e("v_mov_b32 v20, 0x7fffff00")
    if isA:
        e(f"s_mul_i32 s{sOA}, s3, {32*1152}"); e(f"s_mul_i32 s4, s{S_RH}, {16*1152}"); e(f"s_add_u32 s{sOA}, s{sOA}, s4")
        e(f"s_mul_i32 s4, s{S_DB}, 288"); e(f"s_add_u32 s{sOA}, s{sOA}, s4")
        for i in range(5):
            e(f"v_add_u32 v16, {64*i}, v1")
            e("v_mul_u32_u24 v17, 3641, v16"); e("v_lshrrev_b32 v17, 16, v17")
            e("v_mul_u32_u24 v18, 18, v17"); e("v_sub_u32 v18, v16, v18")
            e("v_mul_u32_u24 v17, 1152, v17"); e("v_lshl_add_u32 v17, v18, 4, v17")
            if i: e(f"v_subrev_u32 v17, {1024*(i & 3)}, v17") if i < 4 else None
            if i < 4: e(f"v_mov_b32 v{vD+i}, v17")
            else:
                e("v_cmp_gt_u32 vcc, 32, v1"); e(f"v_cndmask_b32 v{vD+i}, v20, v17, vcc")
        stepA = 64*1152
        e(f"s_lshl_b32 s4, s3, 7"); e(f"s_lshl_b32 s5, s{S_SB}, 3"); e("s_add_u32 s4, s4, s5")
        e(f"s_lshl_b32 s5, s{S_RH}, 2"); e("s_add_u32 s4, s4, s5"); e(f"s_lshl_b32 s{sOB}, s4, 10")
        e(f"s_lshl_b32 s4, s{S_KP}, 11"); e(f"v_add_u32 v{vP}, s4, v{vLIN}"); e(f"v_xor_b32 v{vP+1}, 2048, v{vP}")
        stepB = 2*128*1024
        e("v_lshrrev_b32 v16, 2, v1"); e("v_mul_u32_u24 v16, 288, v16"); e("v_and_b32 v17, 3, v1"); e("v_lshl_add_u32 v16, v17, 3, v16")
        e(f"s_mul_i32 s4, s{S_KP}, 10240"); e(f"v_add_u32 v{RS}, s4, v16"); e(f"v_add_u32 v{RS+1}, 61440, v{RS}")
    else:
        e("s_mul_i32 s4, s3, 36"); e(f"s_mul_i32 s5, s{S_DB}, 9"); e("s_add_u32 s4, s4, s5")
        e(f"s_mul_i32 s5, s{S_RH}, 5"); e("s_add_u32 s4, s4, s5"); e(f"s_lshl_b32 s{sOA}, s4, 10")
        e(f"s_mov_b32 s5, {OOB}"); e(f"s_cmp_eq_u32 s{S_RH}, 0"); e(f"s_cselect_b32 s4, 4096, s5"); e(f"v_add_u32 v{vD+1}, s4, v{vLIN}")
        stepA = 2*36*1024
        e(f"s_lshl_b32 s{sOB}, s3, 17"); e(f"s_lshl_b32 s4, s{S_SB}, 8"); e(f"s_add_u32 s{sOB}, s{sOB}, s4")
        e(f"s_lshl_b32 s4, s{S_RH}, 7"); e(f"s_add_u32 s{sOB}, s{sOB}, s4")
        e("v_lshrrev_b32 v16, 3, v1"); e("v_and_b32 v17, 6, v16"); e("v_and_b32 v18, 7, v1"); e("v_xor_b32 v17, v17, v18")
        e("v_lshlrev_b32 v17, 4, v17"); e(f"v_lshl_add_u32 v{vP}, v16, 12, v17")
        e(f"v_add_u32 v{vP+1}, {8*4096-1024}, v{vP}")
        stepB = 64*4096
        e(f"s_lshl_b32 s{sM0B}, s{S_WAVE}, 12"); e(f"s_add_u32 s{sM0B}, s{sM0B}, 81920")
        e(f"s_mul_i32 s4, s{S_KP}, 10240"); e(f"v_add_u32 v{RS}, s4, v{vLIN}"); e(f"v_add_u32 v{RS+1}, 61440, v{RS}")
        e("v_lshrrev_b32 v16, 2, v1"); e("v_bfe_u32 v17, v16, 1, 2"); e(f"s_lshl_b32 s4, s{S_KP}, 1"); e("v_xor_b32 v17, s4, v17")
        e("v_lshlrev_b32 v17, 5, v17"); e("v_lshl_add_u32 v17, v16, 7, v17"); e("v_and_b32 v18, 3, v1"); e("v_lshl_add_u32 v17, v18, 3, v17")
        e(f"v_add_u32 v17, s{sM0B}, v17")
        for sb in range(4): e(f"v_xor_b32 v{RP+sb}, {32*sb}, v17")
    e("s_waitcnt lgkmcnt(0)")
    if isA:
        k.srd(SA, P_WO, 0, SIZE['wo']); k.srd(SB_, P_WS, WS_O, O_BYTES)
    else:
        k.srd(SA, P_WS, WS_U, U_BYTES); k.srd(SB_, P_W2, 0, SIZE['w2'])
    def FA(buf, db): return buf*36 + 4*db
    def FB(n, sb): return 72 + (n % (4 if isA else 2))*16 + 4*sb
    def dmaA(n):
        slot = (n % 4)*20480
        L = [([f"s_add_u32 m0, s{sM0A}, {slot}"], None)]
        for i in range(5):
            if isA: v = vD + i
            else: v = vLIN if i < 4 else vD + 1
            hs = [f"s_add_u32 m0, s{sM0A}, {slot+4096}"] if i == 4 else []
            L.append((hs, (lambda v=v, i=i: k.vmem(f"buffer_load_dwordx4 v{v}, s[{SA}:{SA+3}], s{sOA} offen offset:{1024*(i&3)} lds", ("A", n)))))
        L.append(([f"s_add_u32 s{sOA}, s{sOA}, {stepA}"], None))
        return L
    def dmaB(n):
        L = []
        if isA:
            for sb in range(4):
                L.append(([], (lambda sb=sb: k.vmem(f"buffer_load_dwordx4 {ar(FB(n,sb),4)}, v{vP+(sb>>1)}, s[{SB_}:{SB_+3}], s{sOB} offen offset:{1024*(sb&1)}", ("B", n)))))
            L.append(([f"s_add_u32 s{sOB}, s{sOB}, {stepB}"], None))
        else:
            slot = (n % 4)*16384
            L.append(([f"s_add_u32 m0, s{sM0B}, {slot}"], None))
            for i in range(4):
                hs = [f"s_add_u32 s{sOB}, s{sOB}, {16*4096-2048}"] if i == 2 else []
                L.append((hs, (lambda i=i: k.vmem(f"buffer_load_dwordx4 v{vP+(i&1)}, s[{SB_}:{SB_+3}], s{sOB} offen offset:{1024*i} lds", ("B", n)))))
            L.append(([f"s_add_u32 s{sOB}, s{sOB}, {stepB-(16*4096-2048)}"], None))
        return L
    def run_now(L):
        for hs, b in L:
            for h in hs: e(h)
            if b: b()
    def reads(n):
        buf = n & 1; sl = n % 4
        r = RS + (1 if sl == 3 else 0); off = 0 if sl == 3 else sl*20480
        L = []
        if isA:
            for db in range(9):
                for h in range(2):
                    L.append(f"ds_read_b64_tr_b16 {ar(FA(buf,db)+2*h,2)}, v{r} offset:{off + db*32 + h*5120}")
        else:
            for sb in range(4):
                for h in range(2):
                    L.append(f"ds_read_b64_tr_b16 {ar(FB(n,sb)+2*h,2)}, v{RP+sb} offset:{sl*16384 + h*2048}")
            for db in range(9):
                L.append(f"ds_read_b128 {ar(FA(buf,db),4)}, v{r} offset:{off + db*1024}")
        return L
    DB = 3 if isA else 4
    if isA:
        run_now(dmaA(0))
        for n in range(3): run_now(dmaB(n)); run_now(dmaA(n + 1))
    else:
        for n in range(4): run_now(dmaB(n)); run_now(dmaA(n))
    for r in range(144): e(f"v_mov_b32 v{ACC+r}, 0")
    k.wait(vm=[("A", 0)]); e("s_barrier")
    for t in reads(0): e(t)
    k.wait(vm=[("A", 1)]); e("s_waitcnt lgkmcnt(0)"); e("s_barrier")
    stamp(k, 1)
    e(".p2align 6")
    k.label(f"loop{role}")
    body0 = len(k.lines)
    for n in range(4):
        buf = n & 1
        g = Gaps(k); u = 0
        for db in range(9):
            for sb in range(4):
                c = vr(acc(db, sb), 4)
                g.mfma(u, f"{MF} {c}, {ar(FA(buf,db),4)}, {ar(FB(n,sb),4)}, {c}"); u += 1
        L = dmaB(n + DB) + dmaA(n + 4)
        dg = [2 + 4*i for i in range(9)]
        pre = []
        if n % 2 == 0:
            pre = [f"s_cmp_le_u32 s{sCNT}, 2", f"s_cselect_b32 s{SA+2}, 0, s{SA+2}"]
            if not isA: pre.append(f"s_cselect_b32 s{SB_+2}, 0, s{SB_+2}")
        elif isA:
            pre = [f"s_cmp_le_u32 s{sCNT}, 2", f"s_cselect_b32 s{SB_+2}, 0, s{SB_+2}"]
        hp = 0
        for h in pre:
            g.head(min(hp, 1), h); hp += 1
        hp = min(hp, 1)
        di = 0
        for hs, b in L:
            for h in hs:
                g.head(hp, h); hp += 1
            if b:
                assert hp <= dg[di], (n, hp, dg[di])
                g.body(dg[di], b); hp = dg[di] + 1; di += 1
        rg = [x for x in range(36) if x not in dg]
        for i, t in enumerate(reads(n + 1)): g.body(rg[i], t)
        if n % 2 == 1:
            g.head(28, f"s_sub_u32 s{sCNT}, s{sCNT}, 1")
        g.head(35, "s_waitcnt vmcnt(18) lgkmcnt(0)")
        g.head(35, "s_barrier")
        if n % 2 == 1:
            g.head(35, f"s_cmp_lg_u32 s{sCNT}, 0")
            g.head(35, f"s_cbranch_scc0 {k.L('done'+role)}" if n == 1 else f"s_cbranch_scc1 {k.L('loop'+role)}")
        g.emit(0, 36)
    k.loops.append((body0, len(k.lines)))
    k.label("done" + role)
    k.vm = []; k.lg = []
    e(f"s_branch {k.L('epi')}")
    k.label("role" + role + "_end")

def k2():
    k = EK("k2_kernel", 256, 256, 147456, vgpr=512, sgpr=102, accum=256)
    k.loops = []
    e = k.e
    e("s_cmp_ge_u32 s2, 256"); e(f"s_cbranch_scc1 {k.L('exit')}")
    stamp(k, 0)
    load_args(k)
    e("v_lshrrev_b32 v1, 6, v0"); e("s_nop 0"); e(f"v_readfirstlane_b32 s{S_WAVE}, v1")
    e(f"s_bfe_u32 s{S_ROLE}, s2, 0x20001")
    e("s_and_b32 s3, s2, 1"); e("s_lshl_b32 s3, s3, 3"); e("s_lshr_b32 s4, s2, 5"); e(f"s_add_u32 s{S_SB}, s3, s4")
    e(f"s_bfe_u32 s{S_DB}, s2, 0x20003")
    e(f"s_lshl_b32 s{S_TILE}, s{S_SB}, 2"); e(f"s_add_u32 s{S_TILE}, s{S_TILE}, s{S_DB}")
    e(f"s_and_b32 s{S_RH}, s{S_WAVE}, 1"); e(f"s_lshr_b32 s{S_KP}, s{S_WAVE}, 1")
    e(f"s_cmp_lt_u32 s{S_ROLE}, 2"); e(f"s_cbranch_scc1 {k.L('roleA')}")
    e(f"s_branch {k.L('roleB')}")
    k.label("exit"); e("s_endpgm")
    e(".p2align 6")
    mainloop(k, "A")
    e(".p2align 6")
    mainloop(k, "B")
    k.label("epi")
    stamp(k, 2)
    T = 40
    e("s_nop 7")
    e("s_waitcnt vmcnt(0)"); e("s_barrier")
    e(f"s_mul_i32 s3, s{S_WAVE}, 18432"); e(f"v_add_u32 v5, s3, v{vLIN}")
    e(f"s_xor_b32 s4, s{S_WAVE}, 2"); e(f"s_mul_i32 s3, s4, 18432"); e(f"v_add_u32 v6, s3, v{vLIN}")
    for i in range(18): e(f"ds_write_b128 v5, {vr(ACC+72+4*i,4)} offset:{1024*i}")
    k.srd(SP, P_WS, WS_P, P_BYTES)
    e(f"s_mul_i32 s5, s{S_TILE}, 12"); e(f"s_add_u32 s5, s5, s{S_WAVE}"); e("s_mul_i32 s5, s5, 9216")
    k.srd(SA, P_DBG, 0, 256)
    e(f"s_lshl_b32 s6, s{S_TILE}, 2")
    e("s_waitcnt lgkmcnt(0)"); e("s_barrier")
    for i in range(18): e(f"ds_read_b128 {vr(T+4*i,4)}, v6 offset:{1024*i}")
    e(f"s_cmp_eq_u32 s{S_ROLE}, 3"); e(f"s_cbranch_scc1 {k.L('final')}")
    e(f"s_mul_i32 s3, s{S_ROLE}, {4*9216}"); e("s_add_u32 s5, s5, s3")
    for db in range(9):
        e(f"s_waitcnt lgkmcnt({min(15, 16-2*db)})")
        a = ACC + 8*db; t = T + 8*db
        for r in range(0, 8, 2): e(f"v_pk_add_f32 {vr(a+r,2)}, {vr(a+r,2)}, {vr(t+r,2)}")
        for p in range(4): e(f"v_cvt_pk_bf16_f32 v{a+p}, v{a+2*p}, v{a+2*p+1}")
        if db % 4 == 0 and db: e("s_add_u32 s5, s5, 4096")
        e(f"buffer_store_dwordx4 {vr(a,4)}, v{vLIN}, s[{SP}:{SP+3}], s5 offen offset:{1024*(db&3)} sc1")
    e("s_waitcnt vmcnt(0)"); e("s_barrier")
    e(f"s_cmp_lg_u32 s{S_WAVE}, 0"); e(f"s_cbranch_scc1 {k.L('fin')}")
    e("v_mov_b32 v7, 1"); e("v_mov_b32 v8, 0")
    e("s_mov_b64 exec, 1")
    e(f"buffer_atomic_add v7, v8, s[{SA}:{SA+3}], s6 offen sc1")
    e("s_mov_b64 exec, -1")
    e(f"s_branch {k.L('fin')}")
    k.label("final")
    X = 184
    B2 = 8
    k.srd(SX, P_X, 0, SIZE['x']); k.srd(SO, P_OUT, 0, SIZE['out']); k.srd(SB_, P_B2, 0, SIZE['b2'])
    e(f"s_lshl_b32 s3, s{S_SB}, 7"); e(f"s_lshl_b32 s4, s{S_RH}, 6"); e("s_add_u32 s3, s3, s4")
    e(f"s_lshl_b32 s4, s{S_KP}, 5"); e("s_add_u32 s3, s3, s4")
    e("v_and_b32 v16, 15, v1"); e("v_add_u32 v16, s3, v16")
    e("v_lshlrev_b32 v17, 1, v16")
    k.vmem(f"buffer_load_ushort v{B2}, v17, s[{SB_}:{SB_+3}], 0 offen", "b2")
    k.vmem(f"buffer_load_ushort v{B2+2}, v17, s[{SB_}:{SB_+3}], 0 offen offset:32", "b2")
    e("v_mul_u32_u24 v16, 1152, v16"); e("v_lshrrev_b32 v17, 4, v1"); e("v_lshl_add_u32 v16, v17, 3, v16")
    e(f"s_mul_i32 s3, s{S_DB}, 288"); e("v_add_u32 v16, s3, v16"); e(f"v_add_u32 v17, {16*1152}, v16")
    for db in range(9):
        for sb in range(2):
            k.vmem(f"buffer_load_dwordx2 {vr(X+4*db+2*sb,2)}, v{16+sb}, s[{SX}:{SX+3}], 0 offen offset:{32*db}", "x")
    for db in range(9):
        e(f"s_waitcnt lgkmcnt({min(15, 16-2*db)})")
        a = ACC + 8*db; t = T + 8*db
        for r in range(0, 8, 2): e(f"v_pk_add_f32 {vr(a+r,2)}, {vr(a+r,2)}, {vr(t+r,2)}")
    stamp(k, 3)
    e("v_mov_b32 v18, 0"); e("s_mov_b32 s7, 0x100000")
    k.label("poll")
    e(f"buffer_load_dword v19, v18, s[{SA}:{SA+3}], s6 offen sc1")
    e("s_waitcnt vmcnt(0)")
    e("v_readfirstlane_b32 s3, v19")
    e("s_cmp_ge_u32 s3, 3"); e(f"s_cbranch_scc1 {k.L('ready')}")
    e("s_sleep 2"); e("s_sub_u32 s7, s7, 1"); e("s_cmp_lg_u32 s7, 0"); e(f"s_cbranch_scc1 {k.L('poll')}")
    k.label("ready")
    stamp(k, 4)
    k.vm = []
    PR = {2: 40, 0: 76, 1: 220}
    for db in range(9):
        for r in (2, 0, 1):
            e(f"s_add_u32 s3, s5, {r*4*9216 + (db>>2)*4096}")
            k.vmem(f"buffer_load_dwordx4 {vr(PR[r]+4*db,4)}, v{vLIN}, s[{SP}:{SP+3}], s3 offen offset:{1024*(db&3)} sc1", ("p", db))
    e(f"v_lshlrev_b32 v{B2}, 16, v{B2}"); e(f"v_lshlrev_b32 v{B2+2}, 16, v{B2+2}")
    e("s_mov_b32 s4, 0xffff0000")
    e(f"v_mov_b32 v12, {fhex(-LOG2E)}"); e("v_mov_b32 v14, 1.0")
    U1, U2 = 20, 28
    def unpack(dst, src):
        for p in range(4):
            e(f"v_lshlrev_b32 v{dst+2*p}, 16, v{src+p}"); e(f"v_and_b32 v{dst+2*p+1}, s4, v{src+p}")
    for db in range(9):
        a = ACC + 8*db
        k.wait(vm=[("p", db)])
        unpack(U1, PR[2] + 4*db)
        for r in range(0, 8, 2): e(f"v_pk_add_f32 {vr(a+r,2)}, {vr(a+r,2)}, {vr(U1+r,2)}")
        for r in range(0, 8, 2): e(f"v_pk_add_f32 {vr(a+r,2)}, {vr(a+r,2)}, {vr(B2+2*(r>>2),2)} op_sel_hi:[1,0]")
        for r in range(0, 8, 2): e(f"v_pk_mul_f32 {vr(U1+r,2)}, {vr(a+r,2)}, v[12:13] op_sel_hi:[1,0]")
        for r in range(8): e(f"v_exp_f32 v{U1+r}, v{U1+r}")
        unpack(U2, PR[0] + 4*db)
        for r in range(0, 8, 2): e(f"v_pk_add_f32 {vr(U1+r,2)}, {vr(U1+r,2)}, v[14:15] op_sel_hi:[1,0]")
        for r in range(8): e(f"v_rcp_f32 v{U1+r}, v{U1+r}")
        e("s_nop 0")
        for r in range(0, 8, 2): e(f"v_pk_mul_f32 {vr(a+r,2)}, {vr(a+r,2)}, {vr(U1+r,2)}")
        unpack(U1, PR[1] + 4*db)
        for r in range(0, 8, 2): e(f"v_pk_add_f32 {vr(U2+r,2)}, {vr(U2+r,2)}, {vr(U1+r,2)}")
        unpack(U1, X + 4*db)
        for r in range(0, 8, 2): e(f"v_pk_fma_f32 {vr(a+r,2)}, {vr(a+r,2)}, {vr(U2+r,2)}, {vr(U1+r,2)}")
        for p in range(4): e(f"v_cvt_pk_bf16_f32 v{a+p}, v{a+2*p}, v{a+2*p+1}")
        for sb in range(2):
            k.vmem(f"buffer_store_dwordx2 {vr(a+2*sb,2)}, v{16+sb}, s[{SO}:{SO+3}], 0 offen offset:{32*db}", "st")
    k.label("fin")
    stamp(k, 5)
    stamp_flush(k, 7, P_WS, 1)
    e("s_endpgm")
    k.label("end")
    return k
```

```python
import sys
from common import *
import hazard
from k0 import k0
from k1 import k1
def finish(k):
    for (a, b) in getattr(k, "loops", []):
        errs = hazard.check(k.lines[a:b] + k.lines[a:b], k.name + " loop")
        for x in errs: print("LOOP HAZARD", x)
        assert not errs
    k.lines, n = hazard.fix(k.lines, verbose=("-v" in sys.argv))
    print(k.name, "nops inserted:", n, "lines:", len(k.lines))
    return k
if __name__ == "__main__":
    ks = [finish(k0()), finish(k1())]
    try:
        from k2 import k2
        ks.append(finish(k2()))
    except ImportError:
        pass
    open(sys.argv[1], "w").write(assemble_file(ks))
```

```python
from asmlib import *
import math
LOG2E = 1.4426950408889634
QSCALE = 128**-0.5 * LOG2E
WS_XN = 0
XN_BYTES = 18*128*1024
WS_H = WS_XN + XN_BYTES
H_BYTES = 2048*576*2
WS_O = WS_H + H_BYTES
O_BYTES = 128*128*1024
WS_U = WS_O + O_BYTES
U_BYTES = 144*36*1024
WS_P = WS_U + U_BYTES
P_BYTES = 64*16*9216

WS_F = WS_P + P_BYTES
F_BYTES = 256*128

class EK(Kernel):
    def __init__(self, *a, **k):
        super().__init__(*a, **k)
        self.vm = []; self.lg = []
    def vmem(self, text, tag=None):
        self.e(text); self.vm.append(tag)
        assert len(self.vm) <= 63 or True
    def dsop(self, text, tag=None):
        self.e(text); self.lg.append(tag)
    def _cnt(self, q, tags):
        idx = -1
        for i, t in enumerate(q):
            if t in tags: idx = i
        if idx < 0: return None
        n = len(q) - 1 - idx
        del q[:idx + 1]
        return n
    def wait(self, vm=(), lg=()):
        a = self._cnt(self.vm, set(vm)) if vm else None
        b = self._cnt(self.lg, set(lg)) if lg else None
        s = ""
        if a is not None: s += f" vmcnt({min(a, 63)})"
        if b is not None: s += f" lgkmcnt({min(b, 15)})"
        if s: self.e("s_waitcnt" + s)
        return bool(s)
    def wait_all(self):
        self.e("s_waitcnt vmcnt(0) lgkmcnt(0)"); self.vm = []; self.lg = []

import sys
STAMPS = "--stamps" in sys.argv
NST = 8
def stamp(k, i):
    if STAMPS:
        k.e(f"s_memtime s[{80+2*i}:{81+2*i}]")
        if i == 0: k.e("s_memrealtime s[96:97]")
def stamp_flush(k, n, pws, region=0):
    if not STAMPS: return
    e = k.e
    e("s_waitcnt vmcnt(0)")
    e(f"s_memtime s[{80+2*(n-1)}:{81+2*(n-1)}]")
    e("s_memrealtime s[98:99]")
    e("s_waitcnt lgkmcnt(0)")
    e(f"s_add_u32 s8, s{pws}, {(200<<20) + region*65536}"); e(f"s_addc_u32 s9, s{pws+1}, 0"); e("s_mov_b32 s10, 65536"); e("s_mov_b32 s11, 0x20000")
    e(f"s_mul_i32 s3, s2, {NST*4}")
    e("v_mov_b32 v2, 0")
    e("s_sub_u32 s98, s98, s96"); e("v_mov_b32 v3, s98"); e("buffer_store_dword v3, v2, s[8:11], s3 offen")
    for i in range(1, n):
        e(f"s_sub_u32 s4, s{80+2*i}, s80"); e("v_mov_b32 v3, s4")
        e(f"buffer_store_dword v3, v2, s[8:11], s3 offen offset:{4*i}")

def OPT(name, default):
    for a in sys.argv:
        if a.startswith(f"--{name}="): return int(a.split("=")[1])
    return default
def OPTS(name, default):
    for a in sys.argv:
        if a.startswith(f"--{name}="): return a.split("=")[1]
    return default
PF0 = OPT("pf0", 2)
R1 = (PF0*32768)//72
R2 = OPT("r2", 1440)
```

```python
from common import *
def k0():
    k = EK("ln_kernel", 256, 128, 0, vgpr=96, sgpr=102, accum=96)
    e = k.e
    e("s_cmp_ge_u32 s2, 256"); e(f"s_cbranch_scc1 {k.L('end')}")
    rt(k, 0)
    e(f"s_load_dwordx2 s[4:5], s[0:1], {ARG['x']}")
    e(f"s_load_dwordx2 s[6:7], s[0:1], {ARG['ws']}")
    e(f"s_load_dwordx2 s[36:37], s[0:1], {ARG['w1']}")
    e("v_lshrrev_b32 v1, 4, v0")
    e("s_lshl_b32 s3, s2, 3")
    e("v_add_u32 v1, s3, v1")
    e("v_and_b32 v2, 15, v0")
    e("v_mul_u32_u24 v3, 1152, v1")
    e("v_lshl_add_u32 v3, v2, 3, v3")
    e("v_lshrrev_b32 v4, 3, v2"); e("v_lshlrev_b32 v4, 17, v4")
    e("v_lshrrev_b32 v5, 4, v1"); e("v_lshl_add_u32 v4, v5, 10, v4")
    e("v_bfe_u32 v5, v2, 1, 2"); e("v_lshl_add_u32 v4, v5, 8, v4")
    e("v_and_b32 v5, 15, v1"); e("v_lshl_add_u32 v4, v5, 4, v4")
    e("v_and_b32 v5, 1, v2"); e("v_lshl_add_u32 v4, v5, 3, v4")
    e("s_waitcnt lgkmcnt(0)")
    k.srd(8, 4, 0, SIZE['x'])
    for i in range(9):
        e(f"buffer_load_dwordx2 v[{10+2*i}:{11+2*i}], v3, s[8:11], 0 offen offset:{128*i}")
    k.srd(40, 36, 0, SIZE['w1'])
    e("s_lshl_b32 s3, s2, 14"); e("v_lshlrev_b32 v28, 7, v0"); e("v_add_u32 v28, s3, v28")
    for r in range(PF0):
        e(f"s_mov_b32 s3, {r*32768*128}")
        e(f"buffer_load_dword v29, v28, s[40:43], s3 offen")
    k.srd(44, 6, WS_F, F_BYTES)
    e("s_lshl_b32 s3, s2, 7"); e("v_and_b32 v30, 31, v0"); e("v_lshlrev_b32 v30, 2, v30"); e("v_mov_b32 v31, 0")
    e("buffer_store_dword v31, v30, s[44:47], s3 offen")
    k.srd(12, 6, WS_XN, XN_BYTES); k.srd(16, 6, WS_H, H_BYTES)
    for i in range(1, 9):
        e(f"s_mov_b32 s{24+i}, {i*262144}")
    e("s_mov_b32 s20, 0xffff0000")
    F = 32
    for i in range(9):
        e(f"s_waitcnt vmcnt({8-i+PF0+1})")
        for h in range(2):
            e(f"v_lshlrev_b32 v{F+4*i+2*h}, 16, v{10+2*i+h}")
            e(f"v_and_b32 v{F+4*i+2*h+1}, s20, v{10+2*i+h}")
    def red16(v):
        for mode in ["quad_perm:[1,0,3,2]", "quad_perm:[2,3,0,1]", "row_half_mirror", "row_mirror"]:
            e("s_nop 1")
            e(f"v_add_f32_dpp v{v}, v{v}, v{v} {mode} row_mask:0xf bank_mask:0xf")
    e(f"v_pk_add_f32 v[6:7], v[{F}:{F+1}], v[{F+2}:{F+3}]")
    e(f"v_pk_add_f32 v[8:9], v[{F+4}:{F+5}], v[{F+6}:{F+7}]")
    for p in range(4, 18):
        d = 6 + 2*(p % 2)
        e(f"v_pk_add_f32 v[{d}:{d+1}], v[{d}:{d+1}], v[{F+2*p}:{F+2*p+1}]")
    e("v_pk_add_f32 v[6:7], v[6:7], v[8:9]")
    e("v_add_f32 v6, v6, v7")
    red16(6)
    e(f"v_mul_f32 v6, {fhex(1/576)}, v6")
    for p in range(18):
        e(f"v_pk_add_f32 v[{F+2*p}:{F+2*p+1}], v[{F+2*p}:{F+2*p+1}], v[6:7] op_sel_hi:[1,0] neg_lo:[0,1] neg_hi:[0,1]")
    e(f"v_pk_mul_f32 v[6:7], v[{F}:{F+1}], v[{F}:{F+1}]")
    e(f"v_pk_mul_f32 v[8:9], v[{F+2}:{F+3}], v[{F+2}:{F+3}]")
    for p in range(2, 18):
        d = 6 + 2*(p % 2)
        e(f"v_pk_fma_f32 v[{d}:{d+1}], v[{F+2*p}:{F+2*p+1}], v[{F+2*p}:{F+2*p+1}], v[{d}:{d+1}]")
    e("v_pk_add_f32 v[6:7], v[6:7], v[8:9]")
    e("v_add_f32 v6, v6, v7")
    red16(6)
    e(f"v_mul_f32 v6, {fhex(1/576)}, v6")
    e(f"v_add_f32 v7, {fhex(1e-5)}, v6")
    e("v_rsq_f32 v7, v7")
    e("s_nop 0")
    e("v_mul_f32 v6, v6, v7"); e("v_mul_f32 v6, v6, v7")
    e(f"v_add_f32 v6, {fhex(1e-5)}, v6")
    e("v_rsq_f32 v6, v6")
    e(f"v_mul_f32 v8, {fhex(QSCALE)}, v7")
    e("v_mul_f32 v6, v6, v7")
    T = 70
    for i in range(9):
        t = T + 8*(i % 2)
        e(f"v_pk_mul_f32 v[{t}:{t+1}], v[{F+4*i}:{F+4*i+1}], v[8:9] op_sel_hi:[1,0]")
        e(f"v_pk_mul_f32 v[{t+2}:{t+3}], v[{F+4*i+2}:{F+4*i+3}], v[8:9] op_sel_hi:[1,0]")
        e(f"v_pk_mul_f32 v[{t+4}:{t+5}], v[{F+4*i}:{F+4*i+1}], v[6:7] op_sel_hi:[1,0]")
        e(f"v_pk_mul_f32 v[{t+6}:{t+7}], v[{F+4*i+2}:{F+4*i+3}], v[6:7] op_sel_hi:[1,0]")
        e(f"v_cvt_pk_bf16_f32 v{F+4*i}, v{t}, v{t+1}")
        e(f"v_cvt_pk_bf16_f32 v{F+4*i+1}, v{t+2}, v{t+3}")
        e(f"v_cvt_pk_bf16_f32 v{F+4*i+2}, v{t+4}, v{t+5}")
        e(f"v_cvt_pk_bf16_f32 v{F+4*i+3}, v{t+6}, v{t+7}")
        so = f"s{24+i}" if i else "0"
        e(f"buffer_store_dwordx2 v[{F+4*i}:{F+4*i+1}], v4, s[12:15], {so} offen")
        e(f"buffer_store_dwordx2 v[{F+4*i+2}:{F+4*i+3}], v3, s[16:19], 0 offen offset:{128*i}")
    rt_flush(k, 2, 6, 0, 0)
    k.label("end"); e("s_endpgm")
    return k
```

```python
from common import *
import hazard

class Gaps:
    def __init__(self, k):
        self.k = k; self.m = {}; self.h = {}; self.b = {}
    def mfma(self, u, t): assert u not in self.m; self.m[u] = t
    def head(self, u, t): self.h.setdefault(u, []).append(t)
    def body(self, u, t): self.b.setdefault(u, []).append(t)
    def _do(self, t):
        if callable(t): t()
        else: self.k.e(t)
    def emit(self, lo, hi):
        for u in range(lo, hi):
            if u in self.m: self._do(self.m[u])
            for t in self.h.get(u, []): self._do(t)
            for t in self.b.get(u, []): self._do(t)

MF = "v_mfma_f32_16x16x32_bf16"
NT = " nt" if OPT("nt", 1) else ""
FL = ["", " nt", " sc1", " sc0 sc1", " sc0", " sc1 nt"]
NTT = FL[OPT("ntt", 0)]
NTD = FL[OPT("ntd", 0)]
P_X, P_K, P_V, P_WQ, P_WO, P_BX, P_W1, P_B1, P_W2, P_B2, P_OUT, P_DBG, P_WS = 36, 38, 40, 42, 44, 46, 48, 50, 52, 54, 56, 58, 60
S_WAVE, S_XCD, S_SLOT = 28, 29, 30

def load_args(k):
    k.e("s_load_dwordx16 s[36:51], s[0:1], 0")
    k.e("s_load_dwordx8 s[52:59], s[0:1], 64")
    k.e("s_load_dwordx2 s[60:61], s[0:1], 96")

def code_prefetch(k, start, end, sreg=62, vt=2):
    e = k.e
    e(f"s_getpc_b64 s[{sreg}:{sreg+1}]")
    k.label(f"pc_{start}")
    e(f"s_mov_b32 s{sreg+2}, {k.L(end)}-{k.L('pc_'+start)}")
    e(f"s_mov_b32 s{sreg+3}, 0x20000")
    e(f"v_lshlrev_b32 v{vt}, 7, v0")
    k.vmem(f"buffer_load_dword v{vt+1}, v{vt}, s[{sreg}:{sreg+3}], 0 offen", "pf")
    e(f"v_add_u32 v{vt}, 0x8000, v{vt}")
    k.vmem(f"buffer_load_dword v{vt+1}, v{vt}, s[{sreg}:{sreg+3}], 0 offen", "pf")

def gelu_pairs(k, regs_pairs, dst, tmp, C0, C1, ONE):
    e = k.e
    n = len(regs_pairs)
    T = lambda i: tmp + 2*i
    for i, u in enumerate(regs_pairs): e(f"v_pk_mul_f32 {vr(T(i),2)}, {vr(u,2)}, {vr(u,2)}")
    for i, u in enumerate(regs_pairs): e(f"v_pk_fma_f32 {vr(T(i),2)}, {vr(T(i),2)}, {vr(C1,2)}, {vr(C0,2)}")
    for i, u in enumerate(regs_pairs): e(f"v_pk_mul_f32 {vr(T(i),2)}, {vr(T(i),2)}, {vr(u,2)}")
    for i in range(n):
        e(f"v_exp_f32 v{T(i)}, v{T(i)}"); e(f"v_exp_f32 v{T(i)+1}, v{T(i)+1}")
    for i in range(n): e(f"v_pk_add_f32 {vr(T(i),2)}, {vr(T(i),2)}, {vr(ONE,2)}")
    for i in range(n):
        e(f"v_rcp_f32 v{T(i)}, v{T(i)}"); e(f"v_rcp_f32 v{T(i)+1}, v{T(i)+1}")
    for i, u in enumerate(regs_pairs): e(f"v_pk_mul_f32 {vr(T(i),2)}, {vr(T(i),2)}, {vr(u,2)}")
    for i in range(n): e(f"v_cvt_pk_bf16_f32 v{dst[i]}, v{T(i)}, v{T(i)+1}")

def mlp1(k, UNROLL=8, DIST=OPT('mdist', 6), LA=OPT('mla', 0), TOUCH=OPT('mtouch', 0)):
    e = k.e
    SW, SH, SU, SB = 8, 12, 16, 20
    sUB, sOW, sOH, sOWm, sOHm, sRD, sWR, sWB, sCNT, sOT, sOTm = 68, 69, 70, 71, 72, 73, 74, 75, 76, 77, 78
    vT, vTD = 2, 3
    SLOT = 24576; NS = 6
    ACC = 112
    vW, vH = 4, 7
    RAb, RBb, RA, RB = 10, 14, 18, 22
    BIAS = 32
    k.label("mlp1")
    k.vm = []; k.lg = []
    code_prefetch(k, "mlp1", "mlp1_end", 64)
    e(f"s_sub_u32 s3, s{S_SLOT}, 22")
    e("s_mul_i32 s4, s3, 11"); e("s_lshr_b32 s4, s4, 5")
    e("s_mul_i32 s5, s4, 3"); e("s_sub_u32 s5, s3, s5")
    e(f"s_mul_i32 s6, s{S_XCD}, 3"); e("s_add_u32 s6, s6, s4")
    e(f"s_mul_i32 s{sOW}, s6, 384")
    e(f"s_mul_i32 s{sOH}, s5, 384")
    e(f"s_add_u32 s{sOWm}, s{sOW}, {63*32*9216}")
    e(f"s_add_u32 s{sOHm}, s{sOH}, {63*32*1152}")
    e(f"s_mul_i32 s{sWB}, s{S_WAVE}, 3072")
    e("v_and_b32 v1, 63, v0")
    e(f"s_lshl_b32 s7, s{S_WAVE}, 3")
    for i in range(3):
        e(f"v_add_u32 v26, {64*i}, v1")
        e("v_mul_u32_u24 v27, 2731, v26"); e("v_lshrrev_b32 v27, 16, v27")
        e("v_mul_u32_u24 v28, 24, v27"); e("v_sub_u32 v28, v26, v28")
        e("v_and_b32 v29, 6, v27"); e("v_xor_b32 v28, v28, v29")
        e("v_add_u32 v27, s7, v27")
        e("v_lshlrev_b32 v28, 4, v28")
        if i: e(f"v_subrev_u32 v28, {1024*i}, v28")
        e(f"v_mul_u32_u24 v29, 9216, v27"); e(f"v_add_u32 v{vW+i}, v29, v28")
        e(f"v_mul_u32_u24 v29, 1152, v27"); e(f"v_add_u32 v{vH+i}, v29, v28")
    e(f"s_and_b32 s4, s{S_WAVE}, 1")
    e(f"s_lshr_b32 s7, s{S_WAVE}, 1")
    e("s_mul_i32 s3, s6, 384"); e("s_mul_i32 s31, s4, 192"); e("s_add_u32 s3, s3, s31")
    e("v_lshrrev_b32 v26, 4, v1"); e("v_lshlrev_b32 v27, 3, v26")
    e("s_waitcnt lgkmcnt(0)")
    k.srd(SW, P_W1, 0, SIZE['w1']); k.srd(SH, P_WS, WS_H, H_BYTES); k.srd(SB, P_B1, 0, SIZE['b1'])
    for fb in range(6):
        k.vmem(f"buffer_load_dwordx2 v[{56+2*fb}:{57+2*fb}], v27, s[{SB}:{SB+3}], s3 offen offset:{32*fb}", "bias")
    def dma(i, which, tag):
        if which == 0:
            k.vmem(f"buffer_load_dwordx4 v{vW+i}, s[{SW}:{SW+3}], s{sOW} offen offset:{1024*i}{NTD} lds", tag)
        else:
            k.vmem(f"buffer_load_dwordx4 v{vH+i}, s[{SH}:{SH+3}], s{sOH} offen offset:{1024*i} lds", tag)
    e("v_lshrrev_b32 v26, 3, v1"); e("v_and_b32 v28, 7, v1"); e("v_lshl_add_u32 v26, v26, 5, v28")
    e(f"s_lshl_b32 s31, s{S_WAVE}, 3"); e("v_add_u32 v26, s31, v26")
    e("v_mul_u32_u24 v26, 9216, v26"); e("s_lshl_b32 s31, s5, 7"); e(f"v_add_u32 v{vT}, s31, v26")
    def stage_dma(st):
        e(f"s_add_u32 m0, s{sWB}, {st*SLOT}")
        e("s_nop 0")
        for i in range(3): dma(i, 0, ("st", st))
        e(f"s_add_u32 m0, s{sWB}, {st*SLOT+12288}")
        e(f"s_add_u32 s{sOW}, s{sOW}, {32*9216}")
        for i in range(3): dma(i, 1, ("st", st))
        e(f"s_add_u32 s{sOH}, s{sOH}, {32*1152}")
    e(f"s_add_u32 s{sOT}, s{sOW}, {2*32*9216}")
    stage_dma(0); stage_dma(1)
    k.vmem(f"buffer_load_dword v{vTD}, v{vT}, s[{SW}:{SW+3}], s{sOT} offen{NTT}", "touch")
    e(f"s_sub_u32 s{sOTm}, s{sOWm}, {7*32*9216}")
    k.srd(SU, P_WS, WS_U, U_BYTES)
    e("s_mul_i32 s3, s6, 6"); e("s_mul_i32 s31, s4, 3"); e("s_add_u32 s3, s3, s31"); e("s_mul_i32 s3, s3, 36")
    e("s_mul_i32 s31, s5, 12"); e("s_add_u32 s3, s3, s31"); e("s_mul_i32 s31, s7, 6"); e("s_add_u32 s3, s3, s31")
    e(f"s_lshl_b32 s{sUB}, s3, 10")
    e("v_lshrrev_b32 v27, 2, v1")
    e("v_bfe_u32 v28, v27, 1, 2")
    e("v_mul_u32_u24 v27, 384, v27")
    e("v_and_b32 v29, 3, v1"); e("v_lshl_add_u32 v27, v29, 3, v27")
    e("s_mul_i32 s4, s4, 6"); e("s_mul_i32 s7, s7, 6")
    for q in range(4):
        e(f"s_add_u32 s3, s4, {q}"); e("v_xor_b32 v29, s3, v28"); e(f"v_lshl_add_u32 v{RAb+q}, v29, 5, v27")
        e(f"s_add_u32 s3, s7, {q}"); e("v_xor_b32 v29, s3, v28"); e(f"v_lshl_add_u32 v{RBb+q}, v29, 5, v27")
        e(f"v_add_u32 v{RBb+q}, 12288, v{RBb+q}")
    def acc(fb, db): return ACC + (((fb >> 1)*6 + db)*2 + (fb & 1))*4
    def A(buf, i): return buf*48 + 4*i
    def B(buf, i): return buf*48 + 24 + 4*i
    k.wait(vm=["bias"])
    e("s_mov_b32 s3, 0xffff0000")
    for fb in range(6):
        for h in range(2):
            e(f"v_lshlrev_b32 v{BIAS+4*fb+2*h}, 16, v{56+2*fb+h}")
            e(f"v_and_b32 v{BIAS+4*fb+2*h+1}, s3, v{56+2*fb+h}")
    for fb in range(6):
        for db in range(6):
            for r in range(4): e(f"v_mov_b32 v{acc(fb,db)+r}, v{BIAS+4*fb+r}")
    def reads(ra, rb, buf):
        L = []
        for i in range(6):
            for h in range(2):
                L.append(f"ds_read_b64_tr_b16 {ar(B(buf,i)+2*h,2)}, v{rb+(i&3)} offset:{(i>>2)*128+h*6144}")
        for i in range(6):
            for h in range(2):
                L.append(f"ds_read_b64_tr_b16 {ar(A(buf,i)+2*h,2)}, v{ra+(i&3)} offset:{(i>>2)*128+h*6144}")
        return L
    for st in range(2, DIST):
        stage_dma(st)
    k.wait(vm=[("st", 0)])
    e("s_barrier")
    for t in reads(RAb, RBb, 0): e(t)
    for q in range(4):
        e(f"v_add_u32 v{RA+q}, {SLOT}, v{RAb+q}"); e(f"v_add_u32 v{RB+q}, {SLOT}, v{RBb+q}")
    e(f"s_mov_b32 s{sWR}, {(DIST % NS)*SLOT}"); e(f"s_mov_b32 s{sRD}, {SLOT}")
    e(f"s_mov_b32 s{sCNT}, {64//UNROLL}")
    k.wait(vm=[("st", 1)]); e("s_waitcnt lgkmcnt(0)"); e("s_barrier")
    stamp(k, 1)
    e(".p2align 6")
    k.label("mlp1_loop")
    body0 = len(k.lines)
    for st in range(UNROLL):
        buf = st & 1
        g = Gaps(k)
        u = 0
        for fb in range(6):
            for db in range(6):
                c = vr(acc(fb, db), 4)
                g.mfma(u, f"{MF} {c}, {ar(A(buf,fb),4)}, {ar(B(buf,db),4)}, {c}"); u += 1
        dg = [2, 8, 14, 20, 26, 32]
        rg = [x for x in range(36) if x not in dg][:24]
        for n, t in enumerate(reads(RA, RB, buf ^ 1)): g.body(rg[n], t)
        g.head(0, f"s_add_u32 m0, s{sWR}, s{sWB}")
        g.head(1, f"s_min_u32 s{sOW}, s{sOW}, s{sOWm}")
        g.head(3, f"s_add_u32 s{sWR}, s{sWR}, {SLOT}")
        g.head(4, f"s_cmp_eq_u32 s{sWR}, {NS*SLOT}")
        g.head(5, f"s_cselect_b32 s{sWR}, 0, s{sWR}")
        if st == LA:
            g.head(6, f"s_add_u32 s{sOT}, s{sOT}, {8*32*9216}")
            g.head(7, f"s_min_u32 s{sOT}, s{sOT}, s{sOTm}")
        g.head(9, f"s_add_u32 s{sRD}, s{sRD}, {SLOT}")
        g.head(10, f"s_cmp_eq_u32 s{sRD}, {NS*SLOT}")
        g.head(11, f"s_cselect_b32 s{sRD}, 0, s{sRD}")
        for i in range(3): g.body(dg[i], (lambda i=i: dma(i, 0, None)))
        g.head(15, f"s_add_u32 m0, m0, 12288")
        g.head(16, f"s_add_u32 s{sOW}, s{sOW}, {32*9216}")
        g.head(17, f"s_min_u32 s{sOH}, s{sOH}, s{sOHm}")
        for i in range(3): g.body(dg[3 + i], (lambda i=i: dma(i, 1, None)))
        g.head(33, f"s_add_u32 s{sOH}, s{sOH}, {32*1152}")
        if TOUCH and st == LA: g.body(29, f"buffer_load_dword v{vTD}, v{vT}, s[{SW}:{SW+3}], s{sOT} offen{NTT}")
        for q in range(4): g.body(15 + q, f"v_add_u32 v{RB+q}, s{sRD}, v{RBb+q}")
        for q in range(4): g.body(30 + q//2, f"v_add_u32 v{RA+q}, s{sRD}, v{RAb+q}")
        if st == UNROLL - 1:
            g.head(31, f"s_sub_u32 s{sCNT}, s{sCNT}, 1")
            g.head(34, f"s_cmp_lg_u32 s{sCNT}, 0")
        g.head(35, f"s_waitcnt vmcnt({(DIST-2)*6}) lgkmcnt(0)")
        g.head(35, "s_barrier")
        if st == UNROLL - 1:
            g.head(35, f"s_cbranch_scc1 {k.L('mlp1_loop')}")
        g.emit(0, 36)
    k.loops.append((body0, len(k.lines)))
    k.vm = []; k.lg = []
    stamp(k, 2)
    C0, C1, ONE, TMP = 26, 28, 30, 32
    c0 = -2*math.sqrt(2/math.pi)*LOG2E
    for r in range(2):
        e(f"v_mov_b32 v{C0+r}, {fhex(c0)}"); e(f"v_mov_b32 v{C1+r}, {fhex(c0*0.044715)}"); e(f"v_mov_b32 v{ONE+r}, 1.0")
    e("v_lshlrev_b32 v1, 4, v1")
    for j in range(3):
        for db in range(0, 6, 2):
            base = [acc(2*j, db), acc(2*j, db+1)]
            pairs = [b + 2*p for b in base for p in range(4)]
            dst = [b + p for b in base for p in range(4)]
            gelu_pairs(k, pairs, dst, TMP + 16*((db//2) & 1), C0, C1, ONE)
            for q in range(2):
                off = (db + q)*1024
                so = f"s{sUB}"
                if off >= 4096:
                    e(f"s_add_u32 s3, s{sUB}, 4096"); so = "s3"; off -= 4096
                k.vmem(f"buffer_store_dwordx4 {vr(base[q],4)}, v1, s[{SU}:{SU+3}], {so} offen offset:{off}{FL[OPT('stf', 2)]}")
        e(f"s_add_u32 s{sUB}, s{sUB}, {36*1024}")
    stamp(k, 3)
    stamp_flush(k, 5, P_WS)
    e("s_endpgm")
    k.label("mlp1_end")

LTHRESH = 2.0**80
FINE = '--fine' in sys.argv

def attn(k, DISTQ=OPT('qdist', 5)):
    e = k.e
    SQ, SX, SK, SV, SO = 8, 12, 16, 20, 24
    sOQ, sOQ2, sOX, sOKV, sW4, sW3, sOB, sNV, sHQ = 68, 69, 70, 71, 72, 73, 74, 75, 76
    QS = 28672
    KR, VR = 98304, 0
    vQA, vQB, vLIN, vKE, vKO, vTQ, vTK, vTD = 4, 5, 6, 7, 8, 9, 15, 21
    sTQ, sTK = 77, 78
    RQ, RX = 10, 14
    RK, RV = 22, 26
    LS, NM, QF, SS = 34, 40, 64, 160
    FK, FV = 192, 224
    k.label("attn")
    k.vm = []; k.lg = []
    code_prefetch(k, "attn", "attn_end", 64)
    e(f"s_cmp_ge_u32 s{S_SLOT}, 11"); e("s_cselect_b32 s3, 1, 0")
    e("s_mul_i32 s4, s3, 11"); e(f"s_sub_u32 s4, s{S_SLOT}, s4")
    e(f"s_lshl_b32 s5, s{S_XCD}, 1"); e("s_add_u32 s5, s5, s3")
    e(f"s_and_b32 s{sHQ}, s{S_WAVE}, 1"); e(f"s_lshr_b32 s7, s{S_WAVE}, 1")
    e(f"s_lshl_b32 s{sW4}, s{S_WAVE}, 12")
    e(f"s_mul_i32 s{sW3}, s{S_WAVE}, 3072"); e(f"s_add_u32 s{sW3}, s{sW3}, 16384")
    e(f"s_lshl_b32 s{sOQ}, s5, 9")
    e(f"s_lshl_b32 s3, s{S_WAVE}, 16"); e(f"s_add_u32 s{sOQ}, s{sOQ}, s3")
    e(f"s_add_u32 s{sOQ2}, s{sOQ}, {4*8192-2048}")
    e("s_mul_i32 s6, s4, 12")
    e(f"s_mul_i32 s3, s{S_WAVE}, 3"); e("s_add_u32 s3, s3, s6"); e(f"s_lshl_b32 s{sOX}, s3, 10")
    e(f"s_lshl_b32 s{sOKV}, s5, 19"); e(f"s_add_u32 s{sOKV}, s{sOKV}, {1536*256}"); e(f"s_add_u32 s{sOKV}, s{sOKV}, s{sW4}")
    e("v_and_b32 v1, 63, v0")
    e(f"v_lshlrev_b32 v{vLIN}, 4, v1")
    e("v_lshrrev_b32 v16, 5, v1"); e("v_and_b32 v17, 31, v1")
    e("v_lshlrev_b32 v18, 2, v16"); e("v_xor_b32 v18, v17, v18"); e("v_lshlrev_b32 v18, 4, v18")
    e(f"v_lshl_add_u32 v{vQA}, v16, 13, v18")
    e(f"v_xor_b32 v{vQB}, 128, v{vQA}"); e(f"v_add_u32 v{vQB}, {2*8192-1024}, v{vQB}")
    e("s_waitcnt lgkmcnt(0)")
    if FINE: stamp(k, 3)
    k.srd(SQ, P_WQ, 0, SIZE['wq']); k.srd(SX, P_WS, WS_XN, XN_BYTES)
    def qdma(n):
        slot = (n % 5)*QS; tag = ("q", n)
        L = []
        L.append(([f"s_add_u32 m0, s{sW4}, {slot}"], None))
        for i in range(4):
            v = vQA if i % 2 == 0 else vQB
            so = sOQ if i < 2 else sOQ2
            L.append(([], (lambda v=v, so=so, i=i: k.vmem(f"buffer_load_dwordx4 v{v}, s[{SQ}:{SQ+3}], s{so} offen offset:{1024*i}{NT} lds", tag))))
        L.append(([f"s_add_u32 m0, s{sW3}, {slot}"], None))
        hs = [f"s_add_u32 s{sOQ}, s{sOQ}, {32*8192}", f"s_add_u32 s{sOQ2}, s{sOQ2}, {32*8192}", None]
        for i in range(3):
            L.append(([hs[i]] if hs[i] else [], (lambda i=i: k.vmem(f"buffer_load_dwordx4 v{vLIN}, s[{SX}:{SX+3}], s{sOX} offen offset:{1024*i} lds", tag))))
        L.append(([f"s_add_u32 s{sOX}, s{sOX}, {128*1024}"], None))
        return L
    def kvdma(which, s):
        base = KR + ((s + 3) % 4)*16384 if which == "K" else VR + (s % 4)*16384
        srd = SK if which == "K" else SV
        tag = (which, s)
        L = [([f"s_add_u32 m0, s{sW4}, {base}"], None), ([f"s_add_u32 s3, s{sOKV}, {s*16384}"], None)]
        for i in range(4):
            v = vKE if i % 2 == 0 else vKO
            L.append(([], (lambda v=v, i=i: k.vmem(f"buffer_load_dwordx4 v{v}, s[{srd}:{srd+3}], s3 offen offset:{1024*i}{NT} lds", tag))))
        return L
    def run_now(L):
        for hs, b in L:
            for h in hs: e(h)
            if b: b()
    e(f"s_lshl_b32 s31, s4, 2"); e(f"s_add_u32 s31, s31, s{S_WAVE}")
    e("v_mul_u32_u24 v16, 21846, v1"); e("v_lshrrev_b32 v16, 16, v16")
    e("v_mul_u32_u24 v17, 3, v16"); e("v_sub_u32 v17, v1, v17")
    e("s_mul_i32 s3, s31, 3"); e("v_add_u32 v17, s3, v17")
    e("v_lshrrev_b32 v18, 2, v17"); e("v_lshl_add_u32 v18, v16, 5, v18")
    e("v_and_b32 v19, 3, v17"); e("v_lshlrev_b32 v19, 7, v19"); e(f"v_lshl_add_u32 v{vTQ}, v18, 13, v19")
    e("v_cmp_gt_u32 vcc, 128, v17"); e("v_cmp_gt_u32 s[32:33], 24, v1"); e("s_and_b64 vcc, vcc, s[32:33]")
    e("v_mov_b32 v20, 0x7fffff00"); e(f"v_cndmask_b32 v{vTQ}, v20, v{vTQ}, vcc")
    e("s_mul_i32 s3, s31, 24"); e("v_add_u32 v17, s3, v1"); e(f"v_lshlrev_b32 v{vTK}, 7, v17")
    e("v_cmp_gt_u32 vcc, 1024, v17"); e("s_and_b64 vcc, vcc, s[32:33]"); e(f"v_cndmask_b32 v{vTK}, v20, v{vTK}, vcc")
    e(f"s_lshl_b32 s{sTQ}, s5, 9"); e(f"s_add_u32 s{sTQ}, s{sTQ}, {2*32*8192}")
    e(f"s_lshl_b32 s{sTK}, s5, 19"); e(f"s_add_u32 s{sTK}, s{sTK}, {1536*256}")
    run_now(qdma(0)); run_now(qdma(1))
    k.vmem(f"buffer_load_dword v{vTD}, v{vTQ}, s[{SQ}:{SQ+3}], s{sTQ} offen{NT}", "touch")
    e(f"s_add_u32 s{sTQ}, s{sTQ}, {8*32*8192}")
    k.srd(SK, P_K, 0, SIZE['k']); k.srd(SV, P_V, 0, SIZE['v']); k.srd(SO, P_WS, WS_O, O_BYTES)
    e(f"s_lshl_b32 s3, s5, 1"); e(f"s_add_u32 s3, s3, s{sHQ}"); e("s_lshl_b32 s3, s3, 9")
    e("s_mul_i32 s31, s7, 6"); e("s_add_u32 s31, s31, s6")
    e("s_add_u32 s3, s3, s31"); e(f"s_lshl_b32 s{sOB}, s3, 10")
    e(f"s_sub_u32 s{sNV}, 128, s31")
    e("v_lshrrev_b32 v16, 4, v1"); e("v_and_b32 v17, 15, v1")
    e("v_lshlrev_b32 v18, 1, v16"); e("v_xor_b32 v18, v17, v18"); e("v_lshlrev_b32 v18, 4, v18")
    e(f"v_lshl_add_u32 v{vKE}, v16, 8, v18"); e(f"v_xor_b32 v{vKO}, 128, v{vKE}")
    e("v_and_b32 v18, 7, v17"); e("v_lshlrev_b32 v18, 1, v18"); e("v_xor_b32 v18, v16, v18"); e("v_lshlrev_b32 v18, 4, v18")
    e("v_lshl_add_u32 v18, v17, 8, v18"); e(f"v_add_u32 v18, {KR}, v18")
    for j in range(4): e(f"v_xor_b32 v{RK+j}, {64*j}, v18")
    e("v_lshrrev_b32 v18, 2, v1"); e("v_and_b32 v19, 7, v18"); e("v_lshlrev_b32 v19, 5, v19")
    e("v_lshl_add_u32 v19, v18, 8, v19"); e("v_and_b32 v20, 3, v1"); e("v_lshl_add_u32 v19, v20, 3, v19")
    for et in range(8): e(f"v_xor_b32 v{RV+et}, {32*et}, v19")
    e("v_bfe_u32 v18, v1, 2, 2"); e("v_lshl_add_u32 v19, v16, 3, v18"); e("v_lshlrev_b32 v19, 9, v19")
    e("v_lshl_add_u32 v19, v18, 6, v19"); e("v_lshl_add_u32 v19, v20, 4, v19")
    e(f"s_lshl_b32 s3, s{sHQ}, 8"); e("v_add_u32 v19, s3, v19")
    for j in range(4): e(f"v_xor_b32 v{RQ+j}, {64*j}, v19")
    e("s_mul_i32 s3, s7, 6144"); e("s_add_u32 s3, s3, 16384"); e(f"v_add_u32 v{RX}, s3, v{vLIN}")
    for t in range(6): e(f"v_mov_b32 v{LS+t}, 0")
    def qacc(t, eb): return QF + ((t*4 + (eb >> 1))*2 + (eb & 1))*4
    def QA(buf, eb): return buf*56 + 4*eb
    def QB(buf, t): return buf*56 + 32 + 4*t
    cur = [0]
    def qreads(n):
        buf = n & 1; off = (n % 5)*QS - cur[0]
        assert 0 <= off and off + QS <= 65536
        L = []
        for t in range(6):
            L.append(f"ds_read_b128 {ar(QB(buf,t),4)}, v{RX} offset:{off + 1024*t}")
        for eb in range(8):
            for h in range(2):
                L.append(f"ds_read_b64_tr_b16 {ar(QA(buf,eb)+2*h,2)}, v{RQ+(eb>>1)} offset:{off + h*2048 + (eb&1)*8}")
        return L
    def rebase(n):
        off = (n % 5)*QS - cur[0]
        if 0 <= off and off + QS <= 65536: return []
        d = off; cur[0] += d
        return [f"v_add_u32 v{r}, {d & 0xffffffff}, v{r}" for r in [RQ, RQ+1, RQ+2, RQ+3, RX]]
    for n in range(2, DISTQ): run_now(qdma(n))
    if FINE: stamp(k, 4)
    if FINE: k.wait(vm=["pf"]); stamp(k, 5)
    k.wait(vm=[("q", 0)]);
    if FINE: stamp(k, 6)
    e("s_barrier")
    for t in qreads(0): e(t)
    k.wait(vm=[("q", 1)]); e("s_waitcnt lgkmcnt(0)"); e("s_barrier")
    stamp(k, 1)
    def kread(b, n):
        kb, j = n >> 2, n & 3
        off = ((b//2 + 3) % 4)*16384 + ((b & 1)*2 + kb)*4096
        return lambda: k.dsop(f"ds_read_b128 {ar(FK+4*n,4)}, v{RK+j} offset:{off}", ("k", b, n))
    def vread(b, et, h):
        off = ((b//2) % 4)*16384 + (b & 1)*8192 + h*4096
        return lambda: k.dsop(f"ds_read_b64_tr_b16 {ar(FV+4*et+2*h,2)}, v{RV+et} offset:{off}", ("v", b, et))
    if DISTQ == 5:
        extra = {13: kvdma("K", 0) + kvdma("K", 1), 14: kvdma("K", 2) + kvdma("K", 3), 15: kvdma("V", 0),
                 16: kvdma("V", 1) + kvdma("V", 2), 17: kvdma("V", 3)}
    else:
        assert DISTQ == 4
        extra = {14: kvdma("K", 0) + kvdma("K", 1), 15: kvdma("V", 0) + kvdma("K", 2),
                 16: kvdma("V", 1) + kvdma("K", 3), 17: kvdma("V", 2) + kvdma("V", 3)}
    for n in range(18):
        buf = n & 1
        g = Gaps(k); u = 0
        for eb in range(8):
            for t in range(6):
                c = vr(qacc(t, eb), 4)
                g.mfma(u, f"{MF} {c}, {ar(QA(buf,eb),4)}, {ar(QB(buf,t),4)}, {c if n else 0}"); u += 1
        L = (qdma(n + DISTQ) if n + DISTQ < 18 else []) + extra.get(n, [])
        if n == 1: L.append(([], lambda: k.vmem(f"buffer_load_dword v{vTD}, v{vTQ}, s[{SQ}:{SQ+3}], s{sTQ} offen{NT}", "touch")))
        if n == 5: L.append(([], lambda: k.vmem(f"buffer_load_dword v{vTD}, v{vTK}, s[{SK}:{SK+3}], s{sTK} offen{NT}", "touch")))
        if n == 8: L.append(([], lambda: k.vmem(f"buffer_load_dword v{vTD}, v{vTK}, s[{SV}:{SV+3}], s{sTK} offen{NT}", "touch")))
        nd = sum(1 for hs, b in L if b)
        sp = max(3, min(6, 44 // max(nd, 1)))
        dg = [3 + sp*i for i in range(nd)]
        assert not dg or dg[-1] <= 45, (n, dg)
        di = 0; hp = 0
        for hs, b in L:
            for h in hs:
                g.head(hp, h); hp += 1
            if b:
                assert hp <= dg[di], (n, hp, dg, di)
                g.body(dg[di], b); hp = dg[di] + 1; di += 1
        rg = [x for x in range(48) if x not in dg]
        if n < 17:
            for i, t in enumerate(qreads(n + 1)): g.body(rg[i], t)
            if n < 16:
                for i, t in enumerate(rebase(n + 2)): g.body(rg[22 + i], t)
        if n < 16:
            g.head(46, (lambda n=n: (k.wait(vm=[("q", n + 2)]), e("s_waitcnt lgkmcnt(0)"))))
            g.head(47, "s_barrier")
        elif n == 16:
            g.head(46, (lambda: (k.wait(vm=[("K", 0)]), e("s_waitcnt lgkmcnt(0)"))))
            g.head(47, "s_barrier")
        else:
            for i in range(4): g.body(rg[30 + 2*i], kread(0, i))
        g.emit(0, 48)
    stamp(k, 2)
    for t in range(6):
        for j in range(4):
            src = QF + (t*4 + j)*8; dst = QF + (t*4 + j)*4
            for p in range(4): e(f"v_cvt_pk_bf16_f32 v{dst+p}, v{src+2*p}, v{src+2*p+1}")
    k.wait(vm=[("K", 1), ("V", 0)]); e("s_barrier")
    def Q(t, j): return QF + (t*4 + j)*4
    def S(b, t): return SS + (b & 1)*48 + t*8
    def O(t, et): return ((t*4 + (et >> 1))*2 + (et & 1))*4
    g = Gaps(k)
    U0 = 44
    for b in range(16):
        base = 96*b
        for n in range(8):
            kb, j = n >> 2, n & 3
            for t in range(6):
                d = vr(S(b, t) + 4*kb, 4)
                c = d if j else (vr(NM + 4*t, 4) if b else "0")
                g.mfma(base + 6*n + t, f"{MF} {d}, {ar(FK+4*n,4)}, {vr(Q(t,j),4)}, {c}")
            g.head(base + 6*n - 1, (lambda b=b, n=n: k.wait(lg=[("k", b, n)])))
            if not (b == 0 and n < 4): g.body(base + 4*n - 13, kread(b, n))
        pb = base + 96 + 48
        for et in range(8):
            for t in range(6):
                d = ar(O(t, et), 4)
                g.mfma(pb + 6*et + t, f"{MF} {d}, {ar(FV+4*et,4)}, {vr(S(b,t),4)}, {d if b else 0}")
            g.head(pb + 6*et - 1, (lambda b=b, et=et: k.wait(lg=[("v", b, et)])))
            for h in range(2): g.body(base + 96 + 4*(8 + 2*et + h) - 13, vread(b, et, h))
    for b in range(16):
        base = 96*b + U0
        for t in range(6):
            s = S(b, t)
            for r in range(8):
                m = 8*t + r
                ue, ua = base + 2*m, base + 2*m + 1
                if b == 0: ue, ua = max(ue, 48), max(ua, 48)
                g.body(ue, f"v_exp_f32 v{s+r}, v{s+r}")
                g.body(ua, f"v_add_f32 v{LS+t}, v{LS+t}, v{s+r}")
        for t in range(6):
            s = S(b, t)
            for c in range(4):
                g.body(base + 5 + 4*(4*t + c), f"v_cvt_pk_bf16_f32 v{s+c}, v{s+2*c}, v{s+2*c+1}")
    for s in range(7):
        ub = 96*(2*s + 2) + 95
        need = [("V", s + 1)] + ([("K", s + 2)] if s + 2 < 8 else [])
        g.head(ub - 1, (lambda need=need: k.wait(vm=need)))
        g.head(ub - 1, "s_barrier")
        if s + 4 < 8:
            L = kvdma("K", s + 4) + kvdma("V", s + 4)
            for i, (hs, bd) in enumerate(L):
                uu = ub + 1 + 8*i
                for h in hs: g.head(uu, h)
                if bd: g.b.setdefault(uu, []).insert(0, bd)
    PF = OPT("pf", 1)
    if PF:
        vPF = vTQ
        k.srd(SQ, P_W2, 0, SIZE['w2']); k.srd(SX, P_WO, 0, SIZE['wo'])
        e(f"s_lshl_b32 s3, s2, 15"); e(f"v_lshlrev_b32 v{vPF}, 7, v0"); e(f"v_add_u32 v{vPF}, s3, v{vPF}")
        SW1 = 64
        k.srd(SW1, P_W1, R2*9216, SIZE['w1'] - R2*9216)
        nw1 = -(-(2048 - R2)*72 // 45056)
        per = [int(x) for x in OPTS("pfper", "1,3,5,7,10,12").split(",")]
        assert len(per) == nw1 + 5
        seq = [(SW1, r) for r in range(nw1)] + [(SX, 0)] + [(SQ, r) for r in range(4)]
        cur_r = 0
        for (srd, r), p in zip(seq, per):
            if r != cur_r:
                g.body(96*p - 4, f"v_add_u32 v{vPF}, {((r - cur_r)*45056*128) & 0xffffffff}, v{vPF}"); cur_r = r
            g.b.setdefault(96*p + 2, []).insert(0, (lambda srd=srd: k.vmem(f"buffer_load_dword v{vTD}, v{vPF}, s[{srd}:{srd+3}], 0 offen", "touch")))
    g.emit(-1, 48)
    T = 16
    for t in range(6):
        s = S(0, t); m = NM + 4*t
        e(f"v_max3_f32 v{m}, v{s}, v{s+1}, v{s+2}"); e(f"v_max3_f32 v{m+1}, v{s+3}, v{s+4}, v{s+5}")
        e(f"v_max3_f32 v{m}, v{m}, v{s+6}, v{s+7}")
    for t in range(6):
        m = NM + 4*t
        e(f"v_max_f32 v{m}, v{m}, v{m+1}")
    for sw in ["v_permlane32_swap_b32", "v_permlane16_swap_b32"]:
        for t in range(6): e(f"v_mov_b32 v{NM+4*t+1}, v{NM+4*t}")
        for t in range(6): e(f"{sw} v{NM+4*t}, v{NM+4*t+1}")
        for t in range(6): e(f"v_max_f32 v{NM+4*t}, v{NM+4*t}, v{NM+4*t+1}")
    for t in range(6):
        m = NM + 4*t
        for r in (1, 2, 3, 0): e(f"v_mul_f32 v{m+r}, -1.0, v{m}")
    for t in range(6):
        s = S(0, t)
        for r in range(0, 8, 2): e(f"v_pk_add_f32 {vr(s+r,2)}, {vr(s+r,2)}, {vr(NM+4*t,2)}")
    g.emit(48, 96)
    if not FINE: stamp(k, 3)
    g.emit(96, 96*16)
    if not FINE: stamp(k, 4)
    g.emit(96*16, 96*17)
    if not FINE: stamp(k, 5)
    k.label("attn_fin")
    for sw in ["v_permlane32_swap_b32", "v_permlane16_swap_b32"]:
        for t in range(6): e(f"v_mov_b32 v{NM+t}, v{LS+t}")
        for t in range(6): e(f"{sw} v{LS+t}, v{NM+t}")
        for t in range(6): e(f"v_add_f32 v{LS+t}, v{LS+t}, v{NM+t}")
    for t in range(6): e(f"v_rcp_f32 v{NM+2*t}, v{LS+t}")
    for t in range(6):
        if t >= 2:
            e(f"s_cmp_le_u32 s{sNV}, {t}"); e(f"s_cbranch_scc1 {k.L('attn_done')}")
        for j in range(4):
            T = SS + ((t*4 + j) % 8)*8
            for r in range(8): e(f"v_accvgpr_read_b32 v{T+r}, a{O(t,2*j)+r}")
            for r in range(0, 8, 2): e(f"v_pk_mul_f32 {vr(T+r,2)}, {vr(T+r,2)}, {vr(NM+2*t,2)} op_sel_hi:[1,0]")
            for p in range(4): e(f"v_cvt_pk_bf16_f32 v{T+p}, v{T+2*p}, v{T+2*p+1}")
            e(f"s_add_u32 s3, s{sOB}, {j*131072 + t*1024}")
            k.vmem(f"buffer_store_dwordx4 {vr(T,4)}, v{vLIN}, s[{SO}:{SO+3}], s3 offen{FL[OPT('stf', 2)]}")
    k.label("attn_done")
    if not FINE: stamp(k, 6)
    stamp_flush(k, 8, P_WS)
    e("s_endpgm")
    k.label("attn_end")

def k1():
    k = EK("k1_kernel", 256, 256, 163840, vgpr=512, sgpr=102, accum=256)
    k.loops = []
    e = k.e
    e("s_cmp_ge_u32 s2, 256"); e(f"s_cbranch_scc1 {k.L('exit')}")
    stamp(k, 0)
    load_args(k)
    e(f"s_and_b32 s{S_XCD}, s2, 7"); e(f"s_lshr_b32 s{S_SLOT}, s2, 3")
    e("v_lshrrev_b32 v1, 6, v0"); e("s_nop 0"); e(f"v_readfirstlane_b32 s{S_WAVE}, v1")
    e(f"s_cmp_lt_u32 s{S_SLOT}, 22"); e(f"s_cbranch_scc1 {k.L('exit' if '--noattn' in sys.argv else 'attn')}")
    e(f"s_cmp_lt_u32 s{S_SLOT}, 31"); e(f"s_cbranch_scc1 {k.L('mlp1')}")
    e("v_and_b32 v1, 63, v0"); e("v_mul_u32_u24 v2, 7282, v1"); e("v_lshrrev_b32 v2, 16, v2")
    e("v_mul_u32_u24 v3, 9, v2"); e("v_sub_u32 v3, v1, v3"); e("v_min_u32 v2, 6, v2")
    e(f"s_mul_i32 s3, s{S_WAVE}, 7"); e("v_add_u32 v2, s3, v2"); e("v_mul_u32_u24 v2, 9216, v2"); e("v_lshl_add_u32 v2, v3, 7, v2")
    e(f"s_mul_i32 s3, s{S_XCD}, 1152"); e(f"s_add_u32 s3, s3, {R1*9216}"); e("v_add_u32 v2, s3, v2")
    e(f"s_mov_b32 s4, {-(-(R2-R1)//28)}")
    e("s_waitcnt lgkmcnt(0)")
    k.srd(8, P_W1, 0, SIZE['w1'])
    k.label("pfloop")
    e("buffer_load_dword v4, v2, s[8:11], 0 offen")
    e(f"v_add_u32 v2, {28*9216}, v2")
    e("s_waitcnt vmcnt(1)")
    e("s_sub_u32 s4, s4, 1"); e("s_cmp_lg_u32 s4, 0"); e(f"s_cbranch_scc1 {k.L('pfloop')}")
    k.label("exit"); e("s_endpgm")
    e(".p2align 6")
    mlp1(k)
    e(".p2align 6")
    attn(k)
    return k
```

```python
from common import *
from k1 import Gaps, MF, load_args, code_prefetch, P_X, P_WO, P_W2, P_B2, P_OUT, P_DBG, P_WS

NB0 = OPT("nb0", 36)
ACC = 112
def acc(db, sb): return ACC + (sb >> 1)*72 + db*8 + (sb & 1)*4
S_WAVE, S_ROLE, S_SB, S_DB, S_RH, S_KP, S_TILE = 28, 29, 30, 31, 32, 33, 34
SA, SB_, SP, SX, SO = 8, 12, 16, 20, 24
sOA, sOB, sM0A, sM0B, sCNT, sSZA, sSZB = 68, 69, 70, 71, 72, 73, 74
vLIN = 4
OOB = 0x7fffff00

def mainloop(k, role):
    e = k.e
    isA = role == "A"
    vD = 5
    vP = 10
    RS = 12
    RP = 14
    k.label("role" + role)
    k.vm = []; k.lg = []
    code_prefetch(k, "role" + role, "end", 64)
    e("v_and_b32 v1, 63, v0"); e(f"v_lshlrev_b32 v{vLIN}, 4, v1")
    if isA:
        e(f"s_lshl_b32 s3, s{S_ROLE}, 6"); e(f"s_mov_b32 s{sCNT}, 16")
    else:
        e(f"s_cmp_eq_u32 s{S_ROLE}, 2"); e(f"s_cselect_b32 s3, 0, {2*NB0}"); e(f"s_cselect_b32 s{sCNT}, {NB0//2}, {(72-NB0)//2}")
    e(f"s_add_u32 s3, s3, s{S_KP}")
    e(f"s_mul_i32 s{sM0A}, s{S_KP}, 10240"); e(f"s_mul_i32 s4, s{S_RH}, 5120"); e(f"s_add_u32 s{sM0A}, s{sM0A}, s4")
    e("v_mov_b32 v20, 0x7fffff00")
    if isA:
        e(f"s_mul_i32 s{sOA}, s3, {32*1152}"); e(f"s_mul_i32 s4, s{S_RH}, {16*1152}"); e(f"s_add_u32 s{sOA}, s{sOA}, s4")
        e(f"s_mul_i32 s4, s{S_DB}, 288"); e(f"s_add_u32 s{sOA}, s{sOA}, s4")
        for i in range(5):
            e(f"v_add_u32 v16, {64*i}, v1")
            e("v_mul_u32_u24 v17, 3641, v16"); e("v_lshrrev_b32 v17, 16, v17")
            e("v_mul_u32_u24 v18, 18, v17"); e("v_sub_u32 v18, v16, v18")
            e("v_mul_u32_u24 v17, 1152, v17"); e("v_lshl_add_u32 v17, v18, 4, v17")
            if i: e(f"v_subrev_u32 v17, {1024*(i & 3)}, v17") if i < 4 else None
            if i < 4: e(f"v_mov_b32 v{vD+i}, v17")
            else:
                e("v_cmp_gt_u32 vcc, 32, v1"); e(f"v_cndmask_b32 v{vD+i}, v20, v17, vcc")
        stepA = 64*1152
        e(f"s_lshl_b32 s4, s3, 7"); e(f"s_lshl_b32 s5, s{S_SB}, 3"); e("s_add_u32 s4, s4, s5")
        e(f"s_lshl_b32 s5, s{S_RH}, 2"); e("s_add_u32 s4, s4, s5"); e(f"s_lshl_b32 s{sOB}, s4, 10")
        e(f"s_lshl_b32 s4, s{S_KP}, 11"); e(f"v_add_u32 v{vP}, s4, v{vLIN}"); e(f"v_xor_b32 v{vP+1}, 2048, v{vP}")
        stepB = 2*128*1024
        e("v_lshrrev_b32 v16, 2, v1"); e("v_mul_u32_u24 v16, 288, v16"); e("v_and_b32 v17, 3, v1"); e("v_lshl_add_u32 v16, v17, 3, v16")
        e(f"s_mul_i32 s4, s{S_KP}, 10240"); e(f"v_add_u32 v{RS}, s4, v16"); e(f"v_add_u32 v{RS+1}, 61440, v{RS}")
    else:
        e("s_mul_i32 s4, s3, 36"); e(f"s_mul_i32 s5, s{S_DB}, 9"); e("s_add_u32 s4, s4, s5")
        e(f"s_mul_i32 s5, s{S_RH}, 5"); e("s_add_u32 s4, s4, s5"); e(f"s_lshl_b32 s{sOA}, s4, 10")
        e(f"s_mov_b32 s5, {OOB}"); e(f"s_cmp_eq_u32 s{S_RH}, 0"); e(f"s_cselect_b32 s4, 4096, s5"); e(f"v_add_u32 v{vD+1}, s4, v{vLIN}")
        stepA = 2*36*1024
        e(f"s_lshl_b32 s{sOB}, s3, 17"); e(f"s_lshl_b32 s4, s{S_SB}, 8"); e(f"s_add_u32 s{sOB}, s{sOB}, s4")
        e(f"s_lshl_b32 s4, s{S_RH}, 7"); e(f"s_add_u32 s{sOB}, s{sOB}, s4")
        e("v_lshrrev_b32 v16, 3, v1"); e("v_and_b32 v17, 6, v16"); e("v_and_b32 v18, 7, v1"); e("v_xor_b32 v17, v17, v18")
        e("v_lshlrev_b32 v17, 4, v17"); e(f"v_lshl_add_u32 v{vP}, v16, 12, v17")
        e(f"v_add_u32 v{vP+1}, {8*4096-1024}, v{vP}")
        stepB = 64*4096
        e(f"s_lshl_b32 s{sM0B}, s{S_WAVE}, 12"); e(f"s_add_u32 s{sM0B}, s{sM0B}, 81920")
        e(f"s_mul_i32 s4, s{S_KP}, 10240"); e(f"v_add_u32 v{RS}, s4, v{vLIN}"); e(f"v_add_u32 v{RS+1}, 61440, v{RS}")
        e("v_lshrrev_b32 v16, 2, v1"); e("v_bfe_u32 v17, v16, 1, 2"); e(f"s_lshl_b32 s4, s{S_KP}, 1"); e("v_xor_b32 v17, s4, v17")
        e("v_lshlrev_b32 v17, 5, v17"); e("v_lshl_add_u32 v17, v16, 7, v17"); e("v_and_b32 v18, 3, v1"); e("v_lshl_add_u32 v17, v18, 3, v17")
        e(f"v_add_u32 v17, s{sM0B}, v17")
        for sb in range(4): e(f"v_xor_b32 v{RP+sb}, {32*sb}, v17")
    e("s_waitcnt lgkmcnt(0)")
    if isA:
        k.srd(SA, P_WO, 0, SIZE['wo']); k.srd(SB_, P_WS, WS_O, O_BYTES)
    else:
        k.srd(SA, P_WS, WS_U, U_BYTES); k.srd(SB_, P_W2, 0, SIZE['w2'])
        k.srd(SP, P_B2, 0, SIZE['b2'])
        e(f"s_lshl_b32 s4, s{S_KP}, 2"); e(f"s_or_b32 s4, s4, s{S_ROLE}"); e("s_cmp_eq_u32 s4, 2"); e(f"s_cselect_b32 s{SP+2}, s{SP+2}, 0")
        e(f"s_lshl_b32 s4, s{S_SB}, 8"); e(f"s_lshl_b32 s5, s{S_RH}, 7"); e("s_add_u32 s4, s4, s5")
        e("v_and_b32 v28, 15, v1"); e("v_lshlrev_b32 v28, 1, v28")
        for sb in range(4):
            k.vmem(f"buffer_load_ushort v{24+sb}, v28, s[{SP}:{SP+3}], s4 offen offset:{32*sb}", "b2")
    def FA(buf, db): return buf*36 + 4*db
    def FB(n, sb): return 72 + (n % (4 if isA else 2))*16 + 4*sb
    def dmaA(n):
        slot = (n % 4)*20480
        L = [([f"s_add_u32 m0, s{sM0A}, {slot}"], None)]
        for i in range(5):
            if isA: v = vD + i
            else: v = vLIN if i < 4 else vD + 1
            hs = [f"s_add_u32 m0, s{sM0A}, {slot+4096}"] if i == 4 else []
            L.append((hs, (lambda v=v, i=i: k.vmem(f"buffer_load_dwordx4 v{v}, s[{SA}:{SA+3}], s{sOA} offen offset:{1024*(i&3)} lds", ("A", n)))))
        L.append(([f"s_add_u32 s{sOA}, s{sOA}, {stepA}"], None))
        return L
    def dmaB(n):
        L = []
        if isA:
            for sb in range(4):
                L.append(([], (lambda sb=sb: k.vmem(f"buffer_load_dwordx4 {ar(FB(n,sb),4)}, v{vP+(sb>>1)}, s[{SB_}:{SB_+3}], s{sOB} offen offset:{1024*(sb&1)}", ("B", n)))))
            L.append(([f"s_add_u32 s{sOB}, s{sOB}, {stepB}"], None))
        else:
            slot = (n % 4)*16384
            L.append(([f"s_add_u32 m0, s{sM0B}, {slot}"], None))
            for i in range(4):
                hs = [f"s_add_u32 s{sOB}, s{sOB}, {16*4096-2048}"] if i == 2 else []
                L.append((hs, (lambda i=i: k.vmem(f"buffer_load_dwordx4 v{vP+(i&1)}, s[{SB_}:{SB_+3}], s{sOB} offen offset:{1024*i} lds", ("B", n)))))
            L.append(([f"s_add_u32 s{sOB}, s{sOB}, {stepB-(16*4096-2048)}"], None))
        return L
    def run_now(L):
        for hs, b in L:
            for h in hs: e(h)
            if b: b()
    def reads(n):
        buf = n & 1; sl = n % 4
        r = RS + (1 if sl == 3 else 0); off = 0 if sl == 3 else sl*20480
        L = []
        if isA:
            for db in range(9):
                for h in range(2):
                    L.append(f"ds_read_b64_tr_b16 {ar(FA(buf,db)+2*h,2)}, v{r} offset:{off + db*32 + h*5120}")
        else:
            for sb in range(4):
                for h in range(2):
                    L.append(f"ds_read_b64_tr_b16 {ar(FB(n,sb)+2*h,2)}, v{RP+sb} offset:{sl*16384 + h*2048}")
            for db in range(9):
                L.append(f"ds_read_b128 {ar(FA(buf,db),4)}, v{r} offset:{off + db*1024}")
        return L
    DB = 3 if isA else 4
    if isA:
        run_now(dmaA(0))
        for n in range(3): run_now(dmaB(n)); run_now(dmaA(n + 1))
    else:
        for n in range(4): run_now(dmaB(n)); run_now(dmaA(n))
    if isA:
        for r in range(144): e(f"v_mov_b32 v{ACC+r}, 0")
    else:
        k.wait(vm=["b2"])
        for sb in range(4): e(f"v_lshlrev_b32 v{24+sb}, 16, v{24+sb}")
        for db in range(9):
            for sb in range(4):
                for r in range(4): e(f"v_mov_b32 v{acc(db,sb)+r}, v{24+sb}")
    k.wait(vm=[("A", 0)]); e("s_barrier")
    for t in reads(0): e(t)
    k.wait(vm=[("A", 1)]); e("s_waitcnt lgkmcnt(0)"); e("s_barrier")
    stamp(k, 1)
    e(".p2align 6")
    k.label(f"loop{role}")
    body0 = len(k.lines)
    for n in range(4):
        buf = n & 1
        g = Gaps(k); u = 0
        for db in range(9):
            for sb in range(4):
                c = vr(acc(db, sb), 4)
                g.mfma(u, f"{MF} {c}, {ar(FA(buf,db),4)}, {ar(FB(n,sb),4)}, {c}"); u += 1
        L = dmaB(n + DB) + dmaA(n + 4)
        dg = [2 + 4*i for i in range(9)]
        pre = []
        if n % 2 == 0:
            pre = [f"s_cmp_le_u32 s{sCNT}, 2", f"s_cselect_b32 s{SA+2}, 0, s{SA+2}"]
            if not isA: pre.append(f"s_cselect_b32 s{SB_+2}, 0, s{SB_+2}")
        elif isA:
            pre = [f"s_cmp_le_u32 s{sCNT}, 2", f"s_cselect_b32 s{SB_+2}, 0, s{SB_+2}"]
        hp = 0
        for h in pre:
            g.head(min(hp, 1), h); hp += 1
        hp = min(hp, 1)
        di = 0
        for hs, b in L:
            for h in hs:
                g.head(hp, h); hp += 1
            if b:
                assert hp <= dg[di], (n, hp, dg[di])
                g.body(dg[di], b); hp = dg[di] + 1; di += 1
        rg = [x for x in range(36) if x not in dg]
        for i, t in enumerate(reads(n + 1)): g.body(rg[i], t)
        if n % 2 == 1:
            g.head(28, f"s_sub_u32 s{sCNT}, s{sCNT}, 1")
        g.head(35, "s_waitcnt vmcnt(18) lgkmcnt(0)")
        g.head(35, "s_barrier")
        if n % 2 == 1:
            g.head(35, f"s_cmp_lg_u32 s{sCNT}, 0")
            g.head(35, f"s_cbranch_scc0 {k.L('done'+role)}" if n == 1 else f"s_cbranch_scc1 {k.L('loop'+role)}")
        g.emit(0, 36)
    k.loops.append((body0, len(k.lines)))
    k.label("done" + role)
    k.vm = []; k.lg = []
    e(f"s_branch {k.L('epi')}")
    k.label("role" + role + "_end")

def k2():
    k = EK("k2_kernel", 256, 256, 147456, vgpr=512, sgpr=102, accum=256)
    k.loops = []
    e = k.e
    e("s_cmp_ge_u32 s2, 256"); e(f"s_cbranch_scc1 {k.L('exit')}")
    stamp(k, 0)
    load_args(k)
    e("v_lshrrev_b32 v1, 6, v0"); e("s_nop 0"); e(f"v_readfirstlane_b32 s{S_WAVE}, v1")
    e(f"s_bfe_u32 s{S_ROLE}, s2, 0x20001")
    e("s_and_b32 s3, s2, 1"); e("s_lshl_b32 s3, s3, 3"); e("s_lshr_b32 s4, s2, 5"); e(f"s_add_u32 s{S_SB}, s3, s4")
    e(f"s_bfe_u32 s{S_DB}, s2, 0x20003")
    e(f"s_lshl_b32 s{S_TILE}, s{S_SB}, 2"); e(f"s_add_u32 s{S_TILE}, s{S_TILE}, s{S_DB}")
    e(f"s_and_b32 s{S_RH}, s{S_WAVE}, 1"); e(f"s_lshr_b32 s{S_KP}, s{S_WAVE}, 1")
    e(f"s_cmp_lt_u32 s{S_ROLE}, 2"); e(f"s_cbranch_scc1 {k.L('roleA')}")
    e(f"s_branch {k.L('roleB')}")
    k.label("exit"); e("s_endpgm")
    e(".p2align 6")
    mainloop(k, "A")
    e(".p2align 6")
    mainloop(k, "B")
    k.label("epi")
    stamp(k, 2)
    T = 40
    PITCH = 304
    e("s_nop 7")
    e("s_waitcnt vmcnt(0)"); e("s_barrier")
    e(f"s_mul_i32 s3, s{S_WAVE}, 18432"); e(f"v_add_u32 v5, s3, v{vLIN}")
    e(f"s_xor_b32 s4, s{S_WAVE}, 2"); e(f"s_mul_i32 s3, s4, 18432"); e(f"v_add_u32 v6, s3, v{vLIN}")
    for i in range(18): e(f"ds_write_b128 v5, {vr(ACC+72+4*i,4)} offset:{1024*i}")
    k.srd(SP, P_WS, WS_P, P_BYTES); k.srd(SA, P_WS, WS_F, F_BYTES)
    k.srd(SX, P_X, 0, SIZE['x']); k.srd(SO, P_OUT, 0, SIZE['out'])
    e(f"s_lshl_b32 s3, s{S_RH}, 1"); e(f"s_add_u32 s3, s3, s{S_KP}")
    e(f"s_lshl_b32 s5, s{S_TILE}, 2"); e("s_add_u32 s3, s3, s5"); e("s_lshl_b32 s3, s3, 2"); e(f"s_add_u32 s3, s3, s{S_ROLE}")
    e("s_mul_i32 s7, s3, 9216")
    e("s_lshr_b32 s4, s3, 2"); e("s_lshl_b32 s4, s4, 7"); e(f"s_lshl_b32 s3, s{S_ROLE}, 2"); e("s_add_u32 s75, s4, s3")
    e(f"s_add_u32 s5, s5, s{S_ROLE}"); e("s_lshl_b32 s6, s5, 7"); e(f"s_mul_i32 s5, s5, {4*9216}")
    e(f"s_lshl_b32 s3, s{S_WAVE}, 10"); e("s_add_u32 s5, s5, s3")
    e(f"s_mul_i32 s3, s{S_WAVE}, {32*PITCH}"); e("s_add_u32 s3, s3, 73728")
    e("v_and_b32 v16, 15, v1"); e(f"v_mul_u32_u24 v16, {PITCH}, v16"); e("v_lshrrev_b32 v17, 4, v1")
    e("v_lshl_add_u32 v16, v17, 3, v16"); e("v_add_u32 v7, s3, v16")
    RB = 20
    for i in range(9):
        e(f"v_add_u32 v16, {64*i}, v1")
        e("v_mul_u32_u24 v17, 3641, v16"); e("v_lshrrev_b32 v17, 16, v17")
        e(f"v_lshlrev_b32 v16, 4, v16"); e(f"v_lshl_add_u32 v16, v17, 4, v16")
        e(f"v_add_u32 v{RB+i}, s3, v16")
    XA = 8
    e(f"s_lshl_b32 s3, s{S_SB}, 2"); e(f"s_add_u32 s3, s3, s{S_ROLE}"); e(f"s_mul_i32 s3, s3, {32*1152}")
    e(f"s_mul_i32 s4, s{S_DB}, 288"); e("s_add_u32 s35, s3, s4")
    for j in range(3):
        e(f"v_add_u32 v16, {256*j}, v0")
        e("v_mul_u32_u24 v17, 3641, v16"); e("v_lshrrev_b32 v17, 16, v17")
        e(f"v_mul_u32_u24 v17, {1152-288}, v17"); e(f"v_lshl_add_u32 v{XA+j}, v16, 4, v17")
    e("s_waitcnt lgkmcnt(0)"); e("s_barrier")
    for i in range(18): e(f"ds_read_b128 {vr(T+4*i,4)}, v6 offset:{1024*i}")
    k.lg = [("r", i) for i in range(18)]
    for db in range(9):
        k.wait(lg=[("r", 2*db + 1)])
        a = ACC + 8*db; t = T + 8*db
        for r in range(0, 8, 2): e(f"v_pk_add_f32 {vr(a+r,2)}, {vr(a+r,2)}, {vr(t+r,2)}")
        for p in range(4): e(f"v_cvt_pk_bf16_f32 v{a+p}, v{a+2*p}, v{a+2*p+1}")
        for sb in range(2):
            k.dsop(f"ds_write_b64 v7, {vr(a+2*sb,2)} offset:{sb*16*PITCH + db*32}", "w")
    e("s_waitcnt lgkmcnt(0)"); k.lg = []
    for i in range(9): k.dsop(f"ds_read_b128 {vr(T+4*i,4)}, v{RB+i}", ("rb", i))
    for i in range(9):
        k.wait(lg=[("rb", i)])
        if i % 4 == 0 and i: e("s_add_u32 s7, s7, 4096")
        e(f"buffer_store_dwordx4 {vr(T+4*i,4)}, v{vLIN}, s[{SP}:{SP+3}], s7 offen offset:{1024*(i&3)} sc1")
    stamp(k, 3)
    e("v_mov_b32 v16, 1"); e("v_mov_b32 v18, 0")
    e("s_waitcnt vmcnt(0)")
    e("s_mov_b64 exec, 1")
    e(f"buffer_store_dword v16, v18, s[{SA}:{SA+3}], s75 offen sc1")
    e("s_mov_b64 exec, -1")
    e(f"s_cmp_lg_u32 s{S_WAVE}, 0"); e(f"s_cbranch_scc1 {k.L('nosig')}")
    e(f"buffer_load_dwordx4 {vr(120,4)}, v{XA+2}, s[{SX}:{SX+3}], s35 offen")
    k.label("nosig")
    for j in range(2): e(f"buffer_load_dwordx4 {vr(112+4*j,4)}, v{XA+j}, s[{SX}:{SX+3}], s35 offen")
    e("s_mov_b32 s7, 0x100000")
    e("s_mov_b32 s4, 0xffff0000")
    e(f"v_mov_b32 v12, {fhex(-LOG2E)}"); e("v_mov_b32 v14, 1.0")
    k.label("poll")
    e(f"buffer_load_dwordx4 v[20:23], v18, s[{SA}:{SA+3}], s6 offen sc1")
    e("s_waitcnt vmcnt(0)")
    e("v_and_b32 v20, v20, v21"); e("v_and_b32 v22, v22, v23"); e("v_and_b32 v20, v20, v22")
    e("v_readfirstlane_b32 s3, v20")
    e("s_cmp_eq_u32 s3, 1"); e(f"s_cbranch_scc1 {k.L('ready')}")
    e("s_sleep 1"); e("s_sub_u32 s7, s7, 1"); e("s_cmp_lg_u32 s7, 0"); e(f"s_cbranch_scc1 {k.L('poll')}")
    k.label("ready")
    stamp(k, 4)
    k.vm = []
    def PR(j, r): return 128 + 16*j + 4*r
    def ploads(j):
        for r in (2, 3, 0, 1):
            e(f"s_add_u32 s3, s5, {r*9216 + j*4096}")
            k.vmem(f"buffer_load_dwordx4 {vr(PR(j,r),4)}, v{vLIN}, s[{SP}:{SP+3}], s3 offen sc1", ("p", j))
    def unpack(dst, src):
        for p in range(4):
            e(f"v_lshlrev_b32 v{dst+2*p}, 16, v{src+p}"); e(f"v_and_b32 v{dst+2*p+1}, s4, v{src+p}")
    def fin(j):
        Y, U1, U2 = 40 + 24*j, 48 + 24*j, 56 + 24*j
        unpack(Y, PR(j, 2)); unpack(U1, PR(j, 3))
        for r in range(0, 8, 2): e(f"v_pk_add_f32 {vr(Y+r,2)}, {vr(Y+r,2)}, {vr(U1+r,2)}")
        for r in range(0, 8, 2): e(f"v_pk_mul_f32 {vr(U1+r,2)}, {vr(Y+r,2)}, v[12:13] op_sel_hi:[1,0]")
        for r in range(8): e(f"v_exp_f32 v{U1+r}, v{U1+r}")
        unpack(U2, PR(j, 0))
        for r in range(0, 8, 2): e(f"v_pk_add_f32 {vr(U1+r,2)}, {vr(U1+r,2)}, v[14:15] op_sel_hi:[1,0]")
        for r in range(8): e(f"v_rcp_f32 v{U1+r}, v{U1+r}")
        for r in range(0, 8, 2): e(f"v_pk_mul_f32 {vr(Y+r,2)}, {vr(Y+r,2)}, {vr(U1+r,2)}")
        unpack(U1, PR(j, 1))
        for r in range(0, 8, 2): e(f"v_pk_add_f32 {vr(U2+r,2)}, {vr(U2+r,2)}, {vr(U1+r,2)}")
        unpack(U1, 112 + 4*j)
        for r in range(0, 8, 2): e(f"v_pk_fma_f32 {vr(Y+r,2)}, {vr(Y+r,2)}, {vr(U2+r,2)}, {vr(U1+r,2)}")
        for p in range(4): e(f"v_cvt_pk_bf16_f32 v{Y+p}, v{Y+2*p}, v{Y+2*p+1}")
        e(f"buffer_store_dwordx4 {vr(Y,4)}, v{XA+j}, s[{SO}:{SO+3}], s35 offen")
    e(f"s_cmp_lg_u32 s{S_WAVE}, 0"); e(f"s_cbranch_scc1 {k.L('no3')}")
    ploads(2)
    k.label("no3")
    k.vm = []
    ploads(0); ploads(1)
    k.wait(vm=[("p", 0)]); fin(0)
    e("s_waitcnt vmcnt(1)"); fin(1)
    e(f"s_cmp_lg_u32 s{S_WAVE}, 0"); e(f"s_cbranch_scc1 {k.L('fin')}")
    fin(2)
    k.label("fin")
    stamp(k, 5)
    stamp_flush(k, 7, P_WS, 1)
    e("s_endpgm")
    k.label("end")
    return k
```

```python
from asmlib import *
import math
LOG2E = 1.4426950408889634
QSCALE = 128**-0.5 * LOG2E
WS_XN = 0
XN_BYTES = 18*128*1024
WS_H = WS_XN + XN_BYTES
H_BYTES = 2048*576*2
WS_O = WS_H + H_BYTES
O_BYTES = 128*128*1024
WS_U = WS_O + O_BYTES
U_BYTES = 144*36*1024
WS_P = WS_U + U_BYTES
P_BYTES = 64*16*9216

WS_F = WS_P + P_BYTES
F_BYTES = 256*128

class EK(Kernel):
    def __init__(self, *a, **k):
        super().__init__(*a, **k)
        self.vm = []; self.lg = []
    def vmem(self, text, tag=None):
        self.e(text); self.vm.append(tag)
        assert len(self.vm) <= 63 or True
    def dsop(self, text, tag=None):
        self.e(text); self.lg.append(tag)
    def _cnt(self, q, tags):
        idx = -1
        for i, t in enumerate(q):
            if t in tags: idx = i
        if idx < 0: return None
        n = len(q) - 1 - idx
        del q[:idx + 1]
        return n
    def wait(self, vm=(), lg=()):
        a = self._cnt(self.vm, set(vm)) if vm else None
        b = self._cnt(self.lg, set(lg)) if lg else None
        s = ""
        if a is not None: s += f" vmcnt({min(a, 63)})"
        if b is not None: s += f" lgkmcnt({min(b, 15)})"
        if s: self.e("s_waitcnt" + s)
        return bool(s)
    def wait_all(self):
        self.e("s_waitcnt vmcnt(0) lgkmcnt(0)"); self.vm = []; self.lg = []

import sys
STAMPS = "--stamps" in sys.argv
NST = 8
def stamp(k, i):
    if STAMPS:
        k.e(f"s_memtime s[{80+2*i}:{81+2*i}]")
        if i == 0: k.e("s_memrealtime s[96:97]")
def stamp_flush(k, n, pws, region=0):
    if not STAMPS: return
    e = k.e
    e("s_waitcnt vmcnt(0)")
    e(f"s_memtime s[{80+2*(n-1)}:{81+2*(n-1)}]")
    e("s_memrealtime s[98:99]")
    e("s_waitcnt lgkmcnt(0)")
    e(f"s_add_u32 s8, s{pws}, {(200<<20) + region*65536}"); e(f"s_addc_u32 s9, s{pws+1}, 0"); e("s_mov_b32 s10, 65536"); e("s_mov_b32 s11, 0x20000")
    e(f"s_mul_i32 s3, s2, {NST*4}")
    e("v_mov_b32 v2, 0")
    e("s_sub_u32 s98, s98, s96"); e("v_mov_b32 v3, s98"); e("buffer_store_dword v3, v2, s[8:11], s3 offen")
    for i in range(1, n):
        e(f"s_sub_u32 s4, s{80+2*i}, s80"); e("v_mov_b32 v3, s4")
        e(f"buffer_store_dword v3, v2, s[8:11], s3 offen offset:{4*i}")

def OPT(name, default):
    for a in sys.argv:
        if a.startswith(f"--{name}="): return int(a.split("=")[1])
    return default
def OPTS(name, default):
    for a in sys.argv:
        if a.startswith(f"--{name}="): return a.split("=")[1]
    return default
PF0 = OPT("pf0", 2)
R1 = (PF0*32768)//72
R2 = OPT("r2", 1440)

RT = "--rt" in sys.argv
WS_RT = 201 << 20
def rt(k, i):
    if RT: k.e(f"s_memrealtime s[{80+2*i}:{81+2*i}]")
def rt_flush(k, n, pws, wg, base, pdbg=None):
    if not RT: return
    e = k.e
    lab = f"rtskip{base}"
    e("s_waitcnt vmcnt(0)")
    e(f"s_memrealtime s[{80+2*(n-1)}:{81+2*(n-1)}]")
    e("s_waitcnt lgkmcnt(0)")
    e(f"s_cmp_lg_u32 s2, {wg}"); e(f"s_cbranch_scc1 {k.L(lab)}")
    e(f"s_add_u32 s8, s{pws}, {WS_RT}"); e(f"s_addc_u32 s9, s{pws+1}, 0"); e("s_mov_b32 s10, 256"); e("s_mov_b32 s11, 0x20000")
    e("v_mov_b32 v2, 0")
    for i in range(n):
        e(f"v_mov_b32 v3, s{80+2*i}")
        e(f"buffer_store_dword v3, v2, s[8:11], 0 offen offset:{4*(base+i)} sc1")
    if pdbg is not None:
        e("s_waitcnt vmcnt(0)")
        e("v_and_b32 v2, 63, v0"); e("v_lshlrev_b32 v2, 2, v2")
        e("buffer_load_dword v3, v2, s[8:11], 0 offen sc1")
        e("v_mov_b32 v4, 0")
        e("buffer_load_dword v4, v4, s[8:11], 0 offen sc1")
        e(f"s_mov_b32 s8, s{pdbg}"); e(f"s_mov_b32 s9, s{pdbg+1}")
        e("s_waitcnt vmcnt(0)")
        e("v_sub_u32 v3, v3, v4")
        e("buffer_store_dword v3, v2, s[8:11], 0 offen")
        pr = OPTS("probe", "")
        if pr:
            i, j = [int(x) for x in pr.split(",")]
            e("s_nop 1")
            e(f"v_readlane_b32 s3, v3, {i}"); e(f"v_readlane_b32 s4, v3, {j}")
            e("s_nop 3")
            e("s_sub_u32 s3, s4, s3"); e("s_mul_i32 s3, s3, 10"); e("s_min_u32 s3, s3, 100000")
            e("s_memrealtime s[4:5]"); e("s_waitcnt lgkmcnt(0)")
            k.label("probe")
            e("s_memrealtime s[6:7]"); e("s_waitcnt lgkmcnt(0)")
            e("s_sub_u32 s6, s6, s4"); e("s_cmp_lt_u32 s6, s3"); e(f"s_cbranch_scc1 {k.L('probe')}")
    k.label(lab)
```

```python
from common import *
import hazard

class Gaps:
    def __init__(self, k):
        self.k = k; self.m = {}; self.h = {}; self.b = {}
    def mfma(self, u, t): assert u not in self.m; self.m[u] = t
    def head(self, u, t): self.h.setdefault(u, []).append(t)
    def body(self, u, t): self.b.setdefault(u, []).append(t)
    def _do(self, t):
        if callable(t): t()
        else: self.k.e(t)
    def emit(self, lo, hi):
        for u in range(lo, hi):
            if u in self.m: self._do(self.m[u])
            for t in self.h.get(u, []): self._do(t)
            for t in self.b.get(u, []): self._do(t)

MF = "v_mfma_f32_16x16x32_bf16"
NT = " nt" if OPT("nt", 1) else ""
FL = ["", " nt", " sc1", " sc0 sc1", " sc0", " sc1 nt"]
NTT = FL[OPT("ntt", 0)]
NTD = FL[OPT("ntd", 0)]
P_X, P_K, P_V, P_WQ, P_WO, P_BX, P_W1, P_B1, P_W2, P_B2, P_OUT, P_DBG, P_WS = 36, 38, 40, 42, 44, 46, 48, 50, 52, 54, 56, 58, 60
S_WAVE, S_XCD, S_SLOT = 28, 29, 30

def load_args(k):
    k.e("s_load_dwordx16 s[36:51], s[0:1], 0")
    k.e("s_load_dwordx8 s[52:59], s[0:1], 64")
    k.e("s_load_dwordx2 s[60:61], s[0:1], 96")

def code_prefetch(k, start, end, sreg=62, vt=2):
    e = k.e
    e(f"s_getpc_b64 s[{sreg}:{sreg+1}]")
    k.label(f"pc_{start}")
    e(f"s_mov_b32 s{sreg+2}, {k.L(end)}-{k.L('pc_'+start)}")
    e(f"s_mov_b32 s{sreg+3}, 0x20000")
    e(f"v_lshlrev_b32 v{vt}, 7, v0")
    k.vmem(f"buffer_load_dword v{vt+1}, v{vt}, s[{sreg}:{sreg+3}], 0 offen", "pf")
    e(f"v_add_u32 v{vt}, 0x8000, v{vt}")
    k.vmem(f"buffer_load_dword v{vt+1}, v{vt}, s[{sreg}:{sreg+3}], 0 offen", "pf")

def gelu_pairs(k, regs_pairs, dst, tmp, C0, C1, ONE):
    e = k.e
    n = len(regs_pairs)
    T = lambda i: tmp + 2*i
    for i, u in enumerate(regs_pairs): e(f"v_pk_mul_f32 {vr(T(i),2)}, {vr(u,2)}, {vr(u,2)}")
    for i, u in enumerate(regs_pairs): e(f"v_pk_fma_f32 {vr(T(i),2)}, {vr(T(i),2)}, {vr(C1,2)}, {vr(C0,2)}")
    for i, u in enumerate(regs_pairs): e(f"v_pk_mul_f32 {vr(T(i),2)}, {vr(T(i),2)}, {vr(u,2)}")
    for i in range(n):
        e(f"v_exp_f32 v{T(i)}, v{T(i)}"); e(f"v_exp_f32 v{T(i)+1}, v{T(i)+1}")
    for i in range(n): e(f"v_pk_add_f32 {vr(T(i),2)}, {vr(T(i),2)}, {vr(ONE,2)}")
    for i in range(n):
        e(f"v_rcp_f32 v{T(i)}, v{T(i)}"); e(f"v_rcp_f32 v{T(i)+1}, v{T(i)+1}")
    for i, u in enumerate(regs_pairs): e(f"v_pk_mul_f32 {vr(T(i),2)}, {vr(T(i),2)}, {vr(u,2)}")
    for i in range(n): e(f"v_cvt_pk_bf16_f32 v{dst[i]}, v{T(i)}, v{T(i)+1}")

def mlp1(k, UNROLL=8, DIST=OPT('mdist', 6), LA=OPT('mla', 0), TOUCH=OPT('mtouch', 0)):
    e = k.e
    SW, SH, SU, SB = 8, 12, 16, 20
    sUB, sOW, sOH, sOWm, sOHm, sRD, sWR, sWB, sCNT, sOT, sOTm = 68, 69, 70, 71, 72, 73, 74, 75, 76, 77, 78
    vT, vTD = 2, 3
    SLOT = 24576; NS = 6
    ACC = 112
    vW, vH = 4, 7
    RAb, RBb, RA, RB = 10, 14, 18, 22
    BIAS = 32
    k.label("mlp1")
    k.vm = []; k.lg = []
    code_prefetch(k, "mlp1", "mlp1_end", 64)
    e(f"s_sub_u32 s3, s{S_SLOT}, 22")
    e("s_mul_i32 s4, s3, 11"); e("s_lshr_b32 s4, s4, 5")
    e("s_mul_i32 s5, s4, 3"); e("s_sub_u32 s5, s3, s5")
    e(f"s_mul_i32 s6, s{S_XCD}, 3"); e("s_add_u32 s6, s6, s4")
    e(f"s_mul_i32 s{sOW}, s6, 384")
    e(f"s_mul_i32 s{sOH}, s5, 384")
    e(f"s_add_u32 s{sOWm}, s{sOW}, {63*32*9216}")
    e(f"s_add_u32 s{sOHm}, s{sOH}, {63*32*1152}")
    e(f"s_mul_i32 s{sWB}, s{S_WAVE}, 3072")
    e("v_and_b32 v1, 63, v0")
    e(f"s_lshl_b32 s7, s{S_WAVE}, 3")
    for i in range(3):
        e(f"v_add_u32 v26, {64*i}, v1")
        e("v_mul_u32_u24 v27, 2731, v26"); e("v_lshrrev_b32 v27, 16, v27")
        e("v_mul_u32_u24 v28, 24, v27"); e("v_sub_u32 v28, v26, v28")
        e("v_and_b32 v29, 6, v27"); e("v_xor_b32 v28, v28, v29")
        e("v_add_u32 v27, s7, v27")
        e("v_lshlrev_b32 v28, 4, v28")
        if i: e(f"v_subrev_u32 v28, {1024*i}, v28")
        e(f"v_mul_u32_u24 v29, 9216, v27"); e(f"v_add_u32 v{vW+i}, v29, v28")
        e(f"v_mul_u32_u24 v29, 1152, v27"); e(f"v_add_u32 v{vH+i}, v29, v28")
    e(f"s_and_b32 s4, s{S_WAVE}, 1")
    e(f"s_lshr_b32 s7, s{S_WAVE}, 1")
    e("s_mul_i32 s3, s6, 384"); e("s_mul_i32 s31, s4, 192"); e("s_add_u32 s3, s3, s31")
    e("v_lshrrev_b32 v26, 4, v1"); e("v_lshlrev_b32 v27, 3, v26")
    e("s_waitcnt lgkmcnt(0)")
    k.srd(SW, P_W1, 0, SIZE['w1']); k.srd(SH, P_WS, WS_H, H_BYTES); k.srd(SB, P_B1, 0, SIZE['b1'])
    for fb in range(6):
        k.vmem(f"buffer_load_dwordx2 v[{56+2*fb}:{57+2*fb}], v27, s[{SB}:{SB+3}], s3 offen offset:{32*fb}", "bias")
    def dma(i, which, tag):
        if which == 0:
            k.vmem(f"buffer_load_dwordx4 v{vW+i}, s[{SW}:{SW+3}], s{sOW} offen offset:{1024*i}{NTD} lds", tag)
        else:
            k.vmem(f"buffer_load_dwordx4 v{vH+i}, s[{SH}:{SH+3}], s{sOH} offen offset:{1024*i} lds", tag)
    e("v_lshrrev_b32 v26, 3, v1"); e("v_and_b32 v28, 7, v1"); e("v_lshl_add_u32 v26, v26, 5, v28")
    e(f"s_lshl_b32 s31, s{S_WAVE}, 3"); e("v_add_u32 v26, s31, v26")
    e("v_mul_u32_u24 v26, 9216, v26"); e("s_lshl_b32 s31, s5, 7"); e(f"v_add_u32 v{vT}, s31, v26")
    def stage_dma(st):
        e(f"s_add_u32 m0, s{sWB}, {st*SLOT}")
        e("s_nop 0")
        for i in range(3): dma(i, 0, ("st", st))
        e(f"s_add_u32 m0, s{sWB}, {st*SLOT+12288}")
        e(f"s_add_u32 s{sOW}, s{sOW}, {32*9216}")
        for i in range(3): dma(i, 1, ("st", st))
        e(f"s_add_u32 s{sOH}, s{sOH}, {32*1152}")
    e(f"s_add_u32 s{sOT}, s{sOW}, {2*32*9216}")
    stage_dma(0); stage_dma(1)
    k.vmem(f"buffer_load_dword v{vTD}, v{vT}, s[{SW}:{SW+3}], s{sOT} offen{NTT}", "touch")
    e(f"s_sub_u32 s{sOTm}, s{sOWm}, {7*32*9216}")
    k.srd(SU, P_WS, WS_U, U_BYTES)
    e("s_mul_i32 s3, s6, 6"); e("s_mul_i32 s31, s4, 3"); e("s_add_u32 s3, s3, s31"); e("s_mul_i32 s3, s3, 36")
    e("s_mul_i32 s31, s5, 12"); e("s_add_u32 s3, s3, s31"); e("s_mul_i32 s31, s7, 6"); e("s_add_u32 s3, s3, s31")
    e(f"s_lshl_b32 s{sUB}, s3, 10")
    e("v_lshrrev_b32 v27, 2, v1")
    e("v_bfe_u32 v28, v27, 1, 2")
    e("v_mul_u32_u24 v27, 384, v27")
    e("v_and_b32 v29, 3, v1"); e("v_lshl_add_u32 v27, v29, 3, v27")
    e("s_mul_i32 s4, s4, 6"); e("s_mul_i32 s7, s7, 6")
    for q in range(4):
        e(f"s_add_u32 s3, s4, {q}"); e("v_xor_b32 v29, s3, v28"); e(f"v_lshl_add_u32 v{RAb+q}, v29, 5, v27")
        e(f"s_add_u32 s3, s7, {q}"); e("v_xor_b32 v29, s3, v28"); e(f"v_lshl_add_u32 v{RBb+q}, v29, 5, v27")
        e(f"v_add_u32 v{RBb+q}, 12288, v{RBb+q}")
    def acc(fb, db): return ACC + (((fb >> 1)*6 + db)*2 + (fb & 1))*4
    def A(buf, i): return buf*48 + 4*i
    def B(buf, i): return buf*48 + 24 + 4*i
    k.wait(vm=["bias"])
    e("s_mov_b32 s3, 0xffff0000")
    for fb in range(6):
        for h in range(2):
            e(f"v_lshlrev_b32 v{BIAS+4*fb+2*h}, 16, v{56+2*fb+h}")
            e(f"v_and_b32 v{BIAS+4*fb+2*h+1}, s3, v{56+2*fb+h}")
    for fb in range(6):
        for db in range(6):
            for r in range(4): e(f"v_mov_b32 v{acc(fb,db)+r}, v{BIAS+4*fb+r}")
    def reads(ra, rb, buf):
        L = []
        for i in range(6):
            for h in range(2):
                L.append(f"ds_read_b64_tr_b16 {ar(B(buf,i)+2*h,2)}, v{rb+(i&3)} offset:{(i>>2)*128+h*6144}")
        for i in range(6):
            for h in range(2):
                L.append(f"ds_read_b64_tr_b16 {ar(A(buf,i)+2*h,2)}, v{ra+(i&3)} offset:{(i>>2)*128+h*6144}")
        return L
    for st in range(2, DIST):
        stage_dma(st)
    k.wait(vm=[("st", 0)])
    e("s_barrier")
    for t in reads(RAb, RBb, 0): e(t)
    for q in range(4):
        e(f"v_add_u32 v{RA+q}, {SLOT}, v{RAb+q}"); e(f"v_add_u32 v{RB+q}, {SLOT}, v{RBb+q}")
    e(f"s_mov_b32 s{sWR}, {(DIST % NS)*SLOT}"); e(f"s_mov_b32 s{sRD}, {SLOT}")
    e(f"s_mov_b32 s{sCNT}, {64//UNROLL}")
    k.wait(vm=[("st", 1)]); e("s_waitcnt lgkmcnt(0)"); e("s_barrier")
    stamp(k, 1); rt(k, 1)
    e(".p2align 6")
    k.label("mlp1_loop")
    body0 = len(k.lines)
    for st in range(UNROLL):
        buf = st & 1
        g = Gaps(k)
        u = 0
        for fb in range(6):
            for db in range(6):
                c = vr(acc(fb, db), 4)
                g.mfma(u, f"{MF} {c}, {ar(A(buf,fb),4)}, {ar(B(buf,db),4)}, {c}"); u += 1
        dg = [2, 8, 14, 20, 26, 32]
        rg = [x for x in range(36) if x not in dg][:24]
        for n, t in enumerate(reads(RA, RB, buf ^ 1)): g.body(rg[n], t)
        g.head(0, f"s_add_u32 m0, s{sWR}, s{sWB}")
        g.head(1, f"s_min_u32 s{sOW}, s{sOW}, s{sOWm}")
        g.head(3, f"s_add_u32 s{sWR}, s{sWR}, {SLOT}")
        g.head(4, f"s_cmp_eq_u32 s{sWR}, {NS*SLOT}")
        g.head(5, f"s_cselect_b32 s{sWR}, 0, s{sWR}")
        if st == LA:
            g.head(6, f"s_add_u32 s{sOT}, s{sOT}, {8*32*9216}")
            g.head(7, f"s_min_u32 s{sOT}, s{sOT}, s{sOTm}")
        g.head(9, f"s_add_u32 s{sRD}, s{sRD}, {SLOT}")
        g.head(10, f"s_cmp_eq_u32 s{sRD}, {NS*SLOT}")
        g.head(11, f"s_cselect_b32 s{sRD}, 0, s{sRD}")
        for i in range(3): g.body(dg[i], (lambda i=i: dma(i, 0, None)))
        g.head(15, f"s_add_u32 m0, m0, 12288")
        g.head(16, f"s_add_u32 s{sOW}, s{sOW}, {32*9216}")
        g.head(17, f"s_min_u32 s{sOH}, s{sOH}, s{sOHm}")
        for i in range(3): g.body(dg[3 + i], (lambda i=i: dma(i, 1, None)))
        g.head(33, f"s_add_u32 s{sOH}, s{sOH}, {32*1152}")
        if TOUCH and st == LA: g.body(29, f"buffer_load_dword v{vTD}, v{vT}, s[{SW}:{SW+3}], s{sOT} offen{NTT}")
        for q in range(4): g.body(15 + q, f"v_add_u32 v{RB+q}, s{sRD}, v{RBb+q}")
        for q in range(4): g.body(30 + q//2, f"v_add_u32 v{RA+q}, s{sRD}, v{RAb+q}")
        if st == UNROLL - 1:
            g.head(31, f"s_sub_u32 s{sCNT}, s{sCNT}, 1")
            g.head(34, f"s_cmp_lg_u32 s{sCNT}, 0")
        g.head(35, f"s_waitcnt vmcnt({(DIST-2)*6}) lgkmcnt(0)")
        g.head(35, "s_barrier")
        if st == UNROLL - 1:
            g.head(35, f"s_cbranch_scc1 {k.L('mlp1_loop')}")
        g.emit(0, 36)
    k.loops.append((body0, len(k.lines)))
    k.vm = []; k.lg = []
    stamp(k, 2); rt(k, 2)
    C0, C1, ONE, TMP = 26, 28, 30, 32
    c0 = -2*math.sqrt(2/math.pi)*LOG2E
    for r in range(2):
        e(f"v_mov_b32 v{C0+r}, {fhex(c0)}"); e(f"v_mov_b32 v{C1+r}, {fhex(c0*0.044715)}"); e(f"v_mov_b32 v{ONE+r}, 1.0")
    e("v_lshlrev_b32 v1, 4, v1")
    for j in range(3):
        for db in range(0, 6, 2):
            base = [acc(2*j, db), acc(2*j, db+1)]
            pairs = [b + 2*p for b in base for p in range(4)]
            dst = [b + p for b in base for p in range(4)]
            gelu_pairs(k, pairs, dst, TMP + 16*((db//2) & 1), C0, C1, ONE)
            for q in range(2):
                off = (db + q)*1024
                so = f"s{sUB}"
                if off >= 4096:
                    e(f"s_add_u32 s3, s{sUB}, 4096"); so = "s3"; off -= 4096
                k.vmem(f"buffer_store_dwordx4 {vr(base[q],4)}, v1, s[{SU}:{SU+3}], {so} offen offset:{off}{FL[OPT('stf', 2)]}")
        e(f"s_add_u32 s{sUB}, s{sUB}, {36*1024}")
    stamp(k, 3)
    stamp_flush(k, 5, P_WS); rt_flush(k, 4, P_WS, 176, 7)
    e("s_endpgm")
    k.label("mlp1_end")

LTHRESH = 2.0**80
FINE = '--fine' in sys.argv

def attn(k, DISTQ=OPT('qdist', 5)):
    e = k.e
    SQ, SX, SK, SV, SO = 8, 12, 16, 20, 24
    sOQ, sOQ2, sOX, sOKV, sW4, sW3, sOB, sNV, sHQ = 68, 69, 70, 71, 72, 73, 74, 75, 76
    QS = 28672
    KR, VR = 98304, 0
    vQA, vQB, vLIN, vKE, vKO, vTQ, vTK, vTD = 4, 5, 6, 7, 8, 9, 15, 21
    sTQ, sTK = 77, 78
    RQ, RX = 10, 14
    RK, RV = 22, 26
    LS, NM, QF, SS = 34, 40, 64, 160
    FK, FV = 192, 224
    k.label("attn")
    k.vm = []; k.lg = []
    code_prefetch(k, "attn", "attn_end", 64)
    e(f"s_cmp_ge_u32 s{S_SLOT}, 11"); e("s_cselect_b32 s3, 1, 0")
    e("s_mul_i32 s4, s3, 11"); e(f"s_sub_u32 s4, s{S_SLOT}, s4")
    e(f"s_lshl_b32 s5, s{S_XCD}, 1"); e("s_add_u32 s5, s5, s3")
    e(f"s_and_b32 s{sHQ}, s{S_WAVE}, 1"); e(f"s_lshr_b32 s7, s{S_WAVE}, 1")
    e(f"s_lshl_b32 s{sW4}, s{S_WAVE}, 12")
    e(f"s_mul_i32 s{sW3}, s{S_WAVE}, 3072"); e(f"s_add_u32 s{sW3}, s{sW3}, 16384")
    e(f"s_lshl_b32 s{sOQ}, s5, 9")
    e(f"s_lshl_b32 s3, s{S_WAVE}, 16"); e(f"s_add_u32 s{sOQ}, s{sOQ}, s3")
    e(f"s_add_u32 s{sOQ2}, s{sOQ}, {4*8192-2048}")
    e("s_mul_i32 s6, s4, 12")
    e(f"s_mul_i32 s3, s{S_WAVE}, 3"); e("s_add_u32 s3, s3, s6"); e(f"s_lshl_b32 s{sOX}, s3, 10")
    e(f"s_lshl_b32 s{sOKV}, s5, 19"); e(f"s_add_u32 s{sOKV}, s{sOKV}, {1536*256}"); e(f"s_add_u32 s{sOKV}, s{sOKV}, s{sW4}")
    e("v_and_b32 v1, 63, v0")
    e(f"v_lshlrev_b32 v{vLIN}, 4, v1")
    e("v_lshrrev_b32 v16, 5, v1"); e("v_and_b32 v17, 31, v1")
    e("v_lshlrev_b32 v18, 2, v16"); e("v_xor_b32 v18, v17, v18"); e("v_lshlrev_b32 v18, 4, v18")
    e(f"v_lshl_add_u32 v{vQA}, v16, 13, v18")
    e(f"v_xor_b32 v{vQB}, 128, v{vQA}"); e(f"v_add_u32 v{vQB}, {2*8192-1024}, v{vQB}")
    e("s_waitcnt lgkmcnt(0)")
    if FINE: stamp(k, 3)
    k.srd(SQ, P_WQ, 0, SIZE['wq']); k.srd(SX, P_WS, WS_XN, XN_BYTES)
    def qdma(n):
        slot = (n % 5)*QS; tag = ("q", n)
        L = []
        L.append(([f"s_add_u32 m0, s{sW4}, {slot}"], None))
        for i in range(4):
            v = vQA if i % 2 == 0 else vQB
            so = sOQ if i < 2 else sOQ2
            L.append(([], (lambda v=v, so=so, i=i: k.vmem(f"buffer_load_dwordx4 v{v}, s[{SQ}:{SQ+3}], s{so} offen offset:{1024*i}{NT} lds", tag))))
        L.append(([f"s_add_u32 m0, s{sW3}, {slot}"], None))
        hs = [f"s_add_u32 s{sOQ}, s{sOQ}, {32*8192}", f"s_add_u32 s{sOQ2}, s{sOQ2}, {32*8192}", None]
        for i in range(3):
            L.append(([hs[i]] if hs[i] else [], (lambda i=i: k.vmem(f"buffer_load_dwordx4 v{vLIN}, s[{SX}:{SX+3}], s{sOX} offen offset:{1024*i} lds", tag))))
        L.append(([f"s_add_u32 s{sOX}, s{sOX}, {128*1024}"], None))
        return L
    def kvdma(which, s):
        base = KR + ((s + 3) % 4)*16384 if which == "K" else VR + (s % 4)*16384
        srd = SK if which == "K" else SV
        tag = (which, s)
        L = [([f"s_add_u32 m0, s{sW4}, {base}"], None), ([f"s_add_u32 s3, s{sOKV}, {s*16384}"], None)]
        for i in range(4):
            v = vKE if i % 2 == 0 else vKO
            L.append(([], (lambda v=v, i=i: k.vmem(f"buffer_load_dwordx4 v{v}, s[{srd}:{srd+3}], s3 offen offset:{1024*i}{NT} lds", tag))))
        return L
    def run_now(L):
        for hs, b in L:
            for h in hs: e(h)
            if b: b()
    e(f"s_lshl_b32 s31, s4, 2"); e(f"s_add_u32 s31, s31, s{S_WAVE}")
    e("v_mul_u32_u24 v16, 21846, v1"); e("v_lshrrev_b32 v16, 16, v16")
    e("v_mul_u32_u24 v17, 3, v16"); e("v_sub_u32 v17, v1, v17")
    e("s_mul_i32 s3, s31, 3"); e("v_add_u32 v17, s3, v17")
    e("v_lshrrev_b32 v18, 2, v17"); e("v_lshl_add_u32 v18, v16, 5, v18")
    e("v_and_b32 v19, 3, v17"); e("v_lshlrev_b32 v19, 7, v19"); e(f"v_lshl_add_u32 v{vTQ}, v18, 13, v19")
    e("v_cmp_gt_u32 vcc, 128, v17"); e("v_cmp_gt_u32 s[32:33], 24, v1"); e("s_and_b64 vcc, vcc, s[32:33]")
    e("v_mov_b32 v20, 0x7fffff00"); e(f"v_cndmask_b32 v{vTQ}, v20, v{vTQ}, vcc")
    e("s_mul_i32 s3, s31, 24"); e("v_add_u32 v17, s3, v1"); e(f"v_lshlrev_b32 v{vTK}, 7, v17")
    e("v_cmp_gt_u32 vcc, 1024, v17"); e("s_and_b64 vcc, vcc, s[32:33]"); e(f"v_cndmask_b32 v{vTK}, v20, v{vTK}, vcc")
    e(f"s_lshl_b32 s{sTQ}, s5, 9"); e(f"s_add_u32 s{sTQ}, s{sTQ}, {2*32*8192}")
    e(f"s_lshl_b32 s{sTK}, s5, 19"); e(f"s_add_u32 s{sTK}, s{sTK}, {1536*256}")
    run_now(qdma(0)); run_now(qdma(1))
    k.vmem(f"buffer_load_dword v{vTD}, v{vTQ}, s[{SQ}:{SQ+3}], s{sTQ} offen{NT}", "touch")
    e(f"s_add_u32 s{sTQ}, s{sTQ}, {8*32*8192}")
    k.srd(SK, P_K, 0, SIZE['k']); k.srd(SV, P_V, 0, SIZE['v']); k.srd(SO, P_WS, WS_O, O_BYTES)
    e(f"s_lshl_b32 s3, s5, 1"); e(f"s_add_u32 s3, s3, s{sHQ}"); e("s_lshl_b32 s3, s3, 9")
    e("s_mul_i32 s31, s7, 6"); e("s_add_u32 s31, s31, s6")
    e("s_add_u32 s3, s3, s31"); e(f"s_lshl_b32 s{sOB}, s3, 10")
    e(f"s_sub_u32 s{sNV}, 128, s31")
    e("v_lshrrev_b32 v16, 4, v1"); e("v_and_b32 v17, 15, v1")
    e("v_lshlrev_b32 v18, 1, v16"); e("v_xor_b32 v18, v17, v18"); e("v_lshlrev_b32 v18, 4, v18")
    e(f"v_lshl_add_u32 v{vKE}, v16, 8, v18"); e(f"v_xor_b32 v{vKO}, 128, v{vKE}")
    e("v_and_b32 v18, 7, v17"); e("v_lshlrev_b32 v18, 1, v18"); e("v_xor_b32 v18, v16, v18"); e("v_lshlrev_b32 v18, 4, v18")
    e("v_lshl_add_u32 v18, v17, 8, v18"); e(f"v_add_u32 v18, {KR}, v18")
    for j in range(4): e(f"v_xor_b32 v{RK+j}, {64*j}, v18")
    e("v_lshrrev_b32 v18, 2, v1"); e("v_and_b32 v19, 7, v18"); e("v_lshlrev_b32 v19, 5, v19")
    e("v_lshl_add_u32 v19, v18, 8, v19"); e("v_and_b32 v20, 3, v1"); e("v_lshl_add_u32 v19, v20, 3, v19")
    for et in range(8): e(f"v_xor_b32 v{RV+et}, {32*et}, v19")
    e("v_bfe_u32 v18, v1, 2, 2"); e("v_lshl_add_u32 v19, v16, 3, v18"); e("v_lshlrev_b32 v19, 9, v19")
    e("v_lshl_add_u32 v19, v18, 6, v19"); e("v_lshl_add_u32 v19, v20, 4, v19")
    e(f"s_lshl_b32 s3, s{sHQ}, 8"); e("v_add_u32 v19, s3, v19")
    for j in range(4): e(f"v_xor_b32 v{RQ+j}, {64*j}, v19")
    e("s_mul_i32 s3, s7, 6144"); e("s_add_u32 s3, s3, 16384"); e(f"v_add_u32 v{RX}, s3, v{vLIN}")
    for t in range(6): e(f"v_mov_b32 v{LS+t}, 0")
    def qacc(t, eb): return QF + ((t*4 + (eb >> 1))*2 + (eb & 1))*4
    def QA(buf, eb): return buf*56 + 4*eb
    def QB(buf, t): return buf*56 + 32 + 4*t
    cur = [0]
    def qreads(n):
        buf = n & 1; off = (n % 5)*QS - cur[0]
        assert 0 <= off and off + QS <= 65536
        L = []
        for t in range(6):
            L.append(f"ds_read_b128 {ar(QB(buf,t),4)}, v{RX} offset:{off + 1024*t}")
        for eb in range(8):
            for h in range(2):
                L.append(f"ds_read_b64_tr_b16 {ar(QA(buf,eb)+2*h,2)}, v{RQ+(eb>>1)} offset:{off + h*2048 + (eb&1)*8}")
        return L
    def rebase(n):
        off = (n % 5)*QS - cur[0]
        if 0 <= off and off + QS <= 65536: return []
        d = off; cur[0] += d
        return [f"v_add_u32 v{r}, {d & 0xffffffff}, v{r}" for r in [RQ, RQ+1, RQ+2, RQ+3, RX]]
    for n in range(2, DISTQ): run_now(qdma(n))
    if FINE: stamp(k, 4)
    if FINE: k.wait(vm=["pf"]); stamp(k, 5)
    k.wait(vm=[("q", 0)]);
    if FINE: stamp(k, 6)
    e("s_barrier")
    for t in qreads(0): e(t)
    k.wait(vm=[("q", 1)]); e("s_waitcnt lgkmcnt(0)"); e("s_barrier")
    stamp(k, 1); rt(k, 1)
    def kread(b, n):
        kb, j = n >> 2, n & 3
        off = ((b//2 + 3) % 4)*16384 + ((b & 1)*2 + kb)*4096
        return lambda: k.dsop(f"ds_read_b128 {ar(FK+4*n,4)}, v{RK+j} offset:{off}", ("k", b, n))
    def vread(b, et, h):
        off = ((b//2) % 4)*16384 + (b & 1)*8192 + h*4096
        return lambda: k.dsop(f"ds_read_b64_tr_b16 {ar(FV+4*et+2*h,2)}, v{RV+et} offset:{off}", ("v", b, et))
    if DISTQ == 5:
        extra = {13: kvdma("K", 0) + kvdma("K", 1), 14: kvdma("K", 2) + kvdma("K", 3), 15: kvdma("V", 0),
                 16: kvdma("V", 1) + kvdma("V", 2), 17: kvdma("V", 3)}
    else:
        assert DISTQ == 4
        extra = {14: kvdma("K", 0) + kvdma("K", 1), 15: kvdma("V", 0) + kvdma("K", 2),
                 16: kvdma("V", 1) + kvdma("K", 3), 17: kvdma("V", 2) + kvdma("V", 3)}
    for n in range(18):
        buf = n & 1
        g = Gaps(k); u = 0
        for eb in range(8):
            for t in range(6):
                c = vr(qacc(t, eb), 4)
                g.mfma(u, f"{MF} {c}, {ar(QA(buf,eb),4)}, {ar(QB(buf,t),4)}, {c if n else 0}"); u += 1
        L = (qdma(n + DISTQ) if n + DISTQ < 18 else []) + extra.get(n, [])
        if n == 1: L.append(([], lambda: k.vmem(f"buffer_load_dword v{vTD}, v{vTQ}, s[{SQ}:{SQ+3}], s{sTQ} offen{NT}", "touch")))
        if n == 5: L.append(([], lambda: k.vmem(f"buffer_load_dword v{vTD}, v{vTK}, s[{SK}:{SK+3}], s{sTK} offen{NT}", "touch")))
        if n == 8: L.append(([], lambda: k.vmem(f"buffer_load_dword v{vTD}, v{vTK}, s[{SV}:{SV+3}], s{sTK} offen{NT}", "touch")))
        nd = sum(1 for hs, b in L if b)
        sp = max(3, min(6, 44 // max(nd, 1)))
        dg = [3 + sp*i for i in range(nd)]
        assert not dg or dg[-1] <= 45, (n, dg)
        di = 0; hp = 0
        for hs, b in L:
            for h in hs:
                g.head(hp, h); hp += 1
            if b:
                assert hp <= dg[di], (n, hp, dg, di)
                g.body(dg[di], b); hp = dg[di] + 1; di += 1
        rg = [x for x in range(48) if x not in dg]
        if n < 17:
            for i, t in enumerate(qreads(n + 1)): g.body(rg[i], t)
            if n < 16:
                for i, t in enumerate(rebase(n + 2)): g.body(rg[22 + i], t)
        if n < 16:
            g.head(46, (lambda n=n: (k.wait(vm=[("q", n + 2)]), e("s_waitcnt lgkmcnt(0)"))))
            g.head(47, "s_barrier")
        elif n == 16:
            g.head(46, (lambda: (k.wait(vm=[("K", 0)]), e("s_waitcnt lgkmcnt(0)"))))
            g.head(47, "s_barrier")
        else:
            for i in range(4): g.body(rg[30 + 2*i], kread(0, i))
        g.emit(0, 48)
    stamp(k, 2); rt(k, 2)
    for t in range(6):
        for j in range(4):
            src = QF + (t*4 + j)*8; dst = QF + (t*4 + j)*4
            for p in range(4): e(f"v_cvt_pk_bf16_f32 v{dst+p}, v{src+2*p}, v{src+2*p+1}")
    k.wait(vm=[("K", 1), ("V", 0)]); e("s_barrier")
    def Q(t, j): return QF + (t*4 + j)*4
    def S(b, t): return SS + (b & 1)*48 + t*8
    def O(t, et): return ((t*4 + (et >> 1))*2 + (et & 1))*4
    g = Gaps(k)
    U0 = 44
    for b in range(16):
        base = 96*b
        for n in range(8):
            kb, j = n >> 2, n & 3
            for t in range(6):
                d = vr(S(b, t) + 4*kb, 4)
                c = d if j else (vr(NM + 4*t, 4) if b else "0")
                g.mfma(base + 6*n + t, f"{MF} {d}, {ar(FK+4*n,4)}, {vr(Q(t,j),4)}, {c}")
            g.head(base + 6*n - 1, (lambda b=b, n=n: k.wait(lg=[("k", b, n)])))
            if not (b == 0 and n < 4): g.body(base + 4*n - 13, kread(b, n))
        pb = base + 96 + 48
        for et in range(8):
            for t in range(6):
                d = ar(O(t, et), 4)
                g.mfma(pb + 6*et + t, f"{MF} {d}, {ar(FV+4*et,4)}, {vr(S(b,t),4)}, {d if b else 0}")
            g.head(pb + 6*et - 1, (lambda b=b, et=et: k.wait(lg=[("v", b, et)])))
            for h in range(2): g.body(base + 96 + 4*(8 + 2*et + h) - 13, vread(b, et, h))
    for b in range(16):
        base = 96*b + U0
        for t in range(6):
            s = S(b, t)
            for r in range(8):
                m = 8*t + r
                ue, ua = base + 2*m, base + 2*m + 1
                if b == 0: ue, ua = max(ue, 48), max(ua, 48)
                g.body(ue, f"v_exp_f32 v{s+r}, v{s+r}")
                g.body(ua, f"v_add_f32 v{LS+t}, v{LS+t}, v{s+r}")
        for t in range(6):
            s = S(b, t)
            for c in range(4):
                g.body(base + 5 + 4*(4*t + c), f"v_cvt_pk_bf16_f32 v{s+c}, v{s+2*c}, v{s+2*c+1}")
    for s in range(7):
        ub = 96*(2*s + 2) + 95
        need = [("V", s + 1)] + ([("K", s + 2)] if s + 2 < 8 else [])
        g.head(ub - 1, (lambda need=need: k.wait(vm=need)))
        g.head(ub - 1, "s_barrier")
        if s + 4 < 8:
            L = kvdma("K", s + 4) + kvdma("V", s + 4)
            for i, (hs, bd) in enumerate(L):
                uu = ub + 1 + 8*i
                for h in hs: g.head(uu, h)
                if bd: g.b.setdefault(uu, []).insert(0, bd)
    PF = OPT("pf", 1)
    if PF:
        vPF = vTQ
        k.srd(SQ, P_W2, 0, SIZE['w2']); k.srd(SX, P_WO, 0, SIZE['wo'])
        e(f"s_lshl_b32 s3, s2, 15"); e(f"v_lshlrev_b32 v{vPF}, 7, v0"); e(f"v_add_u32 v{vPF}, s3, v{vPF}")
        SW1 = 64
        k.srd(SW1, P_W1, R2*9216, SIZE['w1'] - R2*9216)
        nw1 = -(-(2048 - R2)*72 // 45056)
        per = [int(x) for x in OPTS("pfper", "1,3,5,7,10,12").split(",")]
        assert len(per) == nw1 + 5
        seq = [(SW1, r) for r in range(nw1)] + [(SX, 0)] + [(SQ, r) for r in range(4)]
        cur_r = 0
        for (srd, r), p in zip(seq, per):
            if r != cur_r:
                g.body(96*p - 4, f"v_add_u32 v{vPF}, {((r - cur_r)*45056*128) & 0xffffffff}, v{vPF}"); cur_r = r
            g.b.setdefault(96*p + 2, []).insert(0, (lambda srd=srd: k.vmem(f"buffer_load_dword v{vTD}, v{vPF}, s[{srd}:{srd+3}], 0 offen", "touch")))
    g.emit(-1, 48)
    T = 16
    for t in range(6):
        s = S(0, t); m = NM + 4*t
        e(f"v_max3_f32 v{m}, v{s}, v{s+1}, v{s+2}"); e(f"v_max3_f32 v{m+1}, v{s+3}, v{s+4}, v{s+5}")
        e(f"v_max3_f32 v{m}, v{m}, v{s+6}, v{s+7}")
    for t in range(6):
        m = NM + 4*t
        e(f"v_max_f32 v{m}, v{m}, v{m+1}")
    for sw in ["v_permlane32_swap_b32", "v_permlane16_swap_b32"]:
        for t in range(6): e(f"v_mov_b32 v{NM+4*t+1}, v{NM+4*t}")
        for t in range(6): e(f"{sw} v{NM+4*t}, v{NM+4*t+1}")
        for t in range(6): e(f"v_max_f32 v{NM+4*t}, v{NM+4*t}, v{NM+4*t+1}")
    for t in range(6):
        m = NM + 4*t
        for r in (1, 2, 3, 0): e(f"v_mul_f32 v{m+r}, -1.0, v{m}")
    for t in range(6):
        s = S(0, t)
        for r in range(0, 8, 2): e(f"v_pk_add_f32 {vr(s+r,2)}, {vr(s+r,2)}, {vr(NM+4*t,2)}")
    g.emit(48, 96)
    if not FINE: stamp(k, 3)
    g.emit(96, 96*16)
    if not FINE: stamp(k, 4)
    g.emit(96*16, 96*17)
    if not FINE: stamp(k, 5)
    rt(k, 3)
    k.label("attn_fin")
    for sw in ["v_permlane32_swap_b32", "v_permlane16_swap_b32"]:
        for t in range(6): e(f"v_mov_b32 v{NM+t}, v{LS+t}")
        for t in range(6): e(f"{sw} v{LS+t}, v{NM+t}")
        for t in range(6): e(f"v_add_f32 v{LS+t}, v{LS+t}, v{NM+t}")
    for t in range(6): e(f"v_rcp_f32 v{NM+2*t}, v{LS+t}")
    for t in range(6):
        if t >= 2:
            e(f"s_cmp_le_u32 s{sNV}, {t}"); e(f"s_cbranch_scc1 {k.L('attn_done')}")
        for j in range(4):
            T = SS + ((t*4 + j) % 8)*8
            for r in range(8): e(f"v_accvgpr_read_b32 v{T+r}, a{O(t,2*j)+r}")
            for r in range(0, 8, 2): e(f"v_pk_mul_f32 {vr(T+r,2)}, {vr(T+r,2)}, {vr(NM+2*t,2)} op_sel_hi:[1,0]")
            for p in range(4): e(f"v_cvt_pk_bf16_f32 v{T+p}, v{T+2*p}, v{T+2*p+1}")
            e(f"s_add_u32 s3, s{sOB}, {j*131072 + t*1024}")
            k.vmem(f"buffer_store_dwordx4 {vr(T,4)}, v{vLIN}, s[{SO}:{SO+3}], s3 offen{FL[OPT('stf', 2)]}")
    k.label("attn_done")
    if not FINE: stamp(k, 6)
    stamp_flush(k, 8, P_WS); rt_flush(k, 5, P_WS, 0, 2)
    e("s_endpgm")
    k.label("attn_end")

def k1():
    k = EK("k1_kernel", 256, 256, 163840, vgpr=512, sgpr=102, accum=256)
    k.loops = []
    e = k.e
    e("s_cmp_ge_u32 s2, 256"); e(f"s_cbranch_scc1 {k.L('exit')}")
    stamp(k, 0); rt(k, 0)
    load_args(k)
    e(f"s_and_b32 s{S_XCD}, s2, 7"); e(f"s_lshr_b32 s{S_SLOT}, s2, 3")
    e("v_lshrrev_b32 v1, 6, v0"); e("s_nop 0"); e(f"v_readfirstlane_b32 s{S_WAVE}, v1")
    e(f"s_cmp_lt_u32 s{S_SLOT}, 22"); e(f"s_cbranch_scc1 {k.L('exit' if '--noattn' in sys.argv else 'attn')}")
    e(f"s_cmp_lt_u32 s{S_SLOT}, 31"); e(f"s_cbranch_scc1 {k.L('mlp1')}")
    e("v_and_b32 v1, 63, v0"); e("v_mul_u32_u24 v2, 7282, v1"); e("v_lshrrev_b32 v2, 16, v2")
    e("v_mul_u32_u24 v3, 9, v2"); e("v_sub_u32 v3, v1, v3"); e("v_min_u32 v2, 6, v2")
    e(f"s_mul_i32 s3, s{S_WAVE}, 7"); e("v_add_u32 v2, s3, v2"); e("v_mul_u32_u24 v2, 9216, v2"); e("v_lshl_add_u32 v2, v3, 7, v2")
    e(f"s_mul_i32 s3, s{S_XCD}, 1152"); e(f"s_add_u32 s3, s3, {R1*9216}"); e("v_add_u32 v2, s3, v2")
    e(f"s_mov_b32 s4, {-(-(R2-R1)//28)}")
    e("s_waitcnt lgkmcnt(0)")
    k.srd(8, P_W1, 0, SIZE['w1'])
    k.label("pfloop")
    e("buffer_load_dword v4, v2, s[8:11], 0 offen")
    e(f"v_add_u32 v2, {28*9216}, v2")
    e("s_waitcnt vmcnt(1)")
    e("s_sub_u32 s4, s4, 1"); e("s_cmp_lg_u32 s4, 0"); e(f"s_cbranch_scc1 {k.L('pfloop')}")
    k.label("exit"); e("s_endpgm")
    e(".p2align 6")
    mlp1(k)
    e(".p2align 6")
    attn(k)
    return k
```

```python
from common import *
from k1 import Gaps, MF, load_args, code_prefetch, P_X, P_WO, P_W2, P_B2, P_OUT, P_DBG, P_WS

NB0 = OPT("nb0", 36)
ACC = 112
def acc(db, sb): return ACC + (sb >> 1)*72 + db*8 + (sb & 1)*4
S_WAVE, S_ROLE, S_SB, S_DB, S_RH, S_KP, S_TILE = 28, 29, 30, 31, 32, 33, 34
SA, SB_, SP, SX, SO = 8, 12, 16, 20, 24
sOA, sOB, sM0A, sM0B, sCNT, sSZA, sSZB = 68, 69, 70, 71, 72, 73, 74
vLIN = 4
OOB = 0x7fffff00

def mainloop(k, role):
    e = k.e
    isA = role == "A"
    vD = 5
    vP = 10
    RS = 12
    RP = 14
    k.label("role" + role)
    k.vm = []; k.lg = []
    code_prefetch(k, "role" + role, "end", 64)
    e("v_and_b32 v1, 63, v0"); e(f"v_lshlrev_b32 v{vLIN}, 4, v1")
    if isA:
        e(f"s_lshl_b32 s3, s{S_ROLE}, 6"); e(f"s_mov_b32 s{sCNT}, 16")
    else:
        e(f"s_cmp_eq_u32 s{S_ROLE}, 2"); e(f"s_cselect_b32 s3, 0, {2*NB0}"); e(f"s_cselect_b32 s{sCNT}, {NB0//2}, {(72-NB0)//2}")
    e(f"s_add_u32 s3, s3, s{S_KP}")
    e(f"s_mul_i32 s{sM0A}, s{S_KP}, 10240"); e(f"s_mul_i32 s4, s{S_RH}, 5120"); e(f"s_add_u32 s{sM0A}, s{sM0A}, s4")
    e("v_mov_b32 v20, 0x7fffff00")
    if isA:
        e(f"s_mul_i32 s{sOA}, s3, {32*1152}"); e(f"s_mul_i32 s4, s{S_RH}, {16*1152}"); e(f"s_add_u32 s{sOA}, s{sOA}, s4")
        e(f"s_mul_i32 s4, s{S_DB}, 288"); e(f"s_add_u32 s{sOA}, s{sOA}, s4")
        for i in range(5):
            e(f"v_add_u32 v16, {64*i}, v1")
            e("v_mul_u32_u24 v17, 3641, v16"); e("v_lshrrev_b32 v17, 16, v17")
            e("v_mul_u32_u24 v18, 18, v17"); e("v_sub_u32 v18, v16, v18")
            e("v_mul_u32_u24 v17, 1152, v17"); e("v_lshl_add_u32 v17, v18, 4, v17")
            if i: e(f"v_subrev_u32 v17, {1024*(i & 3)}, v17") if i < 4 else None
            if i < 4: e(f"v_mov_b32 v{vD+i}, v17")
            else:
                e("v_cmp_gt_u32 vcc, 32, v1"); e(f"v_cndmask_b32 v{vD+i}, v20, v17, vcc")
        stepA = 64*1152
        e(f"s_lshl_b32 s4, s3, 7"); e(f"s_lshl_b32 s5, s{S_SB}, 3"); e("s_add_u32 s4, s4, s5")
        e(f"s_lshl_b32 s5, s{S_RH}, 2"); e("s_add_u32 s4, s4, s5"); e(f"s_lshl_b32 s{sOB}, s4, 10")
        e(f"s_lshl_b32 s4, s{S_KP}, 11"); e(f"v_add_u32 v{vP}, s4, v{vLIN}"); e(f"v_xor_b32 v{vP+1}, 2048, v{vP}")
        stepB = 2*128*1024
        e("v_lshrrev_b32 v16, 2, v1"); e("v_mul_u32_u24 v16, 288, v16"); e("v_and_b32 v17, 3, v1"); e("v_lshl_add_u32 v16, v17, 3, v16")
        e(f"s_mul_i32 s4, s{S_KP}, 10240"); e(f"v_add_u32 v{RS}, s4, v16"); e(f"v_add_u32 v{RS+1}, 61440, v{RS}")
    else:
        e("s_mul_i32 s4, s3, 36"); e(f"s_mul_i32 s5, s{S_DB}, 9"); e("s_add_u32 s4, s4, s5")
        e(f"s_mul_i32 s5, s{S_RH}, 5"); e("s_add_u32 s4, s4, s5"); e(f"s_lshl_b32 s{sOA}, s4, 10")
        e(f"s_mov_b32 s5, {OOB}"); e(f"s_cmp_eq_u32 s{S_RH}, 0"); e(f"s_cselect_b32 s4, 4096, s5"); e(f"v_add_u32 v{vD+1}, s4, v{vLIN}")
        stepA = 2*36*1024
        e(f"s_lshl_b32 s{sOB}, s3, 17"); e(f"s_lshl_b32 s4, s{S_SB}, 8"); e(f"s_add_u32 s{sOB}, s{sOB}, s4")
        e(f"s_lshl_b32 s4, s{S_RH}, 7"); e(f"s_add_u32 s{sOB}, s{sOB}, s4")
        e("v_lshrrev_b32 v16, 3, v1"); e("v_and_b32 v17, 6, v16"); e("v_and_b32 v18, 7, v1"); e("v_xor_b32 v17, v17, v18")
        e("v_lshlrev_b32 v17, 4, v17"); e(f"v_lshl_add_u32 v{vP}, v16, 12, v17")
        e(f"v_add_u32 v{vP+1}, {8*4096-1024}, v{vP}")
        stepB = 64*4096
        e(f"s_lshl_b32 s{sM0B}, s{S_WAVE}, 12"); e(f"s_add_u32 s{sM0B}, s{sM0B}, 81920")
        e(f"s_mul_i32 s4, s{S_KP}, 10240"); e(f"v_add_u32 v{RS}, s4, v{vLIN}"); e(f"v_add_u32 v{RS+1}, 61440, v{RS}")
        e("v_lshrrev_b32 v16, 2, v1"); e("v_bfe_u32 v17, v16, 1, 2"); e(f"s_lshl_b32 s4, s{S_KP}, 1"); e("v_xor_b32 v17, s4, v17")
        e("v_lshlrev_b32 v17, 5, v17"); e("v_lshl_add_u32 v17, v16, 7, v17"); e("v_and_b32 v18, 3, v1"); e("v_lshl_add_u32 v17, v18, 3, v17")
        e(f"v_add_u32 v17, s{sM0B}, v17")
        for sb in range(4): e(f"v_xor_b32 v{RP+sb}, {32*sb}, v17")
    e("s_waitcnt lgkmcnt(0)")
    if isA:
        k.srd(SA, P_WO, 0, SIZE['wo']); k.srd(SB_, P_WS, WS_O, O_BYTES)
    else:
        k.srd(SA, P_WS, WS_U, U_BYTES); k.srd(SB_, P_W2, 0, SIZE['w2'])
        k.srd(SP, P_B2, 0, SIZE['b2'])
        e(f"s_lshl_b32 s4, s{S_KP}, 2"); e(f"s_or_b32 s4, s4, s{S_ROLE}"); e("s_cmp_eq_u32 s4, 2"); e(f"s_cselect_b32 s{SP+2}, s{SP+2}, 0")
        e(f"s_lshl_b32 s4, s{S_SB}, 8"); e(f"s_lshl_b32 s5, s{S_RH}, 7"); e("s_add_u32 s4, s4, s5")
        e("v_and_b32 v28, 15, v1"); e("v_lshlrev_b32 v28, 1, v28")
        for sb in range(4):
            k.vmem(f"buffer_load_ushort v{24+sb}, v28, s[{SP}:{SP+3}], s4 offen offset:{32*sb}", "b2")
    def FA(buf, db): return buf*36 + 4*db
    def FB(n, sb): return 72 + (n % (4 if isA else 2))*16 + 4*sb
    def dmaA(n):
        slot = (n % 4)*20480
        L = [([f"s_add_u32 m0, s{sM0A}, {slot}"], None)]
        for i in range(5):
            if isA: v = vD + i
            else: v = vLIN if i < 4 else vD + 1
            hs = [f"s_add_u32 m0, s{sM0A}, {slot+4096}"] if i == 4 else []
            L.append((hs, (lambda v=v, i=i: k.vmem(f"buffer_load_dwordx4 v{v}, s[{SA}:{SA+3}], s{sOA} offen offset:{1024*(i&3)} lds", ("A", n)))))
        L.append(([f"s_add_u32 s{sOA}, s{sOA}, {stepA}"], None))
        return L
    def dmaB(n):
        L = []
        if isA:
            for sb in range(4):
                L.append(([], (lambda sb=sb: k.vmem(f"buffer_load_dwordx4 {ar(FB(n,sb),4)}, v{vP+(sb>>1)}, s[{SB_}:{SB_+3}], s{sOB} offen offset:{1024*(sb&1)}", ("B", n)))))
            L.append(([f"s_add_u32 s{sOB}, s{sOB}, {stepB}"], None))
        else:
            slot = (n % 4)*16384
            L.append(([f"s_add_u32 m0, s{sM0B}, {slot}"], None))
            for i in range(4):
                hs = [f"s_add_u32 s{sOB}, s{sOB}, {16*4096-2048}"] if i == 2 else []
                L.append((hs, (lambda i=i: k.vmem(f"buffer_load_dwordx4 v{vP+(i&1)}, s[{SB_}:{SB_+3}], s{sOB} offen offset:{1024*i} lds", ("B", n)))))
            L.append(([f"s_add_u32 s{sOB}, s{sOB}, {stepB-(16*4096-2048)}"], None))
        return L
    def run_now(L):
        for hs, b in L:
            for h in hs: e(h)
            if b: b()
    def reads(n):
        buf = n & 1; sl = n % 4
        r = RS + (1 if sl == 3 else 0); off = 0 if sl == 3 else sl*20480
        L = []
        if isA:
            for db in range(9):
                for h in range(2):
                    L.append(f"ds_read_b64_tr_b16 {ar(FA(buf,db)+2*h,2)}, v{r} offset:{off + db*32 + h*5120}")
        else:
            for sb in range(4):
                for h in range(2):
                    L.append(f"ds_read_b64_tr_b16 {ar(FB(n,sb)+2*h,2)}, v{RP+sb} offset:{sl*16384 + h*2048}")
            for db in range(9):
                L.append(f"ds_read_b128 {ar(FA(buf,db),4)}, v{r} offset:{off + db*1024}")
        return L
    DB = 3 if isA else 4
    if isA:
        run_now(dmaA(0))
        for n in range(3): run_now(dmaB(n)); run_now(dmaA(n + 1))
    else:
        for n in range(4): run_now(dmaB(n)); run_now(dmaA(n))
    if isA:
        for r in range(144): e(f"v_mov_b32 v{ACC+r}, 0")
    else:
        k.wait(vm=["b2"])
        for sb in range(4): e(f"v_lshlrev_b32 v{24+sb}, 16, v{24+sb}")
        for db in range(9):
            for sb in range(4):
                for r in range(4): e(f"v_mov_b32 v{acc(db,sb)+r}, v{24+sb}")
    k.wait(vm=[("A", 0)]); e("s_barrier")
    for t in reads(0): e(t)
    k.wait(vm=[("A", 1)]); e("s_waitcnt lgkmcnt(0)"); e("s_barrier")
    stamp(k, 1); rt(k, 1)
    e(".p2align 6")
    k.label(f"loop{role}")
    body0 = len(k.lines)
    for n in range(4):
        buf = n & 1
        g = Gaps(k); u = 0
        for db in range(9):
            for sb in range(4):
                c = vr(acc(db, sb), 4)
                g.mfma(u, f"{MF} {c}, {ar(FA(buf,db),4)}, {ar(FB(n,sb),4)}, {c}"); u += 1
        L = dmaB(n + DB) + dmaA(n + 4)
        dg = [2 + 4*i for i in range(9)]
        pre = []
        if n % 2 == 0:
            pre = [f"s_cmp_le_u32 s{sCNT}, 2", f"s_cselect_b32 s{SA+2}, 0, s{SA+2}"]
            if not isA: pre.append(f"s_cselect_b32 s{SB_+2}, 0, s{SB_+2}")
        elif isA:
            pre = [f"s_cmp_le_u32 s{sCNT}, 2", f"s_cselect_b32 s{SB_+2}, 0, s{SB_+2}"]
        hp = 0
        for h in pre:
            g.head(min(hp, 1), h); hp += 1
        hp = min(hp, 1)
        di = 0
        for hs, b in L:
            for h in hs:
                g.head(hp, h); hp += 1
            if b:
                assert hp <= dg[di], (n, hp, dg[di])
                g.body(dg[di], b); hp = dg[di] + 1; di += 1
        rg = [x for x in range(36) if x not in dg]
        for i, t in enumerate(reads(n + 1)): g.body(rg[i], t)
        if n % 2 == 1:
            g.head(28, f"s_sub_u32 s{sCNT}, s{sCNT}, 1")
        g.head(35, "s_waitcnt vmcnt(18) lgkmcnt(0)")
        g.head(35, "s_barrier")
        if n % 2 == 1:
            g.head(35, f"s_cmp_lg_u32 s{sCNT}, 0")
            g.head(35, f"s_cbranch_scc0 {k.L('done'+role)}" if n == 1 else f"s_cbranch_scc1 {k.L('loop'+role)}")
        g.emit(0, 36)
    k.loops.append((body0, len(k.lines)))
    k.label("done" + role)
    k.vm = []; k.lg = []
    e(f"s_branch {k.L('epi')}")
    k.label("role" + role + "_end")

def k2():
    k = EK("k2_kernel", 256, 256, 147456, vgpr=512, sgpr=102, accum=256)
    k.loops = []
    e = k.e
    e("s_cmp_ge_u32 s2, 256"); e(f"s_cbranch_scc1 {k.L('exit')}")
    stamp(k, 0); rt(k, 0)
    load_args(k)
    e("v_lshrrev_b32 v1, 6, v0"); e("s_nop 0"); e(f"v_readfirstlane_b32 s{S_WAVE}, v1")
    e(f"s_bfe_u32 s{S_ROLE}, s2, 0x20001")
    e("s_and_b32 s3, s2, 1"); e("s_lshl_b32 s3, s3, 3"); e("s_lshr_b32 s4, s2, 5"); e(f"s_add_u32 s{S_SB}, s3, s4")
    e(f"s_bfe_u32 s{S_DB}, s2, 0x20003")
    e(f"s_lshl_b32 s{S_TILE}, s{S_SB}, 2"); e(f"s_add_u32 s{S_TILE}, s{S_TILE}, s{S_DB}")
    e(f"s_and_b32 s{S_RH}, s{S_WAVE}, 1"); e(f"s_lshr_b32 s{S_KP}, s{S_WAVE}, 1")
    e(f"s_cmp_lt_u32 s{S_ROLE}, 2"); e(f"s_cbranch_scc1 {k.L('roleA')}")
    e(f"s_branch {k.L('roleB')}")
    k.label("exit"); e("s_endpgm")
    e(".p2align 6")
    mainloop(k, "A")
    e(".p2align 6")
    mainloop(k, "B")
    k.label("epi")
    stamp(k, 2); rt(k, 2)
    T = 40
    PITCH = 304
    e("s_nop 7")
    e("s_waitcnt vmcnt(0)"); e("s_barrier")
    e(f"s_mul_i32 s3, s{S_WAVE}, 18432"); e(f"v_add_u32 v5, s3, v{vLIN}")
    e(f"s_xor_b32 s4, s{S_WAVE}, 2"); e(f"s_mul_i32 s3, s4, 18432"); e(f"v_add_u32 v6, s3, v{vLIN}")
    for i in range(18): e(f"ds_write_b128 v5, {vr(ACC+72+4*i,4)} offset:{1024*i}")
    k.srd(SP, P_WS, WS_P, P_BYTES); k.srd(SA, P_WS, WS_F, F_BYTES)
    k.srd(SX, P_X, 0, SIZE['x']); k.srd(SO, P_OUT, 0, SIZE['out'])
    e(f"s_lshl_b32 s3, s{S_RH}, 1"); e(f"s_add_u32 s3, s3, s{S_KP}")
    e(f"s_lshl_b32 s5, s{S_TILE}, 2"); e("s_add_u32 s3, s3, s5"); e("s_lshl_b32 s3, s3, 2"); e(f"s_add_u32 s3, s3, s{S_ROLE}")
    e("s_mul_i32 s7, s3, 9216")
    e("s_lshr_b32 s4, s3, 2"); e("s_lshl_b32 s4, s4, 7"); e(f"s_lshl_b32 s3, s{S_ROLE}, 2"); e("s_add_u32 s75, s4, s3")
    e(f"s_add_u32 s5, s5, s{S_ROLE}"); e("s_lshl_b32 s6, s5, 7"); e(f"s_mul_i32 s5, s5, {4*9216}")
    e(f"s_lshl_b32 s3, s{S_WAVE}, 10"); e("s_add_u32 s5, s5, s3")
    e(f"s_mul_i32 s3, s{S_WAVE}, {32*PITCH}"); e("s_add_u32 s3, s3, 73728")
    e("v_and_b32 v16, 15, v1"); e(f"v_mul_u32_u24 v16, {PITCH}, v16"); e("v_lshrrev_b32 v17, 4, v1")
    e("v_lshl_add_u32 v16, v17, 3, v16"); e("v_add_u32 v7, s3, v16")
    RB = 20
    for i in range(9):
        e(f"v_add_u32 v16, {64*i}, v1")
        e("v_mul_u32_u24 v17, 3641, v16"); e("v_lshrrev_b32 v17, 16, v17")
        e(f"v_lshlrev_b32 v16, 4, v16"); e(f"v_lshl_add_u32 v16, v17, 4, v16")
        e(f"v_add_u32 v{RB+i}, s3, v16")
    XA = 8
    e(f"s_lshl_b32 s3, s{S_SB}, 2"); e(f"s_add_u32 s3, s3, s{S_ROLE}"); e(f"s_mul_i32 s3, s3, {32*1152}")
    e(f"s_mul_i32 s4, s{S_DB}, 288"); e("s_add_u32 s35, s3, s4")
    for j in range(3):
        e(f"v_add_u32 v16, {256*j}, v0")
        e("v_mul_u32_u24 v17, 3641, v16"); e("v_lshrrev_b32 v17, 16, v17")
        e(f"v_mul_u32_u24 v17, {1152-288}, v17"); e(f"v_lshl_add_u32 v{XA+j}, v16, 4, v17")
    e("s_waitcnt lgkmcnt(0)"); e("s_barrier")
    for i in range(18): e(f"ds_read_b128 {vr(T+4*i,4)}, v6 offset:{1024*i}")
    k.lg = [("r", i) for i in range(18)]
    for db in range(9):
        k.wait(lg=[("r", 2*db + 1)])
        a = ACC + 8*db; t = T + 8*db
        for r in range(0, 8, 2): e(f"v_pk_add_f32 {vr(a+r,2)}, {vr(a+r,2)}, {vr(t+r,2)}")
        for p in range(4): e(f"v_cvt_pk_bf16_f32 v{a+p}, v{a+2*p}, v{a+2*p+1}")
        for sb in range(2):
            k.dsop(f"ds_write_b64 v7, {vr(a+2*sb,2)} offset:{sb*16*PITCH + db*32}", "w")
    e("s_waitcnt lgkmcnt(0)"); k.lg = []
    for i in range(9): k.dsop(f"ds_read_b128 {vr(T+4*i,4)}, v{RB+i}", ("rb", i))
    for i in range(9):
        k.wait(lg=[("rb", i)])
        if i % 4 == 0 and i: e("s_add_u32 s7, s7, 4096")
        e(f"buffer_store_dwordx4 {vr(T+4*i,4)}, v{vLIN}, s[{SP}:{SP+3}], s7 offen offset:{1024*(i&3)} sc1")
    stamp(k, 3)
    e("v_mov_b32 v16, 1"); e("v_mov_b32 v18, 0")
    e("s_waitcnt vmcnt(0)")
    e("s_mov_b64 exec, 1")
    e(f"buffer_store_dword v16, v18, s[{SA}:{SA+3}], s75 offen sc1")
    e("s_mov_b64 exec, -1")
    e(f"s_cmp_lg_u32 s{S_WAVE}, 0"); e(f"s_cbranch_scc1 {k.L('nosig')}")
    e(f"buffer_load_dwordx4 {vr(120,4)}, v{XA+2}, s[{SX}:{SX+3}], s35 offen")
    k.label("nosig")
    for j in range(2): e(f"buffer_load_dwordx4 {vr(112+4*j,4)}, v{XA+j}, s[{SX}:{SX+3}], s35 offen")
    e("s_mov_b32 s7, 0x100000")
    e("s_mov_b32 s4, 0xffff0000")
    e(f"v_mov_b32 v12, {fhex(-LOG2E)}"); e("v_mov_b32 v14, 1.0")
    k.label("poll")
    e(f"buffer_load_dwordx4 v[20:23], v18, s[{SA}:{SA+3}], s6 offen sc1")
    e("s_waitcnt vmcnt(0)")
    e("v_and_b32 v20, v20, v21"); e("v_and_b32 v22, v22, v23"); e("v_and_b32 v20, v20, v22")
    e("v_readfirstlane_b32 s3, v20")
    e("s_cmp_eq_u32 s3, 1"); e(f"s_cbranch_scc1 {k.L('ready')}")
    e("s_sleep 1"); e("s_sub_u32 s7, s7, 1"); e("s_cmp_lg_u32 s7, 0"); e(f"s_cbranch_scc1 {k.L('poll')}")
    k.label("ready")
    stamp(k, 4); rt(k, 3)
    k.vm = []
    def PR(j, r): return 128 + 16*j + 4*r
    def ploads(j):
        for r in (2, 3, 0, 1):
            e(f"s_add_u32 s3, s5, {r*9216 + j*4096}")
            k.vmem(f"buffer_load_dwordx4 {vr(PR(j,r),4)}, v{vLIN}, s[{SP}:{SP+3}], s3 offen sc1", ("p", j))
    def unpack(dst, src):
        for p in range(4):
            e(f"v_lshlrev_b32 v{dst+2*p}, 16, v{src+p}"); e(f"v_and_b32 v{dst+2*p+1}, s4, v{src+p}")
    def fin(j):
        Y, U1, U2 = 40 + 24*j, 48 + 24*j, 56 + 24*j
        unpack(Y, PR(j, 2)); unpack(U1, PR(j, 3))
        for r in range(0, 8, 2): e(f"v_pk_add_f32 {vr(Y+r,2)}, {vr(Y+r,2)}, {vr(U1+r,2)}")
        for r in range(0, 8, 2): e(f"v_pk_mul_f32 {vr(U1+r,2)}, {vr(Y+r,2)}, v[12:13] op_sel_hi:[1,0]")
        for r in range(8): e(f"v_exp_f32 v{U1+r}, v{U1+r}")
        unpack(U2, PR(j, 0))
        for r in range(0, 8, 2): e(f"v_pk_add_f32 {vr(U1+r,2)}, {vr(U1+r,2)}, v[14:15] op_sel_hi:[1,0]")
        for r in range(8): e(f"v_rcp_f32 v{U1+r}, v{U1+r}")
        for r in range(0, 8, 2): e(f"v_pk_mul_f32 {vr(Y+r,2)}, {vr(Y+r,2)}, {vr(U1+r,2)}")
        unpack(U1, PR(j, 1))
        for r in range(0, 8, 2): e(f"v_pk_add_f32 {vr(U2+r,2)}, {vr(U2+r,2)}, {vr(U1+r,2)}")
        unpack(U1, 112 + 4*j)
        for r in range(0, 8, 2): e(f"v_pk_fma_f32 {vr(Y+r,2)}, {vr(Y+r,2)}, {vr(U2+r,2)}, {vr(U1+r,2)}")
        for p in range(4): e(f"v_cvt_pk_bf16_f32 v{Y+p}, v{Y+2*p}, v{Y+2*p+1}")
        e(f"buffer_store_dwordx4 {vr(Y,4)}, v{XA+j}, s[{SO}:{SO+3}], s35 offen")
    e(f"s_cmp_lg_u32 s{S_WAVE}, 0"); e(f"s_cbranch_scc1 {k.L('no3')}")
    ploads(2)
    k.label("no3")
    k.vm = []
    ploads(0); ploads(1)
    k.wait(vm=[("p", 0)]); fin(0)
    e("s_waitcnt vmcnt(1)"); fin(1)
    e(f"s_cmp_lg_u32 s{S_WAVE}, 0"); e(f"s_cbranch_scc1 {k.L('fin')}")
    fin(2)
    k.label("fin")
    stamp(k, 5)
    stamp_flush(k, 7, P_WS, 1); rt_flush(k, 5, P_WS, 0, 11, P_DBG)
    e("s_endpgm")
    k.label("end")
    return k
```

```python
import sys
from common import *
import hazard
from k0 import k0
from k1 import k1
def finish(k):
    for (a, b) in getattr(k, "loops", []):
        errs = hazard.check(k.lines[a:b] + k.lines[a:b], k.name + " loop")
        for x in errs: print("LOOP HAZARD", x)
        assert not errs
    k.lines, n = hazard.fix(k.lines, verbose=("-v" in sys.argv))
    print(k.name, "nops inserted:", n, "lines:", len(k.lines))
    return k
if __name__ == "__main__":
    ks = [finish(k0()), finish(k1())]
    try:
        if '--k2y' in sys.argv:
            from k2_y import k2
        else:
            from k2 import k2
        ks.append(finish(k2()))
    except ImportError:
        pass
    open(sys.argv[1], "w").write(assemble_file(ks))
```

```python
from asmlib import *
import math
LOG2E = 1.4426950408889634
QSCALE = 128**-0.5 * LOG2E
WS_E = 0
WS_F0 = 4096
WS_F1 = WS_F0 + 32768
WS_F = WS_F1 + 32768
F_BYTES = 256*128
FLAG_BYTES = 131072
WS_XN = FLAG_BYTES
XN_BYTES = 18*128*1024
WS_H = WS_XN + XN_BYTES
H_BYTES = 2048*576*2
WS_O = WS_H + H_BYTES
O_BYTES = 128*128*1024
WS_U = WS_O + O_BYTES
U_BYTES = 144*36*1024
WS_P = WS_U + U_BYTES
P_BYTES = 32*64*9216
WS_C = WS_P + P_BYTES
C_BYTES = 4*4608*128

class EK(Kernel):
    def __init__(self, *a, **k):
        super().__init__(*a, **k)
        self.vm = []; self.lg = []
    def vmem(self, text, tag=None):
        self.e(text); self.vm.append(tag)
        assert len(self.vm) <= 63 or True
    def dsop(self, text, tag=None):
        self.e(text); self.lg.append(tag)
    def _cnt(self, q, tags):
        idx = -1
        for i, t in enumerate(q):
            if t in tags: idx = i
        if idx < 0: return None
        n = len(q) - 1 - idx
        del q[:idx + 1]
        return n
    def wait(self, vm=(), lg=()):
        a = self._cnt(self.vm, set(vm)) if vm else None
        b = self._cnt(self.lg, set(lg)) if lg else None
        s = ""
        if a is not None: s += f" vmcnt({min(a, 63)})"
        if b is not None: s += f" lgkmcnt({min(b, 15)})"
        if s: self.e("s_waitcnt" + s)
        return bool(s)
    def wait_all(self):
        self.e("s_waitcnt vmcnt(0) lgkmcnt(0)"); self.vm = []; self.lg = []

import sys
STAMPS = "--stamps" in sys.argv
NST = 16
ABS = "--abs" in sys.argv
def stamp(k, i):
    if STAMPS:
        if ABS:
            k.e(f"s_memrealtime s[{80+2*i}:{81+2*i}]"); return
        k.e(f"s_memtime s[{80+2*i}:{81+2*i}]")
        if i == 0: k.e("s_memrealtime s[96:97]")
def stamp_flush(k, n, pws, region=0):
    if not STAMPS: return
    e = k.e
    e("s_waitcnt vmcnt(0)")
    stamp(k, n-1)
    e("s_memrealtime s[98:99]")
    e("s_waitcnt lgkmcnt(0)")
    e(f"s_add_u32 s8, s{pws}, {(200<<20) + region*65536}"); e(f"s_addc_u32 s9, s{pws+1}, 0"); e("s_mov_b32 s10, 65536"); e("s_mov_b32 s11, 0x20000")
    e(f"s_mul_i32 s3, s2, {NST*4}")
    e("v_mov_b32 v2, 0")
    if ABS:
        for i in range(n):
            e(f"v_mov_b32 v3, s{80+2*i}")
            e(f"buffer_store_dword v3, v2, s[8:11], s3 offen offset:{4*i}")
        return
    e("s_sub_u32 s98, s98, s96"); e("v_mov_b32 v3, s98"); e("buffer_store_dword v3, v2, s[8:11], s3 offen")
    for i in range(1, n):
        e(f"s_sub_u32 s4, s{80+2*i}, s80"); e("v_mov_b32 v3, s4")
        e(f"buffer_store_dword v3, v2, s[8:11], s3 offen offset:{4*i}")

def OPT(name, default):
    for a in sys.argv:
        if a.startswith(f"--{name}="): return int(a.split("=")[1])
    return default
def OPTS(name, default):
    for a in sys.argv:
        if a.startswith(f"--{name}="): return a.split("=")[1]
    return default
PF0 = OPT("pf0", 2)
R1 = (PF0*32768)//72
R2 = OPT("r2", 1440)

RT = "--rt" in sys.argv
WS_RT = 201 << 20
def rt(k, i):
    if RT: k.e(f"s_memrealtime s[{80+2*i}:{81+2*i}]")
def rt_flush(k, n, pws, wg, base, pdbg=None):
    if not RT: return
    e = k.e
    lab = f"rtskip{base}"
    e("s_waitcnt vmcnt(0)")
    e(f"s_memrealtime s[{80+2*(n-1)}:{81+2*(n-1)}]")
    e("s_waitcnt lgkmcnt(0)")
    e(f"s_cmp_lg_u32 s2, {wg}"); e(f"s_cbranch_scc1 {k.L(lab)}")
    e(f"s_add_u32 s8, s{pws}, {WS_RT}"); e(f"s_addc_u32 s9, s{pws+1}, 0"); e("s_mov_b32 s10, 256"); e("s_mov_b32 s11, 0x20000")
    e("v_mov_b32 v2, 0")
    for i in range(n):
        e(f"v_mov_b32 v3, s{80+2*i}")
        e(f"buffer_store_dword v3, v2, s[8:11], 0 offen offset:{4*(base+i)} sc1")
    if pdbg is not None:
        e("s_waitcnt vmcnt(0)")
        e("v_and_b32 v2, 63, v0"); e("v_lshlrev_b32 v2, 2, v2")
        e("buffer_load_dword v3, v2, s[8:11], 0 offen sc1")
        e("v_mov_b32 v4, 0")
        e("buffer_load_dword v4, v4, s[8:11], 0 offen sc1")
        e(f"s_mov_b32 s8, s{pdbg}"); e(f"s_mov_b32 s9, s{pdbg+1}")
        e("s_waitcnt vmcnt(0)")
        e("v_sub_u32 v3, v3, v4")
        e("buffer_store_dword v3, v2, s[8:11], 0 offen")
        pr = OPTS("probe", "")
        if pr:
            i, j = [int(x) for x in pr.split(",")]
            e("s_nop 1")
            e(f"v_readlane_b32 s3, v3, {i}"); e(f"v_readlane_b32 s4, v3, {j}")
            e("s_nop 3")
            e("s_sub_u32 s3, s4, s3"); e("s_mul_i32 s3, s3, 10"); e("s_min_u32 s3, s3, 100000")
            e("s_memrealtime s[4:5]"); e("s_waitcnt lgkmcnt(0)")
            k.label("probe")
            e("s_memrealtime s[6:7]"); e("s_waitcnt lgkmcnt(0)")
            e("s_sub_u32 s6, s6, s4"); e("s_cmp_lt_u32 s6, s3"); e(f"s_cbranch_scc1 {k.L('probe')}")
    k.label(lab)
```

```python
from common import *
from k1 import Gaps, MF, gelu_pairs

KNAME = "recurrent_scan__sliding_block_cached__mixer_token_mlp__prompt_kernel"
P_X, P_K, P_V, P_WQ, P_WO, P_BX, P_W1, P_B1, P_W2, P_B2, P_OUT, P_DBG, P_WS = 36, 38, 40, 42, 44, 46, 48, 50, 52, 54, 56, 58, 60
S_WAVE, S_XCD, S_SLOT = 28, 29, 30
S_TAG = 100
SF = 64
OOB = 0x7fffff00
LNX = 163584
NT = " nt" if OPT("nt", 1) else ""
SC = " sc1"
XNT = " nt" if OPT("xnt", 1) else ""
R2 = OPT("r2", 1184)
MB = OPT("mb", 0)
NI = OPT("ni", 2)
R1 = 252*MB if MB else (8*NI + 6)*32
EW = OPT("ew", 2)
LTHRESH = 2.0**80

def st(k, i):
    if STAMPS: k.e(f"s_memrealtime s[{80+2*i}:{81+2*i}]")
def st_save(k, n, lane0):
    if not STAMPS: return
    k.e("s_waitcnt lgkmcnt(0)")
    for i in range(n): k.e(f"v_writelane_b32 v39, s{80+2*i}, {lane0+i}")
def st_flush(k):
    if not STAMPS: return
    e = k.e
    e(f"s_add_u32 s8, s{P_WS}, {200<<20}"); e(f"s_addc_u32 s9, s{P_WS+1}, 0"); e("s_mov_b32 s10, 65536"); e("s_mov_b32 s11, 0x20000")
    e("s_lshl_b32 s3, s2, 7"); e("v_and_b32 v2, 63, v0"); e("v_lshlrev_b32 v2, 2, v2")
    e("s_mov_b64 exec, 0xffffffff")
    e("buffer_store_dword v39, v2, s[8:11], s3 offen")

def run_now(k, L):
    for hs, b in L:
        for h in hs: k.e(h)
        if b: b()

def place(g, L, dg, hp=0):
    di = 0
    for hs, b in L:
        for h in hs:
            g.head(hp, h); hp += 1
        if b:
            assert hp <= dg[di], (hp, dg, di)
            g.body(dg[di], b); hp = dg[di] + 1; di += 1

def touch_code(k, start, nlines, v):
    e = k.e
    e("s_getpc_b64 s[8:9]")
    e(f"s_mov_b32 s10, {nlines*128}"); e("s_mov_b32 s11, 0x20000")
    e(f"v_lshlrev_b32 v{v}, 5, v0")
    k.vmem(f"buffer_load_dword v{v+1}, v{v}, s[8:11], 0 offen", "pf")

def poll(k, name, vaddr, vtmp, mask=None):
    e = k.e
    e("s_mov_b32 s7, 0x80000")
    k.label(name)
    e(f"buffer_load_dword v{vtmp}, v{vaddr}, s[{SF}:{SF+3}], 0 offen sc1")
    e("s_waitcnt vmcnt(0)")
    e(f"v_cmp_ne_u32 vcc, s{S_TAG}, v{vtmp}")
    if mask: e(f"s_and_b64 vcc, vcc, {mask}")
    e(f"s_cbranch_vccz {k.L(name+'_ok')}")
    e("s_sleep 1"); e("s_sub_u32 s7, s7, 1"); e("s_cmp_lg_u32 s7, 0"); e(f"s_cbranch_scc1 {k.L(name)}")
    k.label(name + "_ok")
    k.vm = []

def ln_phase(k, nm, hook_a, w3_b):
    e = k.e
    R, F, T = 100, 112, 140
    vX, vN, vL = 170, 171, 172
    e("v_and_b32 v176, 7, v1"); e("v_lshrrev_b32 v177, 3, v1")
    e("s_lshl_b32 s3, s2, 3"); e("v_add_u32 v178, s3, v176"); e("v_mul_u32_u24 v178, 1152, v178")
    e(f"v_lshl_add_u32 v{vX}, v177, 4, v178")
    e(f"s_mul_i32 s3, s{S_WAVE}, 384"); e(f"s_mul_i32 s4, s{S_WAVE}, {6*131072}")
    e(f"v_add_u32 v{vX}, s3, v{vX}")
    e("v_lshrrev_b32 v178, 2, v177"); e("v_lshlrev_b32 v178, 17, v178"); e("v_and_b32 v179, 3, v177"); e("v_lshl_add_u32 v178, v179, 8, v178")
    e("v_lshl_add_u32 v178, v176, 4, v178")
    e("s_lshr_b32 s3, s2, 1"); e("s_lshl_b32 s3, s3, 10"); e("s_add_u32 s4, s4, s3"); e("s_and_b32 s3, s2, 1"); e("s_lshl_b32 s3, s3, 7"); e("s_add_u32 s4, s4, s3")
    e(f"v_add_u32 v{vN}, s4, v178")
    e(f"v_lshlrev_b32 v{vL}, 3, v176"); e(f"v_add_u32 v{vL}, {LNX}, v{vL}")
    e(f"s_lshl_b32 s3, s{S_WAVE}, 6"); e(f"v_add_u32 v173, s3, v{vL}")
    e("s_waitcnt lgkmcnt(0)")
    k.srd(12, P_X, 0, SIZE['x'])
    e(f"s_cmp_eq_u32 s{S_WAVE}, 3"); e(f"s_cbranch_scc1 {k.L(nm+'_nox')}")
    for i in range(3):
        k.vmem(f"buffer_load_dwordx4 {vr(R+4*i,4)}, v{vX}, s[12:15], 0 offen offset:{128*i}{XNT}", "x")
    k.label(nm + "_nox")
    e(f"s_load_dword s{S_TAG}, s[{P_WS}:{P_WS+1}], {WS_E}")
    hook_a()
    e("s_getpc_b64 s[24:25]")
    k.label(nm + "_pc")
    e(f"s_sub_u32 s24, s24, {k.L(nm+'_pc')}-{k.name}"); e("s_subb_u32 s25, s25, 0")
    e(f"s_mov_b32 s26, {k.L('end')}-{k.name}"); e("s_mov_b32 s27, 0x20000")
    e(f"s_lshl_b32 s3, s{S_SLOT}, 2"); e(f"s_add_u32 s3, s3, s{S_WAVE}"); e("s_mul_i32 s3, s3, 768")
    e("v_min_u32 v174, 5, v1"); e("v_lshlrev_b32 v174, 7, v174"); e("v_add_u32 v174, s3, v174")
    k.vmem("buffer_load_dword v175, v174, s[24:27], 0 offen", "pf")
    k.srd(16, P_WS, WS_XN, XN_BYTES); k.srd(20, P_WS, WS_H, H_BYTES); k.srd(SF, P_WS, 0, FLAG_BYTES)
    e(f"s_cmp_lg_u32 s{S_WAVE}, 3"); e(f"s_cbranch_scc1 {k.L(nm+'_ln')}")
    e("s_waitcnt lgkmcnt(0)"); e("s_barrier")
    e(f"s_mul_i32 s{S_TAG}, s{S_TAG}, 0x9e3779b1"); e(f"s_add_u32 s{S_TAG}, s{S_TAG}, 0x7f4a7c15")
    e("s_barrier")
    sv = list(k.vm)
    w3_b()
    k.vm = sv
    e(f"s_branch {k.L(nm+'_nf')}")
    k.label(nm + "_ln")
    e("s_mov_b32 s3, 0xffff0000")
    k.wait(vm=["x"])
    st(k, 1)
    for i in range(12):
        e(f"v_lshlrev_b32 v{F+2*i}, 16, v{R+i}"); e(f"v_and_b32 v{F+2*i+1}, s3, v{R+i}")
    def red(v):
        e(f"v_add_f32_dpp v{v}, v{v}, v{v} row_ror:8 row_mask:0xf bank_mask:0xf")
        for sw in ["v_permlane16_swap_b32", "v_permlane32_swap_b32"]:
            e(f"v_mov_b32 v{v+1}, v{v}"); e(f"{sw} v{v}, v{v+1}"); e(f"v_add_f32 v{v}, v{v}, v{v+1}")
    A, B = T, T + 2
    e(f"v_pk_add_f32 {vr(A,2)}, {vr(F,2)}, {vr(F+2,2)}"); e(f"v_pk_add_f32 {vr(B,2)}, {vr(F+4,2)}, {vr(F+6,2)}")
    for p in range(4, 12):
        d = A if p % 2 == 0 else B
        e(f"v_pk_add_f32 {vr(d,2)}, {vr(d,2)}, {vr(F+2*p,2)}")
    e(f"v_pk_add_f32 {vr(A,2)}, {vr(A,2)}, {vr(B,2)}"); e(f"v_add_f32 v{A}, v{A}, v{A+1}")
    red(A)
    M = T + 4
    e(f"v_mul_f32 v{M}, {fhex(1/192)}, v{A}")
    for p in range(12):
        e(f"v_pk_add_f32 {vr(F+2*p,2)}, {vr(F+2*p,2)}, {vr(M,2)} op_sel_hi:[1,0] neg_lo:[0,1] neg_hi:[0,1]")
    e(f"v_pk_mul_f32 {vr(A,2)}, {vr(F,2)}, {vr(F,2)}"); e(f"v_pk_mul_f32 {vr(B,2)}, {vr(F+2,2)}, {vr(F+2,2)}")
    for p in range(2, 12):
        d = A if p % 2 == 0 else B
        e(f"v_pk_fma_f32 {vr(d,2)}, {vr(F+2*p,2)}, {vr(F+2*p,2)}, {vr(d,2)}")
    e(f"v_pk_add_f32 {vr(A,2)}, {vr(A,2)}, {vr(B,2)}"); e(f"v_add_f32 v{A}, v{A}, v{A+1}")
    red(A)
    e(f"v_mov_b32 v{M+1}, v{A}")
    e(f"ds_write_b64 v173, {vr(M,2)}")
    e("s_waitcnt lgkmcnt(0)"); e("s_barrier")
    G = T + 8
    for w in range(3): e(f"ds_read_b64 {vr(G+2*w,2)}, v{vL} offset:{64*w}")
    e(f"s_mul_i32 s{S_TAG}, s{S_TAG}, 0x9e3779b1"); e(f"s_add_u32 s{S_TAG}, s{S_TAG}, 0x7f4a7c15")
    e("s_waitcnt lgkmcnt(0)")
    e(f"v_add_f32 v{A}, v{G}, v{G+2}"); e(f"v_add_f32 v{B}, v{G+1}, v{G+3}")
    e(f"v_add_f32 v{A}, v{A}, v{G+4}"); e(f"v_add_f32 v{B}, v{B}, v{G+5}")
    e(f"v_mul_f32 v{A}, {fhex(1/3)}, v{A}")
    for w in range(3): e(f"v_sub_f32 v{G+2*w}, v{G+2*w}, v{A}")
    e(f"v_mul_f32 v{A+1}, v{G}, v{G}"); e(f"v_fmac_f32 v{A+1}, v{G+2}, v{G+2}"); e(f"v_fmac_f32 v{A+1}, v{G+4}, v{G+4}")
    e(f"v_fmac_f32 v{B}, {fhex(192.0)}, v{A+1}")
    e(f"v_mul_f32 v{B}, {fhex(1/576)}, v{B}")
    e(f"v_sub_f32 v{M}, v{M}, v{A}")
    e(f"v_add_f32 v{A}, {fhex(1e-5)}, v{B}"); e(f"v_rsq_f32 v{A}, v{A}")
    e(f"v_mul_f32 v{B}, v{B}, v{A}"); e(f"v_mul_f32 v{B}, v{B}, v{A}")
    e(f"v_add_f32 v{B}, {fhex(1e-5)}, v{B}"); e(f"v_rsq_f32 v{B}, v{B}")
    SXr, SHr, DX, DH = G, G + 2, G + 4, G + 6
    e(f"v_mul_f32 v{SXr}, {fhex(QSCALE)}, v{A}"); e(f"v_mul_f32 v{DX}, v{M}, v{SXr}")
    e(f"v_mul_f32 v{SHr}, v{B}, v{A}"); e(f"v_mul_f32 v{DH}, v{M}, v{SHr}")
    U = 180
    e("s_mov_b32 s3, 262144"); e("s_mov_b32 s4, 524288")
    for i in range(3):
        for (sc, dl, dst, which) in [(SXr, DX, R + 4*i, 0), (SHr, DH, 156 + 4*i, 1)]:
            u = U + 8*which
            for p in range(4):
                e(f"v_pk_fma_f32 {vr(u+2*p,2)}, {vr(F+8*i+2*p,2)}, {vr(sc,2)}, {vr(dl,2)} op_sel_hi:[1,0,0]")
            for p in range(4): e(f"v_cvt_pk_bf16_f32 v{dst+p}, v{u+2*p}, v{u+2*p+1}")
            if which == 0:
                so = ["0", "s3", "s4"][i]
                k.vmem(f"buffer_store_dwordx4 {vr(dst,4)}, v{vN}, s[16:19], {so} offen sc1", "ln")
            else:
                k.vmem(f"buffer_store_dwordx4 {vr(dst,4)}, v{vX}, s[20:23], 0 offen offset:{128*i} sc1", "ln")
    st(k, 2)
    e("v_lshlrev_b32 v176, 12, v1"); e("s_lshl_b32 s3, s2, 4"); e(f"s_add_u32 s3, s3, {WS_F0}"); e(f"v_mov_b32 v177, s{S_TAG}")
    k.wait(vm=["ln"])
    e("s_barrier")
    e(f"s_cmp_lg_u32 s{S_WAVE}, 0"); e(f"s_cbranch_scc1 {k.L(nm+'_nf')}")
    e("s_mov_b64 exec, 0xff")
    e(f"buffer_store_dword v177, v176, s[{SF}:{SF+3}], s3 offen sc1")
    e("s_mov_b64 exec, -1")
    k.label(nm + "_nf")
    st(k, 3)
    k.vm = ["unknown"]*0

def strip_touch_addr(k, v, idx_s, row0):
    e = k.e
    e(f"v_add_u32 v{v}, s{idx_s}, v1")
    e(f"v_mul_u32_u24 v{v+1}, 1821, v{v}"); e(f"v_lshrrev_b32 v{v+1}, 14, v{v+1}")
    e(f"v_mul_u32_u24 v{v+1}, {9216-9*128}, v{v+1}"); e(f"v_lshl_add_u32 v{v}, v{v}, 7, v{v+1}")
    e(f"s_mul_i32 s3, s{S_XCD}, 1152"); e(f"s_add_u32 s3, s3, {row0*9216}"); e(f"v_add_u32 v{v}, s3, v{v}")

def publish(k, nm):
    e = k.e
    e("s_barrier")
    e(f"s_cmp_lg_u32 s{S_WAVE}, 0"); e(f"s_cbranch_scc1 {k.L(nm+'_nf1')}")
    e(f"s_lshl_b32 s3, s2, 7"); e(f"s_add_u32 s3, s3, {WS_F1}"); e(f"v_mov_b32 v2, s{S_TAG}"); e("v_mov_b32 v3, 0")
    e("s_mov_b64 exec, 1")
    e(f"buffer_store_dword v2, v3, s[{SF}:{SF+3}], s3 offen sc1")
    e("s_mov_b64 exec, -1")
    k.label(nm + "_nf1")

def mlp1(k, UNROLL=8):
    e = k.e
    SW, SH, SU, SB = 8, 12, 16, 20
    sUB, sOW, sOH, sOWm, sOHm, sRD, sWR, sWB, sCNT, sOT, sWH = 68, 69, 70, 71, 72, 73, 74, 75, 76, 77, 78
    sFT, sDT = 32, 33
    vT, vTD = 2, 3
    SLOT = 24576; NS = 6; DW = 6; DH = 4
    ACC = 112
    vW, vH = 4, 7
    RAb, RBb, RA, RB = 10, 14, 18, 22
    BIAS = 32
    k.label("mlp1")
    k.vm = []; k.lg = []
    touch_code(k, "mlp1", 40, 30)
    e(f"s_sub_u32 s3, s{S_SLOT}, 22")
    e("s_mul_i32 s4, s3, 11"); e("s_lshr_b32 s4, s4, 5")
    e(f"s_mul_i32 s5, s4, 3"); e(f"s_sub_u32 s{sDT}, s3, s5")
    e(f"s_mul_i32 s6, s{S_XCD}, 3"); e(f"s_add_u32 s{sFT}, s6, s4")
    e(f"s_mul_i32 s{sOW}, s{sFT}, 384"); e(f"s_mul_i32 s{sOH}, s{sDT}, 384")
    e(f"s_add_u32 s{sOWm}, s{sOW}, {63*32*9216}"); e(f"s_add_u32 s{sOHm}, s{sOH}, {63*32*1152}")
    e(f"s_mul_i32 s{sWB}, s{S_WAVE}, 3072")
    e(f"s_lshl_b32 s7, s{S_WAVE}, 3")
    for i in range(3):
        e(f"v_add_u32 v26, {64*i}, v1")
        e("v_mul_u32_u24 v27, 2731, v26"); e("v_lshrrev_b32 v27, 16, v27")
        e("v_mul_u32_u24 v28, 24, v27"); e("v_sub_u32 v28, v26, v28")
        e("v_and_b32 v29, 6, v27"); e("v_xor_b32 v28, v28, v29")
        e("v_add_u32 v27, s7, v27")
        e("v_lshlrev_b32 v28, 4, v28")
        if i: e(f"v_subrev_u32 v28, {1024*i}, v28")
        e(f"v_mul_u32_u24 v29, 9216, v27"); e(f"v_add_u32 v{vW+i}, v29, v28")
        e(f"v_mul_u32_u24 v29, 1152, v27"); e(f"v_add_u32 v{vH+i}, v29, v28")
    wpol = [" nt" if NI else ""]
    def dma(i, which, tag):
        if which == 0:
            k.vmem(f"buffer_load_dwordx4 v{vW+i}, s[{SW}:{SW+3}], s{sOW} offen offset:{1024*i}{wpol[0]} lds", tag)
        else:
            k.vmem(f"buffer_load_dwordx4 v{vH+i}, s[{SH}:{SH+3}], s{sOH} offen offset:{1024*i}{SC} lds", tag)
    def wdma(s_):
        e(f"s_add_u32 m0, s{sWB}, {s_*SLOT}")
        for i in range(3): dma(i, 0, ("W", s_))
        e(f"s_add_u32 s{sOW}, s{sOW}, {32*9216}")
    def hdma(s_):
        e(f"s_add_u32 m0, s{sWB}, {s_*SLOT+12288}")
        for i in range(3): dma(i, 1, ("H", s_))
        e(f"s_add_u32 s{sOH}, s{sOH}, {32*1152}")
    def burst():
        k.vmem(f"buffer_load_dword v{vTD}, v{vT}, s[{SW}:{SW+3}], 0 offen", "touch")
        e(f"v_add_u32 v{vT}, {252*9216}, v{vT}")
    def hook_a():
        k.srd(SW, P_W1, 0, SIZE['w1'])
        e(f"s_sub_u32 s4, s{S_SLOT}, 22"); e("s_lshl_b32 s4, s4, 2"); e(f"s_add_u32 s4, s4, s{S_WAVE}"); e("s_mul_i32 s4, s4, 63")
        strip_touch_addr(k, vT, 4, 0)
        e(f"s_and_b32 s4, s{S_WAVE}, 1"); e(f"s_lshr_b32 s7, s{S_WAVE}, 1")
        e("v_lshrrev_b32 v27, 2, v1"); e("v_bfe_u32 v28, v27, 1, 2"); e("v_mul_u32_u24 v27, 384, v27")
        e("v_and_b32 v29, 3, v1"); e("v_lshl_add_u32 v27, v29, 3, v27")
        e("s_mul_i32 s5, s4, 6"); e("s_mul_i32 s6, s7, 6")
        for q in range(4):
            e(f"s_add_u32 s3, s5, {q}"); e("v_xor_b32 v29, s3, v28"); e(f"v_lshl_add_u32 v{RAb+q}, v29, 5, v27")
            e(f"s_add_u32 s3, s6, {q}"); e("v_xor_b32 v29, s3, v28"); e(f"v_lshl_add_u32 v{RBb+q}, v29, 5, v27")
            e(f"v_add_u32 v{RBb+q}, 12288, v{RBb+q}")
        e(f"s_mul_i32 s3, s{sFT}, 6"); e("s_mul_i32 s31, s4, 3"); e("s_add_u32 s3, s3, s31"); e("s_mul_i32 s3, s3, 36")
        e(f"s_mul_i32 s31, s{sDT}, 12"); e("s_add_u32 s3, s3, s31"); e("s_add_u32 s3, s3, s6")
        e(f"s_lshl_b32 s{sUB}, s3, 10")
        for s_ in range(EW): wdma(s_)
    ln_phase(k, "mlp1", hook_a, lambda: None)
    for b in range(MB): burst()
    k.srd(24, P_B1, 0, SIZE['b1'])
    e(f"s_and_b32 s4, s{S_WAVE}, 1"); e(f"s_mul_i32 s3, s{sFT}, 384"); e("s_mul_i32 s31, s4, 192"); e("s_add_u32 s3, s3, s31")
    e("v_lshrrev_b32 v26, 4, v1"); e("v_lshlrev_b32 v27, 3, v26")
    for fb in range(6):
        k.vmem(f"buffer_load_dwordx2 v[{56+2*fb}:{57+2*fb}], v27, s[24:27], s3 offen offset:{32*fb}", "bias")
    for s_ in range(EW, DW): wdma(s_)
    k.srd(SH, P_WS, WS_H, H_BYTES); k.srd(SU, P_WS, WS_U, U_BYTES)
    e(f"s_lshl_b32 s3, s{S_XCD}, 12"); e(f"s_lshl_b32 s4, s{S_WAVE}, 4"); e("s_add_u32 s3, s3, s4"); e(f"s_add_u32 s3, s3, {WS_F0}")
    e("v_lshlrev_b32 v26, 6, v1"); e("v_add_u32 v26, s3, v26")
    poll(k, "mlp1_p0", 26, 27)
    st(k, 4)
    for s_ in range(2): hdma(s_)
    def acc(fb, db): return ACC + (((fb >> 1)*6 + db)*2 + (fb & 1))*4
    def A(buf, i): return buf*48 + 4*i
    def B(buf, i): return buf*48 + 24 + 4*i
    e("s_mov_b32 s3, 0xffff0000")
    for fb in range(6):
        for h in range(2):
            e(f"v_lshlrev_b32 v{BIAS+4*fb+2*h}, 16, v{56+2*fb+h}")
            e(f"v_and_b32 v{BIAS+4*fb+2*h+1}, s3, v{56+2*fb+h}")
    for fb in range(6):
        for db in range(6):
            for r in range(0, 4, 2): e(f"v_pk_mov_b32 {vr(acc(fb,db)+r,2)}, {vr(BIAS+4*fb+r,2)}, {vr(BIAS+4*fb+r,2)} op_sel:[0,1]")
    def reads(ra, rb, buf):
        L = []
        for i in range(6):
            for h in range(2):
                L.append(f"ds_read_b64_tr_b16 {ar(B(buf,i)+2*h,2)}, v{rb+(i&3)} offset:{(i>>2)*128+h*6144}")
        for i in range(6):
            for h in range(2):
                L.append(f"ds_read_b64_tr_b16 {ar(A(buf,i)+2*h,2)}, v{ra+(i&3)} offset:{(i>>2)*128+h*6144}")
        return L
    for s_ in range(2, DH): hdma(s_)
    k.wait(vm=[("H", 0)])
    e("s_barrier")
    for t in reads(RAb, RBb, 0): e(t)
    k.wait(vm=[("H", 2)])
    e(f"s_lshl_b32 s3, s2, 2"); e(f"s_add_u32 s3, s3, s{S_WAVE}"); e(f"s_cmp_eq_u32 s3, {176*4}")
    e(f"s_cselect_b32 s3, {WS_E}, {OOB}"); e("v_mov_b32 v26, s3"); e(f"v_mov_b32 v27, s{S_TAG}")
    e(f"buffer_store_dword v27, v26, s[{SF}:{SF+3}], 0 offen sc1")
    for q in range(4):
        e(f"v_add_u32 v{RA+q}, {SLOT}, v{RAb+q}"); e(f"v_add_u32 v{RB+q}, {SLOT}, v{RBb+q}")
    e(f"s_mov_b32 s{sWR}, {(DW % NS)*SLOT}"); e(f"s_mov_b32 s{sWH}, {(DH % NS)*SLOT}"); e(f"s_mov_b32 s{sRD}, {SLOT}")
    e(f"s_add_u32 s79, s{sWB}, 12288")
    e("s_waitcnt lgkmcnt(0)"); e("s_barrier")
    st(k, 5)
    for lab, cnt, pol in [("mlp1_loopn", NI, " nt"), ("mlp1_loop", 64//UNROLL - NI, "")]:
        if cnt == 0: continue
        wpol[0] = pol
        e(f"s_mov_b32 s{sCNT}, {cnt}")
        e(".p2align 6")
        k.label(lab)
        body0 = len(k.lines)
        for s_ in range(UNROLL):
            buf = s_ & 1
            g = Gaps(k); u = 0
            for fb in range(6):
                for db in range(6):
                    c = vr(acc(fb, db), 4)
                    g.mfma(u, f"{MF} {c}, {ar(A(buf,fb),4)}, {ar(B(buf,db),4)}, {c}"); u += 1
            dg = [2, 8, 14, 20, 26, 32]
            rg = [x for x in range(36) if x not in dg][:24]
            for n, t in enumerate(reads(RA, RB, buf ^ 1)): g.body(rg[n], t)
            g.head(0, f"s_add_u32 m0, s{sWR}, s{sWB}")
            g.head(1, f"s_min_u32 s{sOW}, s{sOW}, s{sOWm}")
            g.head(3, f"s_add_u32 s{sWR}, s{sWR}, {SLOT}")
            g.head(4, f"s_cmp_eq_u32 s{sWR}, {NS*SLOT}")
            g.head(5, f"s_cselect_b32 s{sWR}, 0, s{sWR}")
            g.head(9, f"s_add_u32 s{sRD}, s{sRD}, {SLOT}")
            g.head(10, f"s_cmp_eq_u32 s{sRD}, {NS*SLOT}")
            g.head(11, f"s_cselect_b32 s{sRD}, 0, s{sRD}")
            for i in range(3): g.body(dg[i], (lambda i=i: dma(i, 0, None)))
            g.head(15, f"s_add_u32 m0, s{sWH}, s79")
            g.head(16, f"s_add_u32 s{sOW}, s{sOW}, {32*9216}")
            g.head(17, f"s_min_u32 s{sOH}, s{sOH}, s{sOHm}")
            g.head(21, f"s_add_u32 s{sWH}, s{sWH}, {SLOT}")
            g.head(22, f"s_cmp_eq_u32 s{sWH}, {NS*SLOT}")
            g.head(23, f"s_cselect_b32 s{sWH}, 0, s{sWH}")
            for i in range(3): g.body(dg[3 + i], (lambda i=i: dma(i, 1, None)))
            g.head(33, f"s_add_u32 s{sOH}, s{sOH}, {32*1152}")
            for q in range(4): g.body(15 + q, f"v_add_u32 v{RB+q}, s{sRD}, v{RBb+q}")
            for q in range(4): g.body(30 + q//2, f"v_add_u32 v{RA+q}, s{sRD}, v{RAb+q}")
            if s_ == UNROLL - 1:
                g.head(31, f"s_sub_u32 s{sCNT}, s{sCNT}, 1")
                g.head(34, f"s_cmp_lg_u32 s{sCNT}, 0")
            g.head(35, f"s_waitcnt vmcnt({(DH-2)*6}) lgkmcnt(0)")
            g.head(35, "s_barrier")
            if s_ == UNROLL - 1:
                g.head(35, f"s_cbranch_scc1 {k.L(lab)}")
            g.emit(0, 36)
        k.loops.append((body0, len(k.lines)))
    k.vm = []; k.lg = []
    st(k, 6)
    C0, C1, ONE, TMP = 26, 28, 30, 40
    c0 = -2*math.sqrt(2/math.pi)*LOG2E
    for r in range(2):
        e(f"v_mov_b32 v{C0+r}, {fhex(c0)}"); e(f"v_mov_b32 v{C1+r}, {fhex(c0*0.044715)}"); e(f"v_mov_b32 v{ONE+r}, 1.0")
    e("v_lshlrev_b32 v4, 4, v1")
    for j in range(3):
        for db in range(0, 6, 2):
            base = [acc(2*j, db), acc(2*j, db+1)]
            pairs = [b + 2*p for b in base for p in range(4)]
            dst = [b + p for b in base for p in range(4)]
            gelu_pairs(k, pairs, dst, TMP + 16*((db//2) & 1), C0, C1, ONE)
            for q in range(2):
                off = (db + q)*1024
                so = f"s{sUB}"
                if off >= 4096:
                    e(f"s_add_u32 s3, s{sUB}, 4096"); so = "s3"; off -= 4096
                k.vmem(f"buffer_store_dwordx4 {vr(base[q],4)}, v4, s[{SU}:{SU+3}], {so} offen offset:{off} sc1")
        e(f"s_add_u32 s{sUB}, s{sUB}, {36*1024}")
    e("s_waitcnt vmcnt(18)")
    st(k, 8)
    e(f"s_branch {k.L('phase2')}")

def spare(k):
    e = k.e
    k.label("spare")
    k.vm = []; k.lg = []
    touch_code(k, "spare", 16, 30)
    ln_phase(k, "spare", lambda: None, lambda: None)
    e("v_mul_u32_u24 v2, 7282, v1"); e("v_lshrrev_b32 v2, 16, v2")
    e("v_mul_u32_u24 v3, 9, v2"); e("v_sub_u32 v3, v1, v3"); e("v_min_u32 v2, 6, v2")
    e(f"s_mul_i32 s3, s{S_WAVE}, 7"); e("v_add_u32 v2, s3, v2"); e("v_mul_u32_u24 v2, 9216, v2"); e("v_lshl_add_u32 v2, v3, 7, v2")
    e(f"s_mul_i32 s3, s{S_XCD}, 1152"); e(f"s_add_u32 s3, s3, {R1*9216}"); e("v_add_u32 v2, s3, v2")
    e(f"s_mov_b32 s4, {-(-(R2-R1)//28)}")
    k.srd(8, P_W1, 0, SIZE['w1'])
    k.label("pfloop")
    e("buffer_load_dword v4, v2, s[8:11], 0 offen")
    e(f"v_add_u32 v2, {28*9216}, v2")
    e("s_waitcnt vmcnt(1)")
    e("s_sub_u32 s4, s4, 1"); e("s_cmp_lg_u32 s4, 0"); e(f"s_cbranch_scc1 {k.L('pfloop')}")
    e("s_waitcnt vmcnt(0)")
    st(k, 8)
    e(f"s_branch {k.L('phase2')}")

def attn(k):
    e = k.e
    SQ, SX, SK, SV, SO = 8, 12, 16, 20, 24
    sOQ, sOQ2, sOX, sOKV, sW4, sW3, sOB, sNV, sHQ = 68, 69, 70, 71, 72, 73, 74, 75, 76
    sKVH, sRT0, sRH = 32, 33, 34
    QS = 28672
    KR, VR = 98304, 0
    vQA, vQB, vLIN, vKE, vKO, vPF, vTD = 4, 5, 6, 7, 8, 9, 21
    vXN = 16
    RQ, RX = 10, 14
    RK, RV = 22, 26
    LS, NM, QF, SS = 34, 40, 64, 160
    FK, FV = 192, 224
    DX = OPT("dx", 4)
    k.label("attn")
    k.vm = []; k.lg = []
    touch_code(k, "attn", 32, 2)
    e(f"s_cmp_ge_u32 s{S_SLOT}, 11"); e("s_cselect_b32 s3, 1, 0")
    e("s_mul_i32 s4, s3, 11"); e(f"s_sub_u32 s4, s{S_SLOT}, s4")
    e(f"s_lshl_b32 s5, s{S_XCD}, 1"); e(f"s_add_u32 s{sKVH}, s5, s3")
    e(f"s_and_b32 s{sHQ}, s{S_WAVE}, 1"); e(f"s_lshr_b32 s{sRH}, s{S_WAVE}, 1")
    e(f"s_lshl_b32 s{sW4}, s{S_WAVE}, 12")
    e(f"s_mul_i32 s{sW3}, s{S_WAVE}, 3072"); e(f"s_add_u32 s{sW3}, s{sW3}, 16384")
    e(f"s_lshl_b32 s{sOQ}, s{sKVH}, 9")
    e(f"s_lshl_b32 s3, s{S_WAVE}, 16"); e(f"s_add_u32 s{sOQ}, s{sOQ}, s3")
    e(f"s_add_u32 s{sOQ2}, s{sOQ}, {4*8192-2048}")
    e(f"s_mul_i32 s{sRT0}, s4, 12")
    e(f"v_lshlrev_b32 v{vLIN}, 4, v1")
    e("v_lshrrev_b32 v46, 5, v1"); e("v_and_b32 v47, 31, v1")
    e("v_lshlrev_b32 v48, 2, v46"); e("v_xor_b32 v48, v47, v48"); e("v_lshlrev_b32 v48, 4, v48")
    e(f"v_lshl_add_u32 v{vQA}, v46, 13, v48")
    e(f"v_xor_b32 v{vQB}, 128, v{vQA}"); e(f"v_add_u32 v{vQB}, {2*8192-1024}, v{vQB}")
    def wq(n):
        slot = (n % 5)*QS
        L = [([f"s_add_u32 m0, s{sW4}, {slot}"], None)]
        for i in range(4):
            v = vQA if i % 2 == 0 else vQB
            so = sOQ if i < 2 else sOQ2
            hs = [f"s_add_u32 s{sOQ}, s{sOQ}, {32*8192}"] if i == 2 else []
            L.append((hs, (lambda v=v, so=so, i=i: k.vmem(f"buffer_load_dwordx4 v{v}, s[{SQ}:{SQ+3}], s{so} offen offset:{1024*i}{NT if (n > 6 or n < 2 or not OPT('qt', 0)) else ''} lds", ("w", n)))))
        L.append(([f"s_add_u32 s{sOQ2}, s{sOQ2}, {32*8192}"], None))
        return L
    def xn(n):
        slot = (n % 5)*QS
        L = [([f"s_add_u32 m0, s{sW3}, {slot}"], None)]
        for i in range(3):
            L.append(([], (lambda i=i: k.vmem(f"buffer_load_dwordx4 v{vXN+i}, s[{SX}:{SX+3}], s{sOX} offen offset:{1024*i}{SC} lds", ("x", n)))))
        L.append(([f"s_add_u32 s{sOX}, s{sOX}, {128*1024}"], None))
        return L
    def kvdma(which, s):
        base = KR + ((s + 3) % 4)*16384 if which == "K" else VR + (s % 4)*16384
        srd = SK if which == "K" else SV
        L = [([f"s_add_u32 m0, s{sW4}, {base}"], None), ([f"s_add_u32 s3, s{sOKV}, {s*16384}"], None)]
        for i in range(4):
            v = vKE if i % 2 == 0 else vKO
            L.append(([], (lambda v=v, i=i: k.vmem(f"buffer_load_dwordx4 v{v}, s[{srd}:{srd+3}], s3 offen offset:{1024*i}{NT} lds", (which, s)))))
        return L
    def hook_a():
        k.srd(SQ, P_WQ, 0, SIZE['wq'])
        e(f"s_mul_i32 s3, s{S_WAVE}, 3"); e(f"s_add_u32 s3, s3, s{sRT0}"); e(f"s_lshl_b32 s{sOX}, s3, 10")
        for i in range(3):
            e(f"s_cmp_lt_u32 s3, {128-i}"); e(f"s_cselect_b32 s4, 0, {OOB - (1<<24)}"); e(f"v_add_u32 v{vXN+i}, s4, v{vLIN}")
        e(f"s_lshl_b32 s{sOKV}, s{sKVH}, 19"); e(f"s_add_u32 s{sOKV}, s{sOKV}, {1536*256}"); e(f"s_add_u32 s{sOKV}, s{sOKV}, s{sW4}")
        e(f"s_lshl_b32 s3, s{sKVH}, 1"); e(f"s_add_u32 s3, s3, s{sHQ}"); e("s_lshl_b32 s3, s3, 9")
        e(f"s_mul_i32 s31, s{sRH}, 6"); e(f"s_add_u32 s31, s31, s{sRT0}")
        e("s_add_u32 s3, s3, s31"); e(f"s_lshl_b32 s{sOB}, s3, 10")
        e(f"s_sub_u32 s{sNV}, 128, s31")
        e("v_lshrrev_b32 v46, 4, v1"); e("v_and_b32 v47, 15, v1")
        e("v_lshlrev_b32 v48, 1, v46"); e("v_xor_b32 v48, v47, v48"); e("v_lshlrev_b32 v48, 4, v48")
        e(f"v_lshl_add_u32 v{vKE}, v46, 8, v48"); e(f"v_xor_b32 v{vKO}, 128, v{vKE}")
        e("v_and_b32 v48, 7, v47"); e("v_lshlrev_b32 v48, 1, v48"); e("v_xor_b32 v48, v46, v48"); e("v_lshlrev_b32 v48, 4, v48")
        e("v_lshl_add_u32 v48, v47, 8, v48"); e(f"v_add_u32 v48, {KR}, v48")
        for j in range(4): e(f"v_xor_b32 v{RK+j}, {64*j}, v48")
        e("v_lshrrev_b32 v48, 2, v1"); e("v_and_b32 v49, 7, v48"); e("v_lshlrev_b32 v49, 5, v49")
        e("v_lshl_add_u32 v49, v48, 8, v49"); e("v_and_b32 v50, 3, v1"); e("v_lshl_add_u32 v49, v50, 3, v49")
        for et in range(8): e(f"v_xor_b32 v{RV+et}, {32*et}, v49")
        e("v_bfe_u32 v48, v1, 2, 2"); e("v_lshl_add_u32 v49, v46, 3, v48"); e("v_lshlrev_b32 v49, 9, v49")
        e("v_lshl_add_u32 v49, v48, 6, v49"); e("v_lshl_add_u32 v49, v50, 4, v49")
        e(f"s_lshl_b32 s3, s{sHQ}, 8"); e("v_add_u32 v49, s3, v49")
        for j in range(4): e(f"v_xor_b32 v{RQ+j}, {64*j}, v49")
        e(f"s_mul_i32 s3, s{sRH}, 6144"); e("s_add_u32 s3, s3, 16384"); e(f"v_add_u32 v{RX}, s3, v{vLIN}")
        for t in range(6): e(f"v_mov_b32 v{LS+t}, 0")
        e(f"s_mul_i32 s3, s{S_WAVE}, 3"); e(f"s_add_u32 s3, s3, s{sRT0}"); e("s_lshl_b32 s3, s3, 1")
        e("v_min_u32 v46, 5, v1"); e("v_add_u32 v46, s3, v46"); e("v_min_u32 v46, 255, v46")
        e(f"s_lshl_b32 s3, s{S_XCD}, 12"); e(f"s_add_u32 s3, s3, {WS_F0}"); e("v_lshlrev_b32 v46, 4, v46"); e("v_add_u32 v46, s3, v46")
        for n in range(EW): run_now(k, wq(n))
    def w3_b():
        e(f"s_mul_i32 s3, s{sRT0}, 5462"); e("s_lshr_b32 s3, s3, 10")
        e("v_add_u32 v56, s3, v1"); e("v_lshrrev_b32 v57, 2, v56"); e("v_and_b32 v56, 3, v56"); e("v_lshlrev_b32 v56, 7, v56")
        e("v_lshl_add_u32 v56, v57, 13, v56"); e(f"s_lshl_b32 s3, s{sKVH}, 9"); e(f"s_add_u32 s3, s3, {64*8192}")
        k.vmem(f"buffer_load_dword v54, v56, s[{SQ}:{SQ+3}], s3 offen", "touch")
    QT = OPT("qt", 0)
    ln_phase(k, "attn", hook_a, w3_b if QT else (lambda: None))
    HP = OPT("hp", 3)
    for n in range(EW, HP): run_now(k, wq(n))
    k.srd(SX, P_WS, WS_XN, XN_BYTES)
    k.srd(SK, P_K, 0, SIZE['k']); k.srd(SV, P_V, 0, SIZE['v']); k.srd(SO, P_WS, WS_O, O_BYTES)
    poll(k, "attn_p0", 46, 47)
    st(k, 4)
    for n in range(2): run_now(k, xn(n))
    def qacc(t, eb): return QF + ((t*4 + (eb >> 1))*2 + (eb & 1))*4
    def QA(buf, eb): return buf*56 + 4*eb
    def QB(buf, t): return buf*56 + 32 + 4*t
    cur = [0]
    def qreads(n):
        buf = n & 1; off = (n % 5)*QS - cur[0]
        assert 0 <= off and off + QS <= 65536
        L = []
        for t in range(6):
            L.append(f"ds_read_b128 {ar(QB(buf,t),4)}, v{RX} offset:{off + 1024*t}")
        for eb in range(8):
            for h in range(2):
                L.append(f"ds_read_b64_tr_b16 {ar(QA(buf,eb)+2*h,2)}, v{RQ+(eb>>1)} offset:{off + h*2048 + (eb&1)*8}")
        return L
    def rebase(n):
        off = (n % 5)*QS - cur[0]
        if 0 <= off and off + QS <= 65536: return []
        d = off; cur[0] += d
        return [f"v_add_u32 v{r}, {d & 0xffffffff}, v{r}" for r in [RQ, RQ+1, RQ+2, RQ+3, RX]]
    k.wait(vm=[("x", 0)]); e("s_barrier")
    for t in qreads(0): e(t)
    if HP <= 2: run_now(k, wq(2))
    run_now(k, xn(2))
    k.wait(vm=[("x", 1)]); e("s_waitcnt lgkmcnt(0)"); e("s_barrier")
    st(k, 5)
    def kread(b, n):
        kb, j = n >> 2, n & 3
        off = ((b//2 + 3) % 4)*16384 + ((b & 1)*2 + kb)*4096
        return lambda: k.dsop(f"ds_read_b128 {ar(FK+4*n,4)}, v{RK+j} offset:{off}", ("k", b, n))
    def vread(b, et, h):
        off = ((b//2) % 4)*16384 + (b & 1)*8192 + h*4096
        return lambda: k.dsop(f"ds_read_b64_tr_b16 {ar(FV+4*et+2*h,2)}, v{RV+et} offset:{off}", ("v", b, et))
    extra = {13: kvdma("K", 0), 14: kvdma("K", 1) + kvdma("K", 2), 15: kvdma("V", 0) + kvdma("K", 3),
             16: kvdma("V", 1) + kvdma("V", 2), 17: kvdma("V", 3)}
    for n in range(18):
        buf = n & 1
        g = Gaps(k); u = 0
        for eb in range(8):
            for t in range(6):
                c = vr(qacc(t, eb), 4)
                g.mfma(u, f"{MF} {c}, {ar(QA(buf,eb),4)}, {ar(QB(buf,t),4)}, {c if n else 0}"); u += 1
        ramp = {0: [("w", 3), ("x", 3), ("w", 4)], 1: [("x", 4), ("w", 5), ("x", 5)], 2: [("w", 6), ("x", 6), ("w", 7)]}
        todo = ramp.get(n, [("x", n + 4), ("w", n + 5)])
        L = []
        for (c_, m) in todo:
            if m < 18 and not (c_ == "w" and m < HP): L += wq(m) if c_ == "w" else xn(m)
        L += extra.get(n, [])
        nd = sum(1 for hs, b in L if b)
        sp = max(4, min(6, 44 // max(nd, 1)))
        dg = [3 + sp*i for i in range(nd)]
        assert not dg or dg[-1] <= 45, (n, dg)
        place(g, L, dg)
        rg = [x for x in range(48) if x not in dg]
        if n < 17:
            for i, t in enumerate(qreads(n + 1)): g.body(rg[i], t)
            if n < 16:
                for i, t in enumerate(rebase(n + 2)): g.body(rg[22 + i], t)
        if n < 16:
            g.head(46, (lambda n=n: (k.wait(vm=[("x", n + 2), ("w", n + 2)]), e("s_waitcnt lgkmcnt(0)"))))
            g.head(47, "s_barrier")
        elif n == 16:
            g.head(46, (lambda: (k.wait(vm=[("K", 0)]), e("s_waitcnt lgkmcnt(0)"))))
            g.head(47, "s_barrier")
        else:
            for i in range(4): g.body(rg[30 + 2*i], kread(0, i))
        g.emit(0, 48)
    st(k, 6)
    for t in range(6):
        for j in range(4):
            src = QF + (t*4 + j)*8; dst = QF + (t*4 + j)*4
            for p in range(4): e(f"v_cvt_pk_bf16_f32 v{dst+p}, v{src+2*p}, v{src+2*p+1}")
    k.wait(vm=[("K", 1), ("V", 0)]); e("s_barrier")
    def Q(t, j): return QF + (t*4 + j)*4
    def S(b, t): return SS + (b & 1)*48 + t*8
    def O(t, et): return ((t*4 + (et >> 1))*2 + (et & 1))*4
    g = Gaps(k)
    U0 = 44
    for b in range(16):
        base = 96*b
        for n in range(8):
            kb, j = n >> 2, n & 3
            for t in range(6):
                d = vr(S(b, t) + 4*kb, 4)
                c = d if j else (vr(NM + 4*t, 4) if b else "0")
                g.mfma(base + 6*n + t, f"{MF} {d}, {ar(FK+4*n,4)}, {vr(Q(t,j),4)}, {c}")
            g.head(base + 6*n - 1, (lambda b=b, n=n: k.wait(lg=[("k", b, n)])))
            if not (b == 0 and n < 4): g.body(base + 4*n - 13, kread(b, n))
        pb = base + 96 + 48
        for et in range(8):
            for t in range(6):
                d = ar(O(t, et), 4)
                g.mfma(pb + 6*et + t, f"{MF} {d}, {ar(FV+4*et,4)}, {vr(S(b,t),4)}, {d if b else 0}")
            g.head(pb + 6*et - 1, (lambda b=b, et=et: k.wait(lg=[("v", b, et)])))
            for h in range(2): g.body(base + 96 + 4*(8 + 2*et + h) - 13, vread(b, et, h))
    for b in range(16):
        base = 96*b + U0
        for t in range(6):
            s = S(b, t)
            for r in range(8):
                m = 8*t + r
                ue, ua = base + 2*m, base + 2*m + 1
                if b == 0: ue, ua = max(ue, 48), max(ua, 48)
                g.body(ue, f"v_exp_f32 v{s+r}, v{s+r}")
                g.body(ua, f"v_add_f32 v{LS+t}, v{LS+t}, v{s+r}")
        for t in range(6):
            s = S(b, t)
            for c in range(4):
                g.body(base + 5 + 4*(4*t + c), f"v_cvt_pk_bf16_f32 v{s+c}, v{s+2*c}, v{s+2*c+1}")
    for s in range(7):
        ub = 96*(2*s + 2) + 95
        need = [("V", s + 1)] + ([("K", s + 2)] if s + 2 < 8 else [])
        g.head(ub - 1, (lambda need=need: k.wait(vm=need)))
        g.head(ub - 1, "s_barrier")
        if s + 4 < 8:
            L = kvdma("K", s + 4) + kvdma("V", s + 4)
            for i, (hs, bd) in enumerate(L):
                uu = ub + 1 + 8*i
                for h in hs: g.head(uu, h)
                if bd: g.b.setdefault(uu, []).insert(0, bd)
    k.srd(SQ, P_W2, 0, SIZE['w2']); k.srd(SX, P_W1, R2*9216, SIZE['w1'] - R2*9216)
    e(f"s_lshl_b32 s3, s2, 15"); e(f"v_lshlrev_b32 v{vPF}, 7, v0"); e(f"v_add_u32 v{vPF}, s3, v{vPF}")
    nw1 = -(-(2048 - R2)*72 // 45056)
    per = [int(x) for x in OPTS("pfper", "0,2,4,5,6,8,10,12").split(",")]
    assert len(per) == nw1 + 6
    seq = [(SX, r) for r in range(nw1)] + [(SX, 0), (SX, 0)] + [(SQ, r) for r in range(4)]
    cur_r = 0
    for i, ((srd, r), p) in enumerate(zip(seq, per)):
        if r != cur_r:
            g.body(96*p - 4, f"v_add_u32 v{vPF}, {((r - cur_r)*45056*128) & 0xffffffff}, v{vPF}"); cur_r = r
        if i == nw1:
            for q, h in enumerate([f"s_mov_b32 s{SX}, s{P_WO}", f"s_mov_b32 s{SX+1}, s{P_WO+1}", f"s_mov_b32 s{SX+2}, {SIZE['wo']}"]):
                g.head(96*p - 12 + 2*q, h)
        if i == nw1 + 1:
            for q, h in enumerate([f"s_mov_b32 s{SX}, s{P_X}", f"s_mov_b32 s{SX+1}, s{P_X+1}", f"s_mov_b32 s{SX+2}, {SIZE['x']}"]):
                g.head(96*p - 12 + 2*q, h)
        g.b.setdefault(96*p + 2, []).insert(0, (lambda srd=srd: k.vmem(f"buffer_load_dword v{vTD}, v{vPF}, s[{srd}:{srd+3}], 0 offen", "touch")))
    g.emit(-1, 48)
    for t in range(6):
        s = S(0, t); m = NM + 4*t
        e(f"v_max3_f32 v{m}, v{s}, v{s+1}, v{s+2}"); e(f"v_max3_f32 v{m+1}, v{s+3}, v{s+4}, v{s+5}")
        e(f"v_max3_f32 v{m}, v{m}, v{s+6}, v{s+7}")
    for t in range(6):
        m = NM + 4*t
        e(f"v_max_f32 v{m}, v{m}, v{m+1}")
    for sw in ["v_permlane32_swap_b32", "v_permlane16_swap_b32"]:
        for t in range(6): e(f"v_mov_b32 v{NM+4*t+1}, v{NM+4*t}")
        for t in range(6): e(f"{sw} v{NM+4*t}, v{NM+4*t+1}")
        for t in range(6): e(f"v_max_f32 v{NM+4*t}, v{NM+4*t}, v{NM+4*t+1}")
    for t in range(6):
        m = NM + 4*t
        for r in (1, 2, 3, 0): e(f"v_mul_f32 v{m+r}, -1.0, v{m}")
    for t in range(6):
        s = S(0, t)
        for r in range(0, 8, 2): e(f"v_pk_add_f32 {vr(s+r,2)}, {vr(s+r,2)}, {vr(NM+4*t,2)}")
    g.emit(48, 96*17)
    st(k, 7)
    for sw in ["v_permlane32_swap_b32", "v_permlane16_swap_b32"]:
        for t in range(6): e(f"v_mov_b32 v{NM+t}, v{LS+t}")
        for t in range(6): e(f"{sw} v{LS+t}, v{NM+t}")
        for t in range(6): e(f"v_add_f32 v{LS+t}, v{LS+t}, v{NM+t}")
    for t in range(6): e(f"v_rcp_f32 v{NM+2*t}, v{LS+t}")
    for t in range(6):
        if t >= 2:
            e(f"s_cmp_le_u32 s{sNV}, {t}"); e(f"s_cbranch_scc1 {k.L('attn_done')}")
        for j in range(4):
            T = SS + ((t*4 + j) % 8)*8
            for r in range(8): e(f"v_accvgpr_read_b32 v{T+r}, a{O(t,2*j)+r}")
            for r in range(0, 8, 2): e(f"v_pk_mul_f32 {vr(T+r,2)}, {vr(T+r,2)}, {vr(NM+2*t,2)} op_sel_hi:[1,0]")
            for p in range(4): e(f"v_cvt_pk_bf16_f32 v{T+p}, v{T+2*p}, v{T+2*p+1}")
            e(f"s_add_u32 s3, s{sOB}, {j*131072 + t*1024}")
            k.vmem(f"buffer_store_dwordx4 {vr(T,4)}, v{vLIN}, s[{SO}:{SO+3}], s3 offen sc1")
    k.label("attn_done")
    st(k, 8)

ACC2 = 112
def acc2(db, sb): return ACC2 + (sb >> 1)*72 + db*8 + (sb & 1)*4
S_ROLE, S_SB, S_DB, S_RH, S_KP, S_TILE = 29, 30, 31, 32, 33, 34
SA, SB_, SP, SX2, SO2 = 8, 12, 16, 20, 24
sOA, sOB2, sM0A, sM0B, sCNT2 = 68, 69, 70, 71, 72
sPST, sPLD, sFST, sFLD, sXO, sOWN = 75, 76, 77, 78, 35, 79
vL2 = 4
XA, vXW, vXR = 30, 32, 33

def epi_setup(k):
    e = k.e
    k.srd(SX2, P_X, 0, SIZE['x']); k.srd(SO2, P_OUT, 0, SIZE['out'])
    e(f"s_lshl_b32 s3, s{S_RH}, 1"); e(f"s_add_u32 s3, s3, s{S_KP}")
    e(f"s_cmp_eq_u32 s3, s{S_ROLE}"); e(f"s_cselect_b32 s{sOWN}, 1, 0")
    e(f"s_lshl_b32 s5, s{S_TILE}, 2"); e("s_add_u32 s3, s3, s5")
    e("s_lshl_b32 s4, s3, 7"); e(f"s_lshl_b32 s6, s{S_ROLE}, 2"); e(f"s_add_u32 s{sFST}, s4, s6"); e(f"s_add_u32 s{sFST}, s{sFST}, {WS_F}")
    e("s_lshl_b32 s3, s3, 2"); e(f"s_add_u32 s3, s3, s{S_ROLE}"); e(f"s_mul_i32 s{sPST}, s3, 9216")
    e(f"s_add_u32 s5, s5, s{S_ROLE}"); e(f"s_lshl_b32 s{sFLD}, s5, 7"); e(f"s_add_u32 s{sFLD}, s{sFLD}, {WS_F}"); e(f"s_mul_i32 s5, s5, {4*9216}")
    e(f"s_lshl_b32 s3, s{S_WAVE}, 10"); e(f"s_add_u32 s{sPLD}, s5, s3")
    e(f"s_lshl_b32 s3, s{S_SB}, 2"); e(f"s_add_u32 s3, s3, s{S_ROLE}"); e(f"s_mul_i32 s3, s3, {32*1152}")
    e(f"s_mul_i32 s4, s{S_DB}, 288"); e("s_add_u32 s3, s3, s4"); e(f"s_lshl_b32 s4, s{S_WAVE}, 5"); e(f"s_add_u32 s{sXO}, s3, s4")
    e("v_and_b32 v34, 15, v1"); e("v_mul_u32_u24 v34, 1152, v34"); e("v_lshrrev_b32 v35, 4, v1")
    e(f"v_lshl_add_u32 v{XA}, v35, 3, v34"); e(f"v_add_u32 v{XA+1}, {16*1152}, v{XA}")
    e(f"s_mul_i32 s3, s{S_WAVE}, 18432"); e(f"v_add_u32 v{vXW}, s3, v{vL2}")
    e(f"s_xor_b32 s4, s{S_WAVE}, 2"); e(f"s_mul_i32 s3, s4, 18432"); e(f"v_add_u32 v{vXR}, s3, v{vL2}")

def mainloop2(k, role):
    e = k.e
    isA = role == "A"
    vD, vP, RS, RP = 5, 10, 12, 14
    k.label("role" + role)
    k.vm = ["own"]; k.lg = []
    NK = 64 if isA else 72
    e(f"s_and_b32 s6, s{S_ROLE}, 1"); e(f"s_mul_i32 s3, s6, {NK}"); e(f"s_mov_b32 s{sCNT2}, {NK//8}")
    e(f"s_add_u32 s3, s3, s{S_KP}")
    e(f"s_mul_i32 s{sM0A}, s{S_KP}, 10240"); e(f"s_mul_i32 s4, s{S_RH}, 5120"); e(f"s_add_u32 s{sM0A}, s{sM0A}, s4")
    if isA:
        k.srd(SA, P_WO, 0, SIZE['wo']); k.srd(SB_, P_WS, WS_O, O_BYTES)
        e(f"s_mul_i32 s{sOA}, s3, {32*1152}"); e(f"s_mul_i32 s4, s{S_RH}, {16*1152}"); e(f"s_add_u32 s{sOA}, s{sOA}, s4")
        e(f"s_mul_i32 s4, s{S_DB}, 288"); e(f"s_add_u32 s{sOA}, s{sOA}, s4")
        for i in range(5):
            e(f"v_add_u32 v34, {64*i}, v1")
            e("v_mul_u32_u24 v35, 3641, v34"); e("v_lshrrev_b32 v35, 16, v35")
            e(f"v_mul_u32_u24 v35, {1152-288}, v35"); e(f"v_lshl_add_u32 v{vD+i}, v{1 if i < 4 else 34}, 4, v35")
        e(f"v_mov_b32 v36, {OOB - (1<<24)}"); e("v_cmp_gt_u32 vcc, 32, v1"); e(f"v_cndmask_b32 v{vD+4}, v36, v{vD+4}, vcc")
        stepA = 64*1152
        e(f"s_lshl_b32 s4, s3, 7"); e(f"s_lshl_b32 s5, s{S_SB}, 3"); e("s_add_u32 s4, s4, s5")
        e(f"s_lshl_b32 s5, s{S_RH}, 2"); e("s_add_u32 s4, s4, s5"); e(f"s_lshl_b32 s{sOB2}, s4, 10")
        stepB = 2*128*1024
    else:
        k.srd(SA, P_WS, WS_U, U_BYTES); k.srd(SB_, P_W2, 0, SIZE['w2'])
        e("s_mul_i32 s4, s3, 36"); e(f"s_mul_i32 s5, s{S_DB}, 9"); e("s_add_u32 s4, s4, s5")
        e(f"s_mul_i32 s5, s{S_RH}, 5"); e("s_add_u32 s4, s4, s5"); e(f"s_lshl_b32 s{sOA}, s4, 10")
        stepA = 2*36*1024
        e(f"s_lshl_b32 s{sOB2}, s3, 17"); e(f"s_lshl_b32 s4, s{S_SB}, 8"); e(f"s_add_u32 s{sOB2}, s{sOB2}, s4")
        e(f"s_lshl_b32 s4, s{S_RH}, 7"); e(f"s_add_u32 s{sOB2}, s{sOB2}, s4")
        e("v_lshrrev_b32 v34, 3, v1"); e("v_and_b32 v35, 6, v34"); e("v_and_b32 v36, 7, v1"); e("v_xor_b32 v35, v35, v36")
        e("v_lshlrev_b32 v35, 4, v35"); e(f"v_lshl_add_u32 v{vP}, v34, 12, v35")
        e(f"v_add_u32 v{vP+1}, {8*4096-1024}, v{vP}")
        stepB = 64*4096
        e(f"s_lshl_b32 s{sM0B}, s{S_WAVE}, 12"); e(f"s_add_u32 s{sM0B}, s{sM0B}, 81920")
    def FA(buf, db): return buf*36 + 4*db
    def FB(n, sb): return 72 + (n % (4 if isA else 2))*16 + 4*sb
    def dmaA(n):
        slot = (n % 4)*20480
        L = [([f"s_add_u32 m0, s{sM0A}, {slot}"], None)]
        for i in range(5):
            if isA: v = vD + i
            else: v = vL2 if i < 4 else vD + 1
            hs = [f"s_add_u32 m0, s{sM0A}, {slot+4096}"] if i == 4 else []
            fl = "" if isA else SC
            L.append((hs, (lambda v=v, i=i: k.vmem(f"buffer_load_dwordx4 v{v}, s[{SA}:{SA+3}], s{sOA} offen offset:{1024*(i&3)}{fl} lds", ("A", n)))))
        L.append(([f"s_add_u32 s{sOA}, s{sOA}, {stepA}"], None))
        return L
    def dmaB(n):
        L = []
        if isA:
            for sb in range(4):
                L.append(([], (lambda sb=sb: k.vmem(f"buffer_load_dwordx4 {ar(FB(n,sb),4)}, v{vP+(sb>>1)}, s[{SB_}:{SB_+3}], s{sOB2} offen offset:{1024*(sb&1)}{SC}", ("B", n)))))
            L.append(([f"s_add_u32 s{sOB2}, s{sOB2}, {stepB}"], None))
        else:
            slot = (n % 4)*16384
            L.append(([f"s_add_u32 m0, s{sM0B}, {slot}"], None))
            for i in range(4):
                hs = [f"s_add_u32 s{sOB2}, s{sOB2}, {16*4096-2048}"] if i == 2 else []
                L.append((hs, (lambda i=i: k.vmem(f"buffer_load_dwordx4 v{vP+(i&1)}, s[{SB_}:{SB_+3}], s{sOB2} offen offset:{1024*i} lds", ("B", n)))))
            L.append(([f"s_add_u32 s{sOB2}, s{sOB2}, {stepB-(16*4096-2048)}"], None))
        return L
    def reads(n):
        buf = n & 1; sl = n % 4
        r = RS + (1 if sl == 3 else 0); off = 0 if sl == 3 else sl*20480
        L = []
        if isA:
            for db in range(9):
                for h in range(2):
                    L.append(f"ds_read_b64_tr_b16 {ar(FA(buf,db)+2*h,2)}, v{r} offset:{off + db*32 + h*5120}")
        else:
            for sb in range(4):
                for h in range(2):
                    L.append(f"ds_read_b64_tr_b16 {ar(FB(n,sb)+2*h,2)}, v{RP+sb} offset:{sl*16384 + h*2048}")
            for db in range(9):
                L.append(f"ds_read_b128 {ar(FA(buf,db),4)}, v{r} offset:{off + db*1024}")
        return L
    W = dmaA if isA else dmaB
    e("s_barrier")
    run_now(k, W(0))
    if isA:
        e(f"s_lshl_b32 s4, s{S_KP}, 11"); e(f"v_add_u32 v{vP}, s4, v{vL2}"); e(f"v_xor_b32 v{vP+1}, 2048, v{vP}")
        e("v_lshrrev_b32 v34, 2, v1"); e("v_mul_u32_u24 v34, 288, v34"); e("v_and_b32 v35, 3, v1"); e("v_lshl_add_u32 v34, v35, 3, v34")
        e(f"s_mul_i32 s4, s{S_KP}, 10240"); e(f"v_add_u32 v{RS}, s4, v34"); e(f"v_add_u32 v{RS+1}, 61440, v{RS}")
        e(f"s_lshl_b32 s3, s{S_SB}, 7"); e(f"s_lshl_b32 s4, s{S_RH}, 6"); e("s_add_u32 s3, s3, s4")
        e("v_bfe_u32 v34, v1, 3, 1"); e("v_mul_u32_u24 v34, 63, v34"); e("v_add_u32 v34, s3, v34")
        e("v_mul_u32_u24 v34, 1366, v34"); e("v_lshrrev_b32 v34, 18, v34")
        e("v_and_b32 v35, 1, v1"); e("v_mad_u32_u24 v34, v35, 11, v34")
        e("v_bfe_u32 v35, v1, 1, 2"); e("v_lshl_add_u32 v34, v34, 3, v35")
        e(f"s_lshl_b32 s3, s6, 2"); e("v_add_u32 v34, s3, v34")
    else:
        e(f"s_mov_b32 s5, {OOB - (1<<24)}"); e(f"s_cmp_eq_u32 s{S_RH}, 0"); e(f"s_cselect_b32 s4, 4096, s5"); e(f"v_add_u32 v{vD+1}, s4, v{vL2}")
        e(f"s_mul_i32 s4, s{S_KP}, 10240"); e(f"v_add_u32 v{RS}, s4, v{vL2}"); e(f"v_add_u32 v{RS+1}, 61440, v{RS}")
        e("v_lshrrev_b32 v34, 2, v1"); e("v_bfe_u32 v35, v34, 1, 2"); e(f"s_lshl_b32 s4, s{S_KP}, 1"); e("v_xor_b32 v35, s4, v35")
        e("v_lshlrev_b32 v35, 5, v35"); e("v_lshl_add_u32 v35, v34, 7, v35"); e("v_and_b32 v36, 3, v1"); e("v_lshl_add_u32 v35, v36, 3, v35")
        e(f"v_add_u32 v35, s{sM0B}, v35")
        for sb in range(4): e(f"v_xor_b32 v{RP+sb}, {32*sb}, v35")
        k.srd(SP, P_B2, 0, SIZE['b2'])
        e(f"s_lshl_b32 s4, s{S_KP}, 2"); e(f"s_or_b32 s4, s4, s{S_ROLE}"); e("s_cmp_eq_u32 s4, 2"); e(f"s_cselect_b32 s{SP+2}, s{SP+2}, 0")
        e(f"s_lshl_b32 s4, s{S_SB}, 8"); e(f"s_lshl_b32 s5, s{S_RH}, 7"); e("s_add_u32 s4, s4, s5")
        e("v_and_b32 v28, 15, v1"); e("v_lshlrev_b32 v28, 1, v28")
        for sb in range(4):
            k.vmem(f"buffer_load_ushort v{24+sb}, v28, s[{SP}:{SP+3}], s4 offen offset:{32*sb}", "b2")
        e(f"s_mul_i32 s3, s{S_DB}, 144"); e("v_bfe_u32 v34, v1, 4, 1"); e("v_mul_u32_u24 v34, 143, v34"); e("v_add_u32 v34, s3, v34")
        e("v_mul_u32_u24 v34, 1366, v34"); e("v_lshrrev_b32 v34, 18, v34")
        e("v_and_b32 v35, 15, v1"); e("v_min_u32 v35, 11, v35"); e("v_mul_u32_u24 v36, 43, v35"); e("v_lshrrev_b32 v36, 7, v36")
        e("v_mul_u32_u24 v37, 3, v36"); e("v_sub_u32 v35, v35, v37")
        e("v_mad_u32_u24 v34, v35, 3, v34"); e("v_add_u32 v34, 22, v34"); e("v_lshl_add_u32 v34, v34, 3, v36")
        e(f"s_lshl_b32 s3, s6, 2"); e("v_add_u32 v34, s3, v34")
    e("v_lshlrev_b32 v38, 7, v34"); e(f"v_add_u32 v38, {WS_F1}, v38")
    epi_setup(k)
    k.wait(vm=["own"])
    publish(k, "role" + role)
    st(k, 0)
    run_now(k, W(1)); run_now(k, W(2))
    if isA:
        run_now(k, W(3))
        for r in range(0, 144, 2): e(f"v_pk_mov_b32 {vr(ACC2+r,2)}, 0, 0")
    poll(k, "p1" + role, 38, 34)
    st(k, 1)
    if isA:
        for n in range(3): run_now(k, dmaB(n))
    else:
        for n in range(3): run_now(k, dmaA(n))
        run_now(k, dmaB(3)); run_now(k, dmaA(3))
        for sb in range(4): e(f"v_lshlrev_b32 v{40+2*sb}, 16, v{24+sb}")
        for db in range(9):
            for sb in range(4):
                for r in range(0, 4, 2): e(f"v_pk_mov_b32 {vr(acc2(db,sb)+r,2)}, {vr(40+2*sb,2)}, {vr(40+2*sb,2)}")
    k.srd(SP, P_WS, WS_P, P_BYTES)
    if not isA: k.wait(vm=[("A", 0)])
    e("s_barrier")
    for t in reads(0): e(t)
    k.wait(vm=[("B", 1) if isA else ("A", 1)]); e("s_waitcnt lgkmcnt(0)"); e("s_barrier")
    st(k, 2)
    DB = 3 if isA else 4
    e(".p2align 6")
    k.label(f"loop{role}")
    body0 = len(k.lines)
    for n in range(4):
        buf = n & 1
        g = Gaps(k); u = 0
        for db in range(9):
            for sb in range(4):
                c = vr(acc2(db, sb), 4)
                g.mfma(u, f"{MF} {c}, {ar(FA(buf,db),4)}, {ar(FB(n,sb),4)}, {c}"); u += 1
        L = dmaB(n + DB) + dmaA(n + 4)
        dg = [2 + 4*i for i in range(9)]
        pre = []
        if n == 0:
            pre = [f"s_cmp_le_u32 s{sCNT2}, 1", f"s_cselect_b32 s{SA+2}, 0, s{SA+2}"]
            if not isA: pre.append(f"s_cselect_b32 s{SB_+2}, 0, s{SB_+2}")
        elif n == 1 and isA:
            pre = [f"s_cmp_le_u32 s{sCNT2}, 1", f"s_cselect_b32 s{SB_+2}, 0, s{SB_+2}"]
        for i, h in enumerate(pre): g.head(min(i, 1), h)
        place(g, L, dg, min(len(pre), 1))
        rg = [x for x in range(36) if x not in dg]
        for i, t in enumerate(reads(n + 1)): g.body(rg[i], t)
        if n == 3: g.head(28, f"s_sub_u32 s{sCNT2}, s{sCNT2}, 1")
        g.head(35, "s_waitcnt vmcnt(18) lgkmcnt(0)")
        g.head(35, "s_barrier")
        if n == 3:
            g.head(35, f"s_cmp_lg_u32 s{sCNT2}, 0")
            g.head(35, f"s_cbranch_scc1 {k.L('loop'+role)}")
        g.emit(0, 36)
    k.loops.append((body0, len(k.lines)))
    k.vm = []; k.lg = []
    if isA: e(f"s_branch {k.L('epi')}")

def phase2(k):
    e = k.e
    k.label("phase2")
    st_save(k, 9, 0)
    e(f"s_bfe_u32 s{S_ROLE}, s2, 0x20001")
    e("s_and_b32 s3, s2, 1"); e("s_lshl_b32 s3, s3, 3"); e("s_lshr_b32 s4, s2, 5"); e(f"s_add_u32 s{S_SB}, s3, s4")
    e(f"s_bfe_u32 s{S_DB}, s2, 0x20003")
    e(f"s_lshl_b32 s{S_TILE}, s{S_SB}, 2"); e(f"s_add_u32 s{S_TILE}, s{S_TILE}, s{S_DB}")
    e(f"s_and_b32 s{S_RH}, s{S_WAVE}, 1"); e(f"s_lshr_b32 s{S_KP}, s{S_WAVE}, 1")
    e(f"v_lshlrev_b32 v{vL2}, 4, v1")
    e(f"s_cmp_ge_u32 s{S_ROLE}, 2"); e(f"s_cbranch_scc1 {k.L('roleB')}")
    mainloop2(k, "A")
    mainloop2(k, "B")
    k.label("epi")
    st(k, 3)
    T, X, OWNL = 40, 8, 73728
    e("s_nop 3")
    e("s_waitcnt vmcnt(0)"); e("s_barrier")
    for i in range(18): e(f"ds_write_b128 v{vXW}, {vr(ACC2+72+4*i,4)} offset:{1024*i}")
    for j in range(3):
        if j == 2:
            e(f"s_cmp_lg_u32 s{S_WAVE}, 0"); e(f"s_cbranch_scc1 {k.L('nox')}")
        for sb in range(2):
            e(f"buffer_load_dwordx2 {vr(X+4*j+2*sb,2)}, v{XA+sb}, s[{SX2}:{SX2+3}], s{sXO} offen offset:{128*j}")
    k.label("nox")
    e("s_waitcnt lgkmcnt(0)"); e("s_barrier")
    e(f"v_add_u32 v{vXW}, {OWNL}, v{vL2}")
    for i in range(18): e(f"ds_read_b128 {vr(T+4*i,4)}, v{vXR} offset:{1024*i}")
    def reduce(own):
        k.lg = [("r", i) for i in range(18)]
        for db in range(9):
            k.wait(lg=[("r", 2*db + 1)])
            a = ACC2 + 8*db; t = T + 8*db
            for r in range(0, 8, 2): e(f"v_pk_add_f32 {vr(a+r,2)}, {vr(a+r,2)}, {vr(t+r,2)}")
            for p in range(4): e(f"v_cvt_pk_bf16_f32 v{a+p}, v{a+2*p}, v{a+2*p+1}")
            if own:
                k.dsop(f"ds_write_b128 v{vXW}, {vr(a,4)} offset:{1024*db}", "w")
            else:
                if db % 4 == 0 and db: e(f"s_add_u32 s{sPST}, s{sPST}, 4096")
                e(f"buffer_store_dwordx4 {vr(a,4)}, v{vL2}, s[{SP}:{SP+3}], s{sPST} offen offset:{1024*(db&3)} sc1")
    e(f"s_cmp_eq_u32 s{sOWN}, 1"); e(f"s_cbranch_scc1 {k.L('own')}")
    reduce(False)
    e(f"v_mov_b32 v20, s{S_TAG}"); e("v_mov_b32 v21, 0")
    e("s_barrier")
    e("s_waitcnt vmcnt(0)")
    e("s_mov_b64 exec, 1")
    e(f"buffer_store_dword v20, v21, s[{SF}:{SF+3}], s{sFST} offen sc1")
    e("s_mov_b64 exec, -1")
    e(f"s_branch {k.L('pub')}")
    k.label("own")
    reduce(True)
    e("s_waitcnt lgkmcnt(0)"); e("s_barrier")
    k.label("pub")
    st(k, 4)
    k.lg = []
    OW = 184
    e(f"s_lshl_b32 s3, s{S_WAVE}, 10"); e(f"v_add_u32 v{vXW}, s3, v{vXW}")
    for j in range(3): e(f"ds_read_b128 {vr(OW+4*j,4)}, v{vXW} offset:{4096*j}")
    e("s_mov_b32 s4, 0xffff0000")
    e(f"v_mov_b32 v24, {fhex(-LOG2E)}"); e("v_mov_b32 v26, 1.0")
    e("v_and_b32 v22, 3, v1"); e(f"v_cmp_ne_u32 s[62:63], s{S_ROLE}, v22"); e("v_lshlrev_b32 v22, 2, v22"); e(f"v_add_u32 v22, s{sFLD}, v22")
    for i, x in enumerate((1, 2, 3)):
        e(f"s_xor_b32 s3, s{S_ROLE}, {x}"); e("s_mul_i32 s3, s3, 9216"); e(f"s_add_u32 s{68+i}, s3, s{sPLD}")
    poll(k, "p2", 22, 23, "s[62:63]")
    st(k, 5)
    def PR(j, i): return 128 + 12*j + 4*i
    def ploads(j):
        for i in range(3):
            so = f"s{68+i}"
            if j:
                e(f"s_add_u32 s3, s{68+i}, {j*4096}"); so = "s3"
            k.vmem(f"buffer_load_dwordx4 {vr(PR(j,i),4)}, v{vL2}, s[{SP}:{SP+3}], {so} offen sc1", ("p", j))
    def unpack(dst, src):
        for p in range(4):
            e(f"v_lshlrev_b32 v{dst+2*p}, 16, v{src+p}"); e(f"v_and_b32 v{dst+2*p+1}, s4, v{src+p}")
    def padd(d, a, b):
        for r in range(0, 8, 2): e(f"v_pk_add_f32 {vr(d+r,2)}, {vr(a+r,2)}, {vr(b+r,2)}")
    def fin(j, isB):
        Y, U1, U2, U3 = 40 + 32*(j & 1), 48 + 32*(j & 1), 56 + 32*(j & 1), 64 + 32*(j & 1)
        mine = (OW + 4*j, PR(j, 0)); other = (PR(j, 1), PR(j, 2))
        ys, ss = (mine, other) if isB else (other, mine)
        unpack(Y, ys[0]); unpack(U1, ys[1]); padd(Y, Y, U1)
        for r in range(0, 8, 2): e(f"v_pk_mul_f32 {vr(U1+r,2)}, {vr(Y+r,2)}, v[24:25] op_sel_hi:[1,0]")
        for r in range(8): e(f"v_exp_f32 v{U1+r}, v{U1+r}")
        unpack(U2, ss[0]); unpack(U3, ss[1]); padd(U2, U2, U3)
        for r in range(0, 8, 2): e(f"v_pk_add_f32 {vr(U1+r,2)}, {vr(U1+r,2)}, v[26:27] op_sel_hi:[1,0]")
        for r in range(8): e(f"v_rcp_f32 v{U1+r}, v{U1+r}")
        unpack(U3, X + 4*j)
        for r in range(0, 8, 2): e(f"v_pk_mul_f32 {vr(Y+r,2)}, {vr(Y+r,2)}, {vr(U1+r,2)}")
        for r in range(0, 8, 2): e(f"v_pk_fma_f32 {vr(Y+r,2)}, {vr(Y+r,2)}, {vr(U2+r,2)}, {vr(U3+r,2)}")
        for p in range(4): e(f"v_cvt_pk_bf16_f32 v{Y+p}, v{Y+2*p}, v{Y+2*p+1}")
        for sb in range(2):
            k.vmem(f"buffer_store_dwordx2 {vr(Y+2*sb,2)}, v{XA+sb}, s[{SO2}:{SO2+3}], s{sXO} offen offset:{128*j}", "st")
    e(f"s_cmp_lg_u32 s{S_WAVE}, 0"); e(f"s_cbranch_scc1 {k.L('no3')}")
    ploads(2)
    k.label("no3")
    k.vm = []
    ploads(0); ploads(1)
    e("s_waitcnt lgkmcnt(0)")
    e(f"s_cmp_ge_u32 s{S_ROLE}, 2"); e(f"s_cbranch_scc1 {k.L('finB')}")
    for isB in (False, True):
        if isB: k.label("finB")
        k.vm = [("p", 0)]*3 + [("p", 1)]*3
        k.wait(vm=[("p", 0)]); fin(0, isB)
        k.wait(vm=[("p", 1)]); fin(1, isB)
        e(f"s_cmp_lg_u32 s{S_WAVE}, 0"); e(f"s_cbranch_scc1 {k.L('fin')}")
        fin(2, isB)
        if not isB: e(f"s_branch {k.L('fin')}")
    k.label("fin")
    if STAMPS:
        e("s_waitcnt vmcnt(0)"); st(k, 6); st_save(k, 7, 9); st_flush(k)
    e("s_endpgm")

def fused():
    k = EK("fused_kernel", 256, 256, 163840, vgpr=512, sgpr=102, accum=256)
    k.loops = []
    e = k.e
    e("s_cmp_ge_u32 s2, 256"); e(f"s_cbranch_scc1 {k.L('exit')}")
    st(k, 0)
    e("s_load_dwordx16 s[36:51], s[0:1], 0")
    e("s_load_dwordx8 s[52:59], s[0:1], 64")
    e("s_load_dwordx2 s[60:61], s[0:1], 96")
    e(f"s_and_b32 s{S_XCD}, s2, 7"); e(f"s_lshr_b32 s{S_SLOT}, s2, 3")
    e("v_lshrrev_b32 v1, 6, v0"); e("s_nop 0"); e(f"v_readfirstlane_b32 s{S_WAVE}, v1")
    e("v_and_b32 v1, 63, v0")
    e(f"s_cmp_lt_u32 s{S_SLOT}, 22"); e(f"s_cbranch_scc1 {k.L('attn')}")
    e(f"s_cmp_lt_u32 s{S_SLOT}, 31"); e(f"s_cbranch_scc1 {k.L('mlp1')}")
    e(f"s_branch {k.L('spare')}")
    k.label("exit"); e("s_endpgm")
    e(".p2align 6"); spare(k)
    e(".p2align 6"); mlp1(k)
    e(".p2align 6"); attn(k)
    phase2(k)
    k.label("end")
    return k
```

```python
from common import *
from k1 import Gaps, MF, load_args, code_prefetch, P_X, P_WO, P_W2, P_B2, P_OUT, P_DBG, P_WS

NB0 = OPT("nb0", 36)
ACC = 112
def acc(db, sb): return ACC + (sb >> 1)*72 + db*8 + (sb & 1)*4
S_WAVE, S_ROLE, S_SB, S_DB, S_RH, S_KP, S_TILE = 28, 29, 30, 31, 32, 33, 34
SA, SB_, SP, SX, SO = 8, 12, 16, 20, 24
sOA, sOB, sM0A, sM0B, sCNT, sSZA, sSZB = 68, 69, 70, 71, 72, 73, 74
vLIN = 4
sPST, sPLD, sFST, sFLD, sXO, sOWN = 75, 76, 77, 78, 35, 79
SF = 64
XA, vXW, vXR = 30, 32, 33
OOB = 0x7fffff00

def epi_setup(k):
    e = k.e
    k.srd(SX, P_X, 0, SIZE['x']); k.srd(SO, P_OUT, 0, SIZE['out'])
    e(f"s_lshl_b32 s3, s{S_RH}, 1"); e(f"s_add_u32 s3, s3, s{S_KP}")
    e(f"s_cmp_eq_u32 s3, s{S_ROLE}"); e(f"s_cselect_b32 s{sOWN}, 1, 0")
    e(f"s_lshl_b32 s5, s{S_TILE}, 2"); e("s_add_u32 s3, s3, s5")
    e("s_lshl_b32 s4, s3, 7"); e(f"s_lshl_b32 s6, s{S_ROLE}, 2"); e(f"s_add_u32 s{sFST}, s4, s6")
    e("s_lshl_b32 s3, s3, 2"); e(f"s_add_u32 s3, s3, s{S_ROLE}"); e(f"s_mul_i32 s{sPST}, s3, 9216")
    e(f"s_add_u32 s5, s5, s{S_ROLE}"); e(f"s_lshl_b32 s{sFLD}, s5, 7"); e(f"s_mul_i32 s5, s5, {4*9216}")
    e(f"s_lshl_b32 s3, s{S_WAVE}, 10"); e(f"s_add_u32 s{sPLD}, s5, s3")
    e(f"s_lshl_b32 s3, s{S_SB}, 2"); e(f"s_add_u32 s3, s3, s{S_ROLE}"); e(f"s_mul_i32 s3, s3, {32*1152}")
    e(f"s_mul_i32 s4, s{S_DB}, 288"); e("s_add_u32 s3, s3, s4"); e(f"s_lshl_b32 s4, s{S_WAVE}, 5"); e(f"s_add_u32 s{sXO}, s3, s4")
    e("v_and_b32 v34, 15, v1"); e("v_mul_u32_u24 v34, 1152, v34"); e("v_lshrrev_b32 v35, 4, v1")
    e(f"v_lshl_add_u32 v{XA}, v35, 3, v34"); e(f"v_add_u32 v{XA+1}, {16*1152}, v{XA}")
    e(f"s_mul_i32 s3, s{S_WAVE}, 18432"); e(f"v_add_u32 v{vXW}, s3, v{vLIN}")
    e(f"s_xor_b32 s4, s{S_WAVE}, 2"); e(f"s_mul_i32 s3, s4, 18432"); e(f"v_add_u32 v{vXR}, s3, v{vLIN}")

def mainloop(k, role):
    e = k.e
    isA = role == "A"
    vD = 5
    vP = 10
    RS = 12
    RP = 14
    k.label("role" + role)
    k.vm = []; k.lg = []
    code_prefetch(k, "role" + role, "end", 64)
    e("v_and_b32 v1, 63, v0"); e(f"v_lshlrev_b32 v{vLIN}, 4, v1")
    if isA:
        e(f"s_lshl_b32 s3, s{S_ROLE}, 6"); e(f"s_mov_b32 s{sCNT}, 16")
    else:
        e(f"s_cmp_eq_u32 s{S_ROLE}, 2"); e(f"s_cselect_b32 s3, 0, {2*NB0}"); e(f"s_cselect_b32 s{sCNT}, {NB0//2}, {(72-NB0)//2}")
    e(f"s_add_u32 s3, s3, s{S_KP}")
    e(f"s_mul_i32 s{sM0A}, s{S_KP}, 10240"); e(f"s_mul_i32 s4, s{S_RH}, 5120"); e(f"s_add_u32 s{sM0A}, s{sM0A}, s4")
    e("v_mov_b32 v20, 0x7fffff00")
    if isA:
        e(f"s_mul_i32 s{sOA}, s3, {32*1152}"); e(f"s_mul_i32 s4, s{S_RH}, {16*1152}"); e(f"s_add_u32 s{sOA}, s{sOA}, s4")
        e(f"s_mul_i32 s4, s{S_DB}, 288"); e(f"s_add_u32 s{sOA}, s{sOA}, s4")
        for i in range(5):
            e(f"v_add_u32 v16, {64*i}, v1")
            e("v_mul_u32_u24 v17, 3641, v16"); e("v_lshrrev_b32 v17, 16, v17")
            e("v_mul_u32_u24 v18, 18, v17"); e("v_sub_u32 v18, v16, v18")
            e("v_mul_u32_u24 v17, 1152, v17"); e("v_lshl_add_u32 v17, v18, 4, v17")
            if i: e(f"v_subrev_u32 v17, {1024*(i & 3)}, v17") if i < 4 else None
            if i < 4: e(f"v_mov_b32 v{vD+i}, v17")
            else:
                e("v_cmp_gt_u32 vcc, 32, v1"); e(f"v_cndmask_b32 v{vD+i}, v20, v17, vcc")
        stepA = 64*1152
        e(f"s_lshl_b32 s4, s3, 7"); e(f"s_lshl_b32 s5, s{S_SB}, 3"); e("s_add_u32 s4, s4, s5")
        e(f"s_lshl_b32 s5, s{S_RH}, 2"); e("s_add_u32 s4, s4, s5"); e(f"s_lshl_b32 s{sOB}, s4, 10")
        e(f"s_lshl_b32 s4, s{S_KP}, 11"); e(f"v_add_u32 v{vP}, s4, v{vLIN}"); e(f"v_xor_b32 v{vP+1}, 2048, v{vP}")
        stepB = 2*128*1024
        e("v_lshrrev_b32 v16, 2, v1"); e("v_mul_u32_u24 v16, 288, v16"); e("v_and_b32 v17, 3, v1"); e("v_lshl_add_u32 v16, v17, 3, v16")
        e(f"s_mul_i32 s4, s{S_KP}, 10240"); e(f"v_add_u32 v{RS}, s4, v16"); e(f"v_add_u32 v{RS+1}, 61440, v{RS}")
    else:
        e("s_mul_i32 s4, s3, 36"); e(f"s_mul_i32 s5, s{S_DB}, 9"); e("s_add_u32 s4, s4, s5")
        e(f"s_mul_i32 s5, s{S_RH}, 5"); e("s_add_u32 s4, s4, s5"); e(f"s_lshl_b32 s{sOA}, s4, 10")
        e(f"s_mov_b32 s5, {OOB}"); e(f"s_cmp_eq_u32 s{S_RH}, 0"); e(f"s_cselect_b32 s4, 4096, s5"); e(f"v_add_u32 v{vD+1}, s4, v{vLIN}")
        stepA = 2*36*1024
        e(f"s_lshl_b32 s{sOB}, s3, 17"); e(f"s_lshl_b32 s4, s{S_SB}, 8"); e(f"s_add_u32 s{sOB}, s{sOB}, s4")
        e(f"s_lshl_b32 s4, s{S_RH}, 7"); e(f"s_add_u32 s{sOB}, s{sOB}, s4")
        e("v_lshrrev_b32 v16, 3, v1"); e("v_and_b32 v17, 6, v16"); e("v_and_b32 v18, 7, v1"); e("v_xor_b32 v17, v17, v18")
        e("v_lshlrev_b32 v17, 4, v17"); e(f"v_lshl_add_u32 v{vP}, v16, 12, v17")
        e(f"v_add_u32 v{vP+1}, {8*4096-1024}, v{vP}")
        stepB = 64*4096
        e(f"s_lshl_b32 s{sM0B}, s{S_WAVE}, 12"); e(f"s_add_u32 s{sM0B}, s{sM0B}, 81920")
        e(f"s_mul_i32 s4, s{S_KP}, 10240"); e(f"v_add_u32 v{RS}, s4, v{vLIN}"); e(f"v_add_u32 v{RS+1}, 61440, v{RS}")
        e("v_lshrrev_b32 v16, 2, v1"); e("v_bfe_u32 v17, v16, 1, 2"); e(f"s_lshl_b32 s4, s{S_KP}, 1"); e("v_xor_b32 v17, s4, v17")
        e("v_lshlrev_b32 v17, 5, v17"); e("v_lshl_add_u32 v17, v16, 7, v17"); e("v_and_b32 v18, 3, v1"); e("v_lshl_add_u32 v17, v18, 3, v17")
        e(f"v_add_u32 v17, s{sM0B}, v17")
        for sb in range(4): e(f"v_xor_b32 v{RP+sb}, {32*sb}, v17")
    e("s_waitcnt lgkmcnt(0)")
    if isA:
        k.srd(SA, P_WO, 0, SIZE['wo']); k.srd(SB_, P_WS, WS_O, O_BYTES)
    else:
        k.srd(SA, P_WS, WS_U, U_BYTES); k.srd(SB_, P_W2, 0, SIZE['w2'])
        k.srd(SP, P_B2, 0, SIZE['b2'])
        e(f"s_lshl_b32 s4, s{S_KP}, 2"); e(f"s_or_b32 s4, s4, s{S_ROLE}"); e("s_cmp_eq_u32 s4, 2"); e(f"s_cselect_b32 s{SP+2}, s{SP+2}, 0")
        e(f"s_lshl_b32 s4, s{S_SB}, 8"); e(f"s_lshl_b32 s5, s{S_RH}, 7"); e("s_add_u32 s4, s4, s5")
        e("v_and_b32 v28, 15, v1"); e("v_lshlrev_b32 v28, 1, v28")
        for sb in range(4):
            k.vmem(f"buffer_load_ushort v{24+sb}, v28, s[{SP}:{SP+3}], s4 offen offset:{32*sb}", "b2")
    def FA(buf, db): return buf*36 + 4*db
    def FB(n, sb): return 72 + (n % (4 if isA else 2))*16 + 4*sb
    def dmaA(n):
        slot = (n % 4)*20480
        L = [([f"s_add_u32 m0, s{sM0A}, {slot}"], None)]
        for i in range(5):
            if isA: v = vD + i
            else: v = vLIN if i < 4 else vD + 1
            hs = [f"s_add_u32 m0, s{sM0A}, {slot+4096}"] if i == 4 else []
            L.append((hs, (lambda v=v, i=i: k.vmem(f"buffer_load_dwordx4 v{v}, s[{SA}:{SA+3}], s{sOA} offen offset:{1024*(i&3)} lds", ("A", n)))))
        L.append(([f"s_add_u32 s{sOA}, s{sOA}, {stepA}"], None))
        return L
    def dmaB(n):
        L = []
        if isA:
            for sb in range(4):
                L.append(([], (lambda sb=sb: k.vmem(f"buffer_load_dwordx4 {ar(FB(n,sb),4)}, v{vP+(sb>>1)}, s[{SB_}:{SB_+3}], s{sOB} offen offset:{1024*(sb&1)}", ("B", n)))))
            L.append(([f"s_add_u32 s{sOB}, s{sOB}, {stepB}"], None))
        else:
            slot = (n % 4)*16384
            L.append(([f"s_add_u32 m0, s{sM0B}, {slot}"], None))
            for i in range(4):
                hs = [f"s_add_u32 s{sOB}, s{sOB}, {16*4096-2048}"] if i == 2 else []
                L.append((hs, (lambda i=i: k.vmem(f"buffer_load_dwordx4 v{vP+(i&1)}, s[{SB_}:{SB_+3}], s{sOB} offen offset:{1024*i} lds", ("B", n)))))
            L.append(([f"s_add_u32 s{sOB}, s{sOB}, {stepB-(16*4096-2048)}"], None))
        return L
    def run_now(L):
        for hs, b in L:
            for h in hs: e(h)
            if b: b()
    def reads(n):
        buf = n & 1; sl = n % 4
        r = RS + (1 if sl == 3 else 0); off = 0 if sl == 3 else sl*20480
        L = []
        if isA:
            for db in range(9):
                for h in range(2):
                    L.append(f"ds_read_b64_tr_b16 {ar(FA(buf,db)+2*h,2)}, v{r} offset:{off + db*32 + h*5120}")
        else:
            for sb in range(4):
                for h in range(2):
                    L.append(f"ds_read_b64_tr_b16 {ar(FB(n,sb)+2*h,2)}, v{RP+sb} offset:{sl*16384 + h*2048}")
            for db in range(9):
                L.append(f"ds_read_b128 {ar(FA(buf,db),4)}, v{r} offset:{off + db*1024}")
        return L
    DB = 3 if isA else 4
    if isA:
        run_now(dmaA(0)); run_now(dmaB(0)); run_now(dmaA(1))
    else:
        for n in range(2): run_now(dmaB(n)); run_now(dmaA(n))
    epi_setup(k)
    if isA:
        for r in range(144): e(f"v_mov_b32 v{ACC+r}, 0")
    else:
        k.wait(vm=["b2"])
        for sb in range(4): e(f"v_lshlrev_b32 v{24+sb}, 16, v{24+sb}")
        for db in range(9):
            for sb in range(4):
                for r in range(4): e(f"v_mov_b32 v{acc(db,sb)+r}, v{24+sb}")
    if isA:
        for n in range(1, 3): run_now(dmaB(n)); run_now(dmaA(n + 1))
    else:
        for n in range(2, 4): run_now(dmaB(n)); run_now(dmaA(n))
    k.srd(SP, P_WS, WS_P, P_BYTES); k.srd(SF, P_WS, WS_F, F_BYTES)
    k.wait(vm=[("A", 0)]); e("s_barrier")
    for t in reads(0): e(t)
    k.wait(vm=[("A", 1)]); e("s_waitcnt lgkmcnt(0)"); e("s_barrier")
    stamp(k, 1); rt(k, 1)
    e(".p2align 6")
    k.label(f"loop{role}")
    body0 = len(k.lines)
    for n in range(4):
        buf = n & 1
        g = Gaps(k); u = 0
        for db in range(9):
            for sb in range(4):
                c = vr(acc(db, sb), 4)
                g.mfma(u, f"{MF} {c}, {ar(FA(buf,db),4)}, {ar(FB(n,sb),4)}, {c}"); u += 1
        L = dmaB(n + DB) + dmaA(n + 4)
        dg = [2 + 4*i for i in range(9)]
        pre = []
        if n % 2 == 0:
            pre = [f"s_cmp_le_u32 s{sCNT}, 2", f"s_cselect_b32 s{SA+2}, 0, s{SA+2}"]
            if not isA: pre.append(f"s_cselect_b32 s{SB_+2}, 0, s{SB_+2}")
        elif isA:
            pre = [f"s_cmp_le_u32 s{sCNT}, 2", f"s_cselect_b32 s{SB_+2}, 0, s{SB_+2}"]
        hp = 0
        for h in pre:
            g.head(min(hp, 1), h); hp += 1
        hp = min(hp, 1)
        di = 0
        for hs, b in L:
            for h in hs:
                g.head(hp, h); hp += 1
            if b:
                assert hp <= dg[di], (n, hp, dg[di])
                g.body(dg[di], b); hp = dg[di] + 1; di += 1
        rg = [x for x in range(36) if x not in dg]
        for i, t in enumerate(reads(n + 1)): g.body(rg[i], t)
        if n % 2 == 1:
            g.head(28, f"s_sub_u32 s{sCNT}, s{sCNT}, 1")
        g.head(35, "s_waitcnt vmcnt(18) lgkmcnt(0)")
        g.head(35, "s_barrier")
        if n % 2 == 1:
            g.head(35, f"s_cmp_lg_u32 s{sCNT}, 0")
            g.head(35, f"s_cbranch_scc0 {k.L('done'+role)}" if n == 1 else f"s_cbranch_scc1 {k.L('loop'+role)}")
        g.emit(0, 36)
    k.loops.append((body0, len(k.lines)))
    k.label("done" + role)
    k.vm = []; k.lg = []
    e(f"s_branch {k.L('epi')}")
    k.label("role" + role + "_end")

def k2():
    k = EK("k2_kernel", 256, 256, 147456, vgpr=512, sgpr=102, accum=256)
    k.loops = []
    e = k.e
    e("s_cmp_ge_u32 s2, 256"); e(f"s_cbranch_scc1 {k.L('exit')}")
    stamp(k, 0); rt(k, 0)
    load_args(k)
    e("v_lshrrev_b32 v1, 6, v0"); e("s_nop 0"); e(f"v_readfirstlane_b32 s{S_WAVE}, v1")
    e(f"s_bfe_u32 s{S_ROLE}, s2, 0x20001")
    e("s_and_b32 s3, s2, 1"); e("s_lshl_b32 s3, s3, 3"); e("s_lshr_b32 s4, s2, 5"); e(f"s_add_u32 s{S_SB}, s3, s4")
    e(f"s_bfe_u32 s{S_DB}, s2, 0x20003")
    e(f"s_lshl_b32 s{S_TILE}, s{S_SB}, 2"); e(f"s_add_u32 s{S_TILE}, s{S_TILE}, s{S_DB}")
    e(f"s_and_b32 s{S_RH}, s{S_WAVE}, 1"); e(f"s_lshr_b32 s{S_KP}, s{S_WAVE}, 1")
    e(f"s_cmp_lt_u32 s{S_ROLE}, 2"); e(f"s_cbranch_scc1 {k.L('roleA')}")
    e(f"s_branch {k.L('roleB')}")
    k.label("exit"); e("s_endpgm")
    e(".p2align 6")
    mainloop(k, "A")
    e(".p2align 6")
    mainloop(k, "B")
    k.label("epi")
    stamp(k, 2); rt(k, 2)
    T = 40
    X = 8
    OWNL = 73728
    e("s_nop 3")
    e("s_waitcnt vmcnt(0)"); e("s_barrier")
    for i in range(18): e(f"ds_write_b128 v{vXW}, {vr(ACC+72+4*i,4)} offset:{1024*i}")
    for j in range(3):
        if j == 2:
            e(f"s_cmp_lg_u32 s{S_WAVE}, 0"); e(f"s_cbranch_scc1 {k.L('nox')}")
        for sb in range(2):
            e(f"buffer_load_dwordx2 {vr(X+4*j+2*sb,2)}, v{XA+sb}, s[{SX}:{SX+3}], s{sXO} offen offset:{128*j}")
    k.label("nox")
    e(f"v_add_u32 v{vXW}, {OWNL}, v{vLIN}")
    e("s_waitcnt lgkmcnt(0)"); e("s_barrier")
    for i in range(18): e(f"ds_read_b128 {vr(T+4*i,4)}, v{vXR} offset:{1024*i}")
    def reduce(own):
        k.lg = [("r", i) for i in range(18)]
        for db in range(9):
            k.wait(lg=[("r", 2*db + 1)])
            a = ACC + 8*db; t = T + 8*db
            for r in range(0, 8, 2): e(f"v_pk_add_f32 {vr(a+r,2)}, {vr(a+r,2)}, {vr(t+r,2)}")
            for p in range(4): e(f"v_cvt_pk_bf16_f32 v{a+p}, v{a+2*p}, v{a+2*p+1}")
            if own:
                k.dsop(f"ds_write_b128 v{vXW}, {vr(a,4)} offset:{1024*db}", "w")
            else:
                if db % 4 == 0 and db: e(f"s_add_u32 s{sPST}, s{sPST}, 4096")
                e(f"buffer_store_dwordx4 {vr(a,4)}, v{vLIN}, s[{SP}:{SP+3}], s{sPST} offen offset:{1024*(db&3)} sc1")
    e(f"s_cmp_eq_u32 s{sOWN}, 1"); e(f"s_cbranch_scc1 {k.L('own')}")
    reduce(False)
    stamp(k, 3)
    e("v_mov_b32 v20, 1"); e("v_mov_b32 v21, 0")
    e("s_barrier")
    e("s_waitcnt vmcnt(0)")
    e("s_mov_b64 exec, 1")
    e(f"buffer_store_dword v20, v21, s[{SF}:{SF+3}], s{sFST} offen sc1")
    e("s_mov_b64 exec, -1")
    e(f"s_branch {k.L('pub')}")
    k.label("own")
    reduce(True)
    e("s_waitcnt lgkmcnt(0)"); e("s_barrier")
    k.label("pub")
    k.lg = []
    OW = 184
    e(f"s_lshl_b32 s3, s{S_WAVE}, 10"); e(f"v_add_u32 v{vXW}, s3, v{vXW}")
    for j in range(3): e(f"ds_read_b128 {vr(OW+4*j,4)}, v{vXW} offset:{4096*j}")
    e("s_mov_b32 s7, 0x100000")
    e("s_mov_b32 s4, 0xffff0000")
    e(f"v_mov_b32 v24, {fhex(-LOG2E)}"); e("v_mov_b32 v26, 1.0")
    e("v_and_b32 v21, 3, v1"); e(f"v_cmp_ne_u32 s[62:63], s{S_ROLE}, v21"); e("v_lshlrev_b32 v21, 2, v21")
    for i, x in enumerate((1, 2, 3)):
        e(f"s_xor_b32 s3, s{S_ROLE}, {x}"); e("s_mul_i32 s3, s3, 9216"); e(f"s_add_u32 s{68+i}, s3, s{sPLD}")
    k.label("poll")
    e(f"buffer_load_dword v20, v21, s[{SF}:{SF+3}], s{sFLD} offen sc1")
    e("s_waitcnt vmcnt(0)")
    e("v_cmp_ne_u32 vcc, 1, v20")
    e("s_and_b64 vcc, vcc, s[62:63]")
    e(f"s_cbranch_vccz {k.L('ready')}")
    e("s_sleep 1"); e("s_sub_u32 s7, s7, 1"); e("s_cmp_lg_u32 s7, 0"); e(f"s_cbranch_scc1 {k.L('poll')}")
    k.label("ready")
    stamp(k, 4); rt(k, 3)
    k.vm = []
    def PR(j, i): return 128 + 12*j + 4*i
    def ploads(j):
        for i in range(3):
            if j < 1:
                k.vmem(f"buffer_load_dwordx4 {vr(PR(j,i),4)}, v{vLIN}, s[{SP}:{SP+3}], s{68+i} offen sc1", ("p", j))
            else:
                e(f"s_add_u32 s3, s{68+i}, {j*4096}")
                k.vmem(f"buffer_load_dwordx4 {vr(PR(j,i),4)}, v{vLIN}, s[{SP}:{SP+3}], s3 offen sc1", ("p", j))
    def unpack(dst, src):
        for p in range(4):
            e(f"v_lshlrev_b32 v{dst+2*p}, 16, v{src+p}"); e(f"v_and_b32 v{dst+2*p+1}, s4, v{src+p}")
    def padd(d, a, b):
        for r in range(0, 8, 2): e(f"v_pk_add_f32 {vr(d+r,2)}, {vr(a+r,2)}, {vr(b+r,2)}")
    def fin(j, isB):
        Y, U1, U2, U3 = 40 + 32*(j & 1), 48 + 32*(j & 1), 56 + 32*(j & 1), 64 + 32*(j & 1)
        mine = (OW + 4*j, PR(j, 0)); other = (PR(j, 1), PR(j, 2))
        ys, ss = (mine, other) if isB else (other, mine)
        unpack(Y, ys[0]); unpack(U1, ys[1]); padd(Y, Y, U1)
        for r in range(0, 8, 2): e(f"v_pk_mul_f32 {vr(U1+r,2)}, {vr(Y+r,2)}, v[24:25] op_sel_hi:[1,0]")
        for r in range(8): e(f"v_exp_f32 v{U1+r}, v{U1+r}")
        unpack(U2, ss[0]); unpack(U3, ss[1]); padd(U2, U2, U3)
        for r in range(0, 8, 2): e(f"v_pk_add_f32 {vr(U1+r,2)}, {vr(U1+r,2)}, v[26:27] op_sel_hi:[1,0]")
        for r in range(8): e(f"v_rcp_f32 v{U1+r}, v{U1+r}")
        unpack(U3, X + 4*j)
        for r in range(0, 8, 2): e(f"v_pk_mul_f32 {vr(Y+r,2)}, {vr(Y+r,2)}, {vr(U1+r,2)}")
        for r in range(0, 8, 2): e(f"v_pk_fma_f32 {vr(Y+r,2)}, {vr(Y+r,2)}, {vr(U2+r,2)}, {vr(U3+r,2)}")
        for p in range(4): e(f"v_cvt_pk_bf16_f32 v{Y+p}, v{Y+2*p}, v{Y+2*p+1}")
        for sb in range(2):
            k.vmem(f"buffer_store_dwordx2 {vr(Y+2*sb,2)}, v{XA+sb}, s[{SO}:{SO+3}], s{sXO} offen offset:{128*j}", "st")
    e(f"s_cmp_lg_u32 s{S_WAVE}, 0"); e(f"s_cbranch_scc1 {k.L('no3')}")
    ploads(2)
    k.label("no3")
    k.vm = []
    ploads(0); ploads(1)
    e("s_waitcnt lgkmcnt(0)")
    e(f"s_cmp_ge_u32 s{S_ROLE}, 2"); e(f"s_cbranch_scc1 {k.L('finB')}")
    for isB in (False, True):
        if isB: k.label("finB")
        k.vm = [("p", 0)]*3 + [("p", 1)]*3
        k.wait(vm=[("p", 0)]); fin(0, isB)
        k.wait(vm=[("p", 1)]); fin(1, isB)
        e(f"s_cmp_lg_u32 s{S_WAVE}, 0"); e(f"s_cbranch_scc1 {k.L('fin')}")
        fin(2, isB)
        if not isB: e(f"s_branch {k.L('fin')}")
    k.label("fin")
    stamp(k, 5)
    stamp_flush(k, 7, P_WS, 1); rt_flush(k, 5, P_WS, 0, 11, P_DBG)
    e("s_endpgm")
    k.label("end")
    return k
```

```python
from common import *
from k1 import Gaps, MF, load_args, code_prefetch, P_X, P_WO, P_W2, P_B2, P_OUT, P_DBG, P_WS

ACC = 112
def acc(db, sb): return ACC + (db*4 + sb)*4
S_WAVE, S_ROLE, S_SB, S_DB, S_TILE = 28, 29, 30, 31, 34
SA, SB_, SP, SX, SO, SF = 8, 12, 16, 20, 24, 64
sOA, sOB, sM0A, sM0B, sCNT, sM0C = 68, 69, 70, 71, 72, 73
sPST, sPLD, sFST, sFLD, sXO = 74, 75, 76, 77, 35
vLIN = 4
OOB = 0x7fffff00
PITCH = 304
vTW, RB, XA = 18, 20, 30
SH = 12288
PRIV = 4*SH

def epi_setup(k):
    e = k.e
    k.srd(SX, P_X, 0, SIZE['x']); k.srd(SO, P_OUT, 0, SIZE['out'])
    e(f"s_lshl_b32 s5, s{S_TILE}, 3"); e(f"s_lshl_b32 s3, s{S_WAVE}, 1"); e("s_add_u32 s3, s3, s5")
    e(f"s_lshl_b32 s4, s3, 7"); e(f"s_lshl_b32 s6, s{S_ROLE}, 2"); e(f"s_add_u32 s{sFST}, s4, s6")
    e("s_lshl_b32 s3, s3, 3"); e(f"s_add_u32 s3, s3, s{S_ROLE}"); e(f"s_mul_i32 s{sPST}, s3, 9216")
    e(f"s_add_u32 s5, s5, s{S_ROLE}"); e(f"s_lshl_b32 s{sFLD}, s5, 7"); e(f"s_mul_i32 s5, s5, {8*9216}")
    e(f"s_lshl_b32 s3, s{S_WAVE}, 10"); e(f"s_add_u32 s{sPLD}, s5, s3")
    e(f"s_lshl_b32 s3, s{S_SB}, 3"); e(f"s_add_u32 s3, s3, s{S_ROLE}"); e(f"s_mul_i32 s3, s3, {32*1152}")
    e(f"s_mul_i32 s4, s{S_DB}, 288"); e("s_add_u32 s3, s3, s4"); e(f"s_lshl_b32 s4, s{S_WAVE}, 5"); e(f"s_add_u32 s{sXO}, s3, s4")
    e("v_and_b32 v34, 15, v1"); e("v_mul_u32_u24 v34, 1152, v34"); e("v_lshrrev_b32 v35, 4, v1")
    e(f"v_lshl_add_u32 v{XA}, v35, 3, v34"); e(f"v_add_u32 v{XA+1}, {16*1152}, v{XA}")

def mainloop(k, role):
    e = k.e
    isA = role == "A"
    vD = 5
    vP = 10
    RS = 12
    RP = 14
    k.label("role" + role)
    k.vm = []; k.lg = []
    code_prefetch(k, "role" + role, "end", 64)
    e("v_and_b32 v1, 63, v0"); e(f"v_lshlrev_b32 v{vLIN}, 4, v1")
    NK = 32 if isA else 36
    e(f"s_and_b32 s3, s{S_ROLE}, 3"); e(f"s_mul_i32 s3, s3, {NK}"); e(f"s_mov_b32 s{sCNT}, {NK//4}")
    e("v_mov_b32 v36, 0x7fffff00")
    if isA:
        e(f"s_mul_i32 s{sM0A}, s{S_WAVE}, 3072")
        e(f"s_mul_i32 s{sOA}, s3, {32*1152}"); e(f"s_mul_i32 s4, s{S_WAVE}, {8*1152}"); e(f"s_add_u32 s{sOA}, s{sOA}, s4")
        e(f"s_mul_i32 s4, s{S_DB}, 288"); e(f"s_add_u32 s{sOA}, s{sOA}, s4")
        for i in range(3):
            e(f"v_add_u32 v34, {64*i}, v1")
            e("v_mul_u32_u24 v35, 3641, v34"); e("v_lshrrev_b32 v35, 16, v35")
            e(f"v_mul_u32_u24 v35, {1152-288}, v35"); e(f"v_lshl_add_u32 v{vD+i}, v1, 4, v35")
        e("v_cmp_gt_u32 vcc, 16, v1"); e(f"v_cndmask_b32 v{vD+2}, v36, v{vD+2}, vcc")
        stepA = 32*1152
        e(f"s_lshl_b32 s4, s3, 7"); e(f"s_lshl_b32 s5, s{S_SB}, 4"); e("s_add_u32 s4, s4, s5")
        e(f"s_lshl_b32 s5, s{S_WAVE}, 2"); e("s_add_u32 s4, s4, s5"); e(f"s_lshl_b32 s{sOB}, s4, 10")
        stepB = 128*1024
        e("v_bfe_u32 v34, v1, 2, 3"); e("v_mul_u32_u24 v34, 288, v34"); e("v_and_b32 v35, 3, v1"); e("v_lshl_add_u32 v34, v35, 3, v34")
        e("v_lshrrev_b32 v35, 5, v1"); e("v_mul_u32_u24 v35, 3072, v35"); e(f"v_add_u32 v{RS}, v34, v35")
    else:
        e(f"s_lshl_b32 s{sM0A}, s{S_WAVE}, 11")
        e("s_mul_i32 s4, s3, 36"); e(f"s_mul_i32 s5, s{S_DB}, 9"); e("s_add_u32 s4, s4, s5"); e(f"s_lshl_b32 s{sOA}, s4, 10")
        e(f"v_add_u32 v{vD}, s{sM0A}, v{vLIN}")
        e(f"s_mov_b32 s5, {OOB}"); e(f"s_cmp_eq_u32 s{S_WAVE}, 0"); e(f"s_cselect_b32 s4, 8192, s5"); e(f"v_add_u32 v{vD+2}, s4, v{vLIN}")
        e(f"s_lshl_b32 s{sM0C}, s{S_WAVE}, 10"); e(f"s_add_u32 s{sM0C}, s{sM0C}, 8192")
        stepA = 36*1024
        e(f"s_lshl_b32 s{sOB}, s3, 17"); e(f"s_lshl_b32 s4, s{S_SB}, 9"); e(f"s_add_u32 s{sOB}, s{sOB}, s4")
        e(f"s_lshl_b32 s4, s{S_WAVE}, 7"); e(f"s_add_u32 s{sOB}, s{sOB}, s4")
        e("v_lshrrev_b32 v34, 3, v1"); e("v_and_b32 v35, 6, v34"); e("v_and_b32 v37, 7, v1"); e("v_xor_b32 v35, v35, v37")
        e("v_lshlrev_b32 v35, 4, v35"); e(f"v_lshl_add_u32 v{vP}, v34, 12, v35")
        e(f"v_add_u32 v{vP+1}, {8*4096-1024}, v{vP}")
        stepB = 32*4096
        e(f"s_lshl_b32 s{sM0B}, s{S_WAVE}, 12"); e(f"s_add_u32 s{sM0B}, s{sM0B}, {PRIV}")
        e("v_lshrrev_b32 v34, 2, v1"); e("v_bfe_u32 v35, v34, 1, 2")
        e("v_lshlrev_b32 v35, 5, v35"); e("v_lshl_add_u32 v35, v34, 7, v35"); e("v_and_b32 v37, 3, v1"); e("v_lshl_add_u32 v35, v37, 3, v35")
        e(f"v_add_u32 v35, s{sM0B}, v35")
        for sb in range(4): e(f"v_xor_b32 v{RP+sb}, {32*sb}, v35")
    e("s_waitcnt lgkmcnt(0)")
    if isA:
        k.srd(SA, P_WO, 0, SIZE['wo']); k.srd(SB_, P_WS, WS_O, O_BYTES)
    else:
        k.srd(SA, P_WS, WS_U, U_BYTES); k.srd(SB_, P_W2, 0, SIZE['w2'])
        k.srd(SP, P_B2, 0, SIZE['b2'])
        e(f"s_cmp_eq_u32 s{S_ROLE}, 4"); e(f"s_cselect_b32 s{SP+2}, s{SP+2}, 0")
        e(f"s_lshl_b32 s4, s{S_SB}, 9"); e(f"s_lshl_b32 s5, s{S_WAVE}, 7"); e("s_add_u32 s4, s4, s5")
        e("v_and_b32 v34, 15, v1"); e("v_lshlrev_b32 v34, 1, v34")
        for sb in range(4):
            k.vmem(f"buffer_load_ushort v{40+sb}, v34, s[{SP}:{SP+3}], s4 offen offset:{32*sb}", "b2")
    def FA(buf, db): return buf*36 + 4*db
    def FB(n, sb): return 72 + (n % (4 if isA else 2))*16 + 4*sb
    def dmaA(n):
        slot = (n % 4)*SH
        L = [([f"s_add_u32 m0, s{sM0A}, {slot}"], None)]
        for i in range(3):
            if isA: v, off, hs = vD + i, 1024*i, []
            elif i < 2: v, off, hs = vD, 1024*i, []
            else: v, off, hs = vD + 2, 0, [f"s_add_u32 m0, s{sM0C}, {slot}"]
            L.append((hs, (lambda v=v, off=off: k.vmem(f"buffer_load_dwordx4 v{v}, s[{SA}:{SA+3}], s{sOA} offen offset:{off} lds", ("A", n)))))
        L.append(([f"s_add_u32 s{sOA}, s{sOA}, {stepA}"], None))
        return L
    def dmaB(n):
        L = []
        if isA:
            for sb in range(4):
                L.append(([], (lambda sb=sb: k.vmem(f"buffer_load_dwordx4 {ar(FB(n,sb),4)}, v{vLIN}, s[{SB_}:{SB_+3}], s{sOB} offen offset:{1024*sb}", ("B", n)))))
            L.append(([f"s_add_u32 s{sOB}, s{sOB}, {stepB}"], None))
        else:
            slot = (n % 4)*16384
            L.append(([f"s_add_u32 m0, s{sM0B}, {slot}"], None))
            for i in range(4):
                hs = [f"s_add_u32 s{sOB}, s{sOB}, {16*4096-2048}"] if i == 2 else []
                L.append((hs, (lambda i=i: k.vmem(f"buffer_load_dwordx4 v{vP+(i&1)}, s[{SB_}:{SB_+3}], s{sOB} offen offset:{1024*i} lds", ("B", n)))))
            L.append(([f"s_add_u32 s{sOB}, s{sOB}, {stepB-(16*4096-2048)}"], None))
        return L
    def run_now(L):
        for hs, b in L:
            for h in hs: e(h)
            if b: b()
    def reads(n):
        buf = n & 1; sl = n % 4
        L = []
        if isA:
            for db in range(9):
                for h in range(2):
                    L.append(f"ds_read_b64_tr_b16 {ar(FA(buf,db)+2*h,2)}, v{RS} offset:{sl*SH + db*32 + h*6144}")
        else:
            for sb in range(4):
                for h in range(2):
                    L.append(f"ds_read_b64_tr_b16 {ar(FB(n,sb)+2*h,2)}, v{RP+sb} offset:{sl*16384 + h*2048}")
            for db in range(9):
                L.append(f"ds_read_b128 {ar(FA(buf,db),4)}, v{vLIN} offset:{sl*SH + db*1024}")
        return L
    DB = 3 if isA else 4
    if isA:
        run_now(dmaA(0)); run_now(dmaB(0)); run_now(dmaA(1))
    else:
        for n in range(2): run_now(dmaB(n)); run_now(dmaA(n))
    epi_setup(k)
    if isA:
        for r in range(144): e(f"v_mov_b32 v{ACC+r}, 0")
    else:
        k.wait(vm=["b2"])
        for sb in range(4): e(f"v_lshlrev_b32 v{40+sb}, 16, v{40+sb}")
        for db in range(9):
            for sb in range(4):
                for r in range(4): e(f"v_mov_b32 v{acc(db,sb)+r}, v{40+sb}")
    if isA:
        for n in range(1, 3): run_now(dmaB(n)); run_now(dmaA(n + 1))
    else:
        for n in range(2, 4): run_now(dmaB(n)); run_now(dmaA(n))
    k.srd(SP, P_WS, WS_P, P_BYTES)
    k.wait(vm=[("A", 0)]); e("s_barrier")
    k.srd(SF, P_WS, WS_F, F_BYTES)
    for t in reads(0): e(t)
    if OPT("nolds", 0):
        e("s_waitcnt vmcnt(0)"); e("s_barrier")
        for t in reads(1): e(t)
    k.wait(vm=[("A", 1)]); e("s_waitcnt lgkmcnt(0)"); e("s_barrier")
    stamp(k, 1); rt(k, 1)
    e(".p2align 6")
    k.label(f"loop{role}")
    body0 = len(k.lines)
    for n in range(4):
        buf = n & 1
        g = Gaps(k); u = 0
        for db in range(9):
            for sb in range(4):
                c = vr(acc(db, sb), 4)
                g.mfma(u, f"{MF} {c}, {ar(FA(buf,db),4)}, {ar(FB(n,sb),4)}, {c}"); u += 1
        L = dmaB(n + DB) + dmaA(n + 4)
        dg = [3 + 5*i for i in range(7)]
        pre = []
        if n == 0:
            pre = [f"s_cmp_le_u32 s{sCNT}, 1", f"s_cselect_b32 s{SA+2}, 0, s{SA+2}"]
            if not isA: pre.append(f"s_cselect_b32 s{SB_+2}, 0, s{SB_+2}")
        elif n == 1 and isA:
            pre = [f"s_cmp_le_u32 s{sCNT}, 1", f"s_cselect_b32 s{SB_+2}, 0, s{SB_+2}"]
        hp = 0
        for h in pre:
            g.head(min(hp, 1), h); hp += 1
        hp = min(hp, 2)
        di = 0
        for hs, b in L:
            for h in hs:
                g.head(hp, h); hp += 1
            if b:
                assert hp <= dg[di], (n, hp, dg[di])
                if not OPT("nodma", 0): g.body(dg[di], b)
                hp = dg[di] + 1; di += 1
        rg = [x for x in range(36) if x not in dg]
        for i, t in enumerate(reads(n + 1)):
            if not OPT("nolds", 0): g.body(rg[i], t)
        if n == 3:
            g.head(31, f"s_sub_u32 s{sCNT}, s{sCNT}, 1")
        g.head(35, "s_waitcnt vmcnt(14) lgkmcnt(0)")
        g.head(35, "s_barrier")
        if n == 3:
            g.head(35, f"s_cmp_lg_u32 s{sCNT}, 0")
            g.head(35, f"s_cbranch_scc1 {k.L('loop'+role)}")
        g.emit(0, 36)
    k.loops.append((body0, len(k.lines)))
    k.vm = []; k.lg = []
    e(f"s_branch {k.L('epi')}")

def k2():
    k = EK("k2_kernel", 256, 256, 147456, vgpr=512, sgpr=102, accum=256)
    k.loops = []
    e = k.e
    e("s_cmp_ge_u32 s2, 256"); e(f"s_cbranch_scc1 {k.L('exit')}")
    stamp(k, 0); rt(k, 0)
    load_args(k)
    e("v_lshrrev_b32 v1, 6, v0"); e("s_nop 0"); e(f"v_readfirstlane_b32 s{S_WAVE}, v1")
    if OPT("mix", 0):
        e(f"s_and_b32 s3, s2, 3"); e("s_lshr_b32 s4, s2, 7"); e("s_lshl_b32 s4, s4, 2"); e(f"s_add_u32 s{S_ROLE}, s3, s4")
        e("s_bfe_u32 s3, s2, 0x10002"); e("s_lshl_b32 s3, s3, 4"); e("s_bfe_u32 s4, s2, 0x40003"); e(f"s_add_u32 s{S_TILE}, s3, s4")
    else:
        e(f"s_and_b32 s{S_ROLE}, s2, 7")
        e(f"s_lshr_b32 s{S_TILE}, s2, 3")
    e(f"s_lshr_b32 s{S_SB}, s{S_TILE}, 2")
    e(f"s_and_b32 s{S_DB}, s{S_TILE}, 3")
    e(f"s_cmp_lt_u32 s{S_ROLE}, 4"); e(f"s_cbranch_scc1 {k.L('roleA')}")
    e(f"s_branch {k.L('roleB')}")
    k.label("exit"); e("s_endpgm")
    e(".p2align 6")
    mainloop(k, "A")
    e(".p2align 6")
    mainloop(k, "B")
    k.label("epi")
    stamp(k, 2); rt(k, 2)
    X = 100
    for j in range(3):
        if j == 2:
            e(f"s_cmp_lg_u32 s{S_WAVE}, 0"); e(f"s_cbranch_scc1 {k.L('nox')}")
        for sb in range(2):
            e(f"buffer_load_dwordx2 {vr(X+4*j+2*sb,2)}, v{XA+sb}, s[{SX}:{SX+3}], s{sXO} offen offset:{128*j}")
    k.label("nox")
    e(f"s_add_u32 s3, s{sPST}, {8*9216}")
    for db in range(9):
        if db % 4 == 0 and db:
            e(f"s_add_u32 s{sPST}, s{sPST}, 4096"); e("s_add_u32 s3, s3, 4096")
        for half in range(2):
            a = acc(db, 2*half)
            for p in range(4): e(f"v_cvt_pk_bf16_f32 v{a+p}, v{a+2*p}, v{a+2*p+1}")
            so = f"s{sPST}" if half == 0 else "s3"
            e(f"buffer_store_dwordx4 {vr(a,4)}, v{vLIN}, s[{SP}:{SP+3}], {so} offen offset:{1024*(db&3)} sc1")
    stamp(k, 3)
    e("v_mov_b32 v16, 1"); e("v_lshlrev_b32 v17, 7, v1")
    e("s_waitcnt vmcnt(0)")
    e("s_mov_b64 exec, 3")
    e(f"buffer_store_dword v16, v17, s[{SF}:{SF+3}], s{sFST} offen sc1")
    e("s_mov_b64 exec, -1")
    e("s_mov_b32 s7, 0x100000")
    e("s_mov_b32 s4, 0xffff0000")
    e(f"v_mov_b32 v12, {fhex(-LOG2E)}"); e("v_mov_b32 v14, 1.0")
    e("v_and_b32 v17, 7, v1"); e("v_lshlrev_b32 v17, 2, v17")
    k.label("poll")
    e(f"buffer_load_dword v20, v17, s[{SF}:{SF+3}], s{sFLD} offen sc1")
    e("s_waitcnt vmcnt(0)")
    e("v_cmp_ne_u32 vcc, 1, v20")
    e(f"s_cbranch_vccz {k.L('ready')}")
    e("s_sleep 1"); e("s_sub_u32 s7, s7, 1"); e("s_cmp_lg_u32 s7, 0"); e(f"s_cbranch_scc1 {k.L('poll')}")
    k.label("ready")
    stamp(k, 4); rt(k, 3)
    k.vm = []
    def PR(j, r): return 128 + 32*j + 4*r
    def ploads(j):
        for r in (4, 5, 6, 7, 0, 1, 2, 3):
            e(f"s_add_u32 s3, s{sPLD}, {r*9216 + j*4096}")
            k.vmem(f"buffer_load_dwordx4 {vr(PR(j,r),4)}, v{vLIN}, s[{SP}:{SP+3}], s3 offen sc1", ("p", j, r >> 2))
    def unpack(dst, src):
        for p in range(4):
            e(f"v_lshlrev_b32 v{dst+2*p}, 16, v{src+p}"); e(f"v_and_b32 v{dst+2*p+1}, s4, v{src+p}")
    def padd(d, a, b):
        for r in range(0, 8, 2): e(f"v_pk_add_f32 {vr(d+r,2)}, {vr(a+r,2)}, {vr(b+r,2)}")
    def fin(j, w1, w2):
        Y, U1, U2, U3 = 40, 48, 56, 64
        if j & 1: Y = 72
        w1()
        unpack(Y, PR(j, 4)); unpack(U1, PR(j, 5)); padd(Y, Y, U1)
        unpack(U2, PR(j, 6)); unpack(U1, PR(j, 7)); padd(U2, U2, U1); padd(Y, Y, U2)
        for r in range(0, 8, 2): e(f"v_pk_mul_f32 {vr(U1+r,2)}, {vr(Y+r,2)}, v[12:13] op_sel_hi:[1,0]")
        for r in range(8): e(f"v_exp_f32 v{U1+r}, v{U1+r}")
        w2()
        unpack(U2, PR(j, 0)); unpack(U3, PR(j, 1)); padd(U2, U2, U3)
        for r in range(0, 8, 2): e(f"v_pk_add_f32 {vr(U1+r,2)}, {vr(U1+r,2)}, v[14:15] op_sel_hi:[1,0]")
        for r in range(8): e(f"v_rcp_f32 v{U1+r}, v{U1+r}")
        unpack(U3, PR(j, 2)); padd(U2, U2, U3)
        for r in range(0, 8, 2): e(f"v_pk_mul_f32 {vr(Y+r,2)}, {vr(Y+r,2)}, {vr(U1+r,2)}")
        unpack(U3, PR(j, 3)); padd(U2, U2, U3)
        unpack(U1, X + 4*j)
        for r in range(0, 8, 2): e(f"v_pk_fma_f32 {vr(Y+r,2)}, {vr(Y+r,2)}, {vr(U2+r,2)}, {vr(U1+r,2)}")
        for p in range(4): e(f"v_cvt_pk_bf16_f32 v{Y+p}, v{Y+2*p}, v{Y+2*p+1}")
        for sb in range(2):
            k.vmem(f"buffer_store_dwordx2 {vr(Y+2*sb,2)}, v{XA+sb}, s[{SO}:{SO+3}], s{sXO} offen offset:{128*j}", "st")
    e(f"s_cmp_lg_u32 s{S_WAVE}, 0"); e(f"s_cbranch_scc1 {k.L('no3')}")
    ploads(2)
    k.label("no3")
    k.vm = []
    ploads(0); ploads(1)
    fin(0, lambda: k.wait(vm=[("p", 0, 1)]), lambda: k.wait(vm=[("p", 0, 0)]))
    fin(1, lambda: k.wait(vm=[("p", 1, 1)]), lambda: k.wait(vm=[("p", 1, 0)]))
    e(f"s_cmp_lg_u32 s{S_WAVE}, 0"); e(f"s_cbranch_scc1 {k.L('fin')}")
    fin(2, lambda: None, lambda: None)
    k.label("fin")
    stamp(k, 5)
    stamp_flush(k, 7, P_WS, 1); rt_flush(k, 5, P_WS, 0, 11, P_DBG)
    e("s_endpgm")
    k.label("end")
    return k
```

```python
import sys
from common import *
from build import finish
from fused import fused
k = finish(fused())
txt = assemble_file([k])
if "--final" in sys.argv:
    import re
    from fused import KNAME
    txt = txt.replace("fused_kernel_", "L_")
    txt = txt.replace("; @launch kernel=fused_kernel ", "; @launch ")
    txt = txt.replace("fused_kernel", KNAME)
open(sys.argv[1], "w").write(txt)
```

```python
from common import *
from k1 import Gaps, MF, gelu_pairs

KNAME = "recurrent_scan__sliding_block_cached__mixer_token_mlp__prompt_kernel"
P_X, P_K, P_V, P_WQ, P_WO, P_BX, P_W1, P_B1, P_W2, P_B2, P_OUT, P_DBG, P_WS = 36, 38, 40, 42, 44, 46, 48, 50, 52, 54, 56, 58, 60
S_WAVE, S_XCD, S_SLOT = 28, 29, 30
S_TAG = 100
SF = 64
OOB = 0x7fffff00
LNX = 163584
NT = " nt" if OPT("nt", 1) else ""
SC = " sc1"
XNT = " nt" if OPT("xnt", 1) else ""
R2 = OPT("r2", 1184)
MB = OPT("mb", 0)
NI = OPT("ni", 2)
R1 = 252*MB if MB else (8*NI + OPT('dw', 6))*32
EW = OPT("ew", 1)
EWA = OPT("ewa", 1)
DYN = OPT("dyn", 1)
SLOWT = OPT("slowt", 0)
QTS = [(int(x[:-1]), x[-1]) for x in OPTS("qts", "").split(",") if x]
QT0 = OPT("qt0", 7)
NQ = sum(1 for a_, b_ in QTS if b_ == "q"); NWT = sum(1 for a_, b_ in QTS if b_ == "w")
WT0 = R1
R1 = R1 + (NWT*11264)//72
KVT = any(b_ == "k" for a_, b_ in QTS)
WS_R = 1024
THR = 2.0**OPT('thr', 80)

def SR(i): return [80, 82, 84, 86, 88, 90, 96, 98, 62][i]
def st(k, i):
    if STAMPS: k.e(f"s_memrealtime s[{SR(i)}:{SR(i)+1}]")
def st_save(k, n, lane0):
    if not STAMPS: return
    k.e("s_waitcnt lgkmcnt(0)")
    for i in range(n): k.e(f"v_writelane_b32 v39, s{SR(i)}, {lane0+i}")
def st_flush(k):
    if not STAMPS: return
    e = k.e
    e(f"s_add_u32 s8, s{P_WS}, {200<<20}"); e(f"s_addc_u32 s9, s{P_WS+1}, 0"); e("s_mov_b32 s10, 65536"); e("s_mov_b32 s11, 0x20000")
    e("s_lshl_b32 s3, s2, 7"); e("v_and_b32 v2, 63, v0"); e("v_lshlrev_b32 v2, 2, v2")
    e("s_mov_b64 exec, 0xffffffff")
    e("buffer_store_dword v39, v2, s[8:11], s3 offen")

def run_now(k, L):
    for hs, b in L:
        for h in hs: k.e(h)
        if b: b()

def place(g, L, dg, hp=0):
    di = 0
    for hs, b in L:
        for h in hs:
            g.head(hp, h); hp += 1
        if b:
            assert hp <= dg[di], (hp, dg, di)
            g.body(dg[di], b); hp = dg[di] + 1; di += 1

def touch_code(k, start, nlines, v):
    e = k.e
    e("s_getpc_b64 s[8:9]")
    e(f"s_mov_b32 s10, {nlines*128}"); e("s_mov_b32 s11, 0x20000")
    e(f"v_lshlrev_b32 v{v}, 5, v0")
    k.vmem(f"buffer_load_dword v{v+1}, v{v}, s[8:11], 0 offen", "pf")

def poll(k, name, vaddr, vtmp, mask=None, pre=False):
    e = k.e
    e("s_mov_b32 s7, 0x80000")
    if pre: e(f"s_branch {k.L(name+'_chk')}")
    k.label(name)
    e(f"buffer_load_dword v{vtmp}, v{vaddr}, s[{SF}:{SF+3}], 0 offen sc1")
    k.label(name + "_chk")
    e("s_waitcnt vmcnt(0)")
    e(f"v_cmp_ne_u32 vcc, s{S_TAG}, v{vtmp}")
    if mask: e(f"s_and_b64 vcc, vcc, {mask}")
    e(f"s_cbranch_vccz {k.L(name+'_ok')}")
    e("s_sleep 1"); e("s_sub_u32 s7, s7, 1"); e("s_cmp_lg_u32 s7, 0"); e(f"s_cbranch_scc1 {k.L(name)}")
    k.label(name + "_ok")
    k.vm = []

def ln_phase(k, nm, hook_a, w3_b, hook_d=lambda: None):
    e = k.e
    R, F, T = 100, 112, 140
    vX, vN, vL = 170, 171, 172
    e(f"s_mul_i32 s4, s{S_WAVE}, {6*131072}")
    e("v_lshrrev_b32 v178, 2, v177"); e("v_lshlrev_b32 v178, 17, v178"); e("v_and_b32 v179, 3, v177"); e("v_lshl_add_u32 v178, v179, 8, v178")
    e("v_lshl_add_u32 v178, v176, 4, v178")
    e("s_lshr_b32 s3, s2, 1"); e("s_lshl_b32 s3, s3, 10"); e("s_add_u32 s4, s4, s3"); e("s_and_b32 s3, s2, 1"); e("s_lshl_b32 s3, s3, 7"); e("s_add_u32 s4, s4, s3")
    e(f"v_add_u32 v{vN}, s4, v178")
    e(f"v_lshlrev_b32 v{vL}, 3, v176"); e(f"v_add_u32 v{vL}, {LNX}, v{vL}")
    e(f"s_lshl_b32 s3, s{S_WAVE}, 6"); e(f"v_add_u32 v173, s3, v{vL}")
    e("s_barrier")
    e(f"s_load_dword s{S_TAG}, s[{P_WS}:{P_WS+1}], {WS_E}")
    hook_a()
    e("s_getpc_b64 s[24:25]")
    k.label(nm + "_pc")
    e(f"s_sub_u32 s24, s24, {k.L(nm+'_pc')}-{k.name}"); e("s_subb_u32 s25, s25, 0")
    e(f"s_mov_b32 s26, {k.L('end')}-{k.name}"); e("s_mov_b32 s27, 0x20000")
    e(f"s_lshl_b32 s3, s{S_SLOT}, 2"); e(f"s_add_u32 s3, s3, s{S_WAVE}"); e("s_mul_i32 s3, s3, 768")
    e("v_min_u32 v174, 5, v1"); e("v_lshlrev_b32 v174, 7, v174"); e("v_add_u32 v174, s3, v174")
    k.vmem("buffer_load_dword v175, v174, s[24:27], 0 offen", "pf")
    k.srd(16, P_WS, WS_XN, XN_BYTES); k.srd(20, P_WS, WS_H, H_BYTES); k.srd(SF, P_WS, 0, FLAG_BYTES)
    e(f"s_cmp_lg_u32 s{S_WAVE}, 3"); e(f"s_cbranch_scc1 {k.L(nm+'_ln')}")
    e("s_waitcnt lgkmcnt(0)"); e("s_barrier")
    e(f"s_mul_i32 s{S_TAG}, s{S_TAG}, 0x9e3779b1"); e(f"s_add_u32 s{S_TAG}, s{S_TAG}, 0x7f4a7c15")
    e(f"s_branch {k.L(nm+'_st')}")
    k.label(nm + "_ln")
    e("s_mov_b32 s3, 0xffff0000")
    k.wait(vm=["x"])
    st(k, 1)
    for i in range(12):
        e(f"v_lshlrev_b32 v{F+2*i}, 16, v{R+i}"); e(f"v_and_b32 v{F+2*i+1}, s3, v{R+i}")
    def red(v):
        e(f"v_add_f32_dpp v{v}, v{v}, v{v} row_ror:8 row_mask:0xf bank_mask:0xf")
        for sw in ["v_permlane16_swap_b32", "v_permlane32_swap_b32"]:
            e(f"v_mov_b32 v{v+1}, v{v}"); e(f"{sw} v{v}, v{v+1}"); e(f"v_add_f32 v{v}, v{v}, v{v+1}")
    A, B = T, T + 2
    e(f"v_pk_add_f32 {vr(A,2)}, {vr(F,2)}, {vr(F+2,2)}"); e(f"v_pk_add_f32 {vr(B,2)}, {vr(F+4,2)}, {vr(F+6,2)}")
    for p in range(4, 12):
        d = A if p % 2 == 0 else B
        e(f"v_pk_add_f32 {vr(d,2)}, {vr(d,2)}, {vr(F+2*p,2)}")
    e(f"v_pk_add_f32 {vr(A,2)}, {vr(A,2)}, {vr(B,2)}"); e(f"v_add_f32 v{A}, v{A}, v{A+1}")
    red(A)
    M = T + 4
    e(f"v_mul_f32 v{M}, {fhex(1/192)}, v{A}")
    for p in range(12):
        e(f"v_pk_add_f32 {vr(F+2*p,2)}, {vr(F+2*p,2)}, {vr(M,2)} op_sel_hi:[1,0] neg_lo:[0,1] neg_hi:[0,1]")
    e(f"v_pk_mul_f32 {vr(A,2)}, {vr(F,2)}, {vr(F,2)}"); e(f"v_pk_mul_f32 {vr(B,2)}, {vr(F+2,2)}, {vr(F+2,2)}")
    for p in range(2, 12):
        d = A if p % 2 == 0 else B
        e(f"v_pk_fma_f32 {vr(d,2)}, {vr(F+2*p,2)}, {vr(F+2*p,2)}, {vr(d,2)}")
    e(f"v_pk_add_f32 {vr(A,2)}, {vr(A,2)}, {vr(B,2)}"); e(f"v_add_f32 v{A}, v{A}, v{A+1}")
    red(A)
    e(f"v_mov_b32 v{M+1}, v{A}")
    e(f"ds_write_b64 v173, {vr(M,2)}")
    e("s_waitcnt lgkmcnt(0)"); e("s_barrier")
    G = T + 8
    for w in range(3): e(f"ds_read_b64 {vr(G+2*w,2)}, v{vL} offset:{64*w}")
    e(f"s_mul_i32 s{S_TAG}, s{S_TAG}, 0x9e3779b1"); e(f"s_add_u32 s{S_TAG}, s{S_TAG}, 0x7f4a7c15")
    e("s_waitcnt lgkmcnt(0)")
    e(f"v_add_f32 v{A}, v{G}, v{G+2}"); e(f"v_add_f32 v{B}, v{G+1}, v{G+3}")
    e(f"v_add_f32 v{A}, v{A}, v{G+4}"); e(f"v_add_f32 v{B}, v{B}, v{G+5}")
    e(f"v_mul_f32 v{A}, {fhex(1/3)}, v{A}")
    for w in range(3): e(f"v_sub_f32 v{G+2*w}, v{G+2*w}, v{A}")
    e(f"v_mul_f32 v{A+1}, v{G}, v{G}"); e(f"v_fmac_f32 v{A+1}, v{G+2}, v{G+2}"); e(f"v_fmac_f32 v{A+1}, v{G+4}, v{G+4}")
    e(f"v_fmac_f32 v{B}, {fhex(192.0)}, v{A+1}")
    e(f"v_mul_f32 v{B}, {fhex(1/576)}, v{B}")
    e(f"v_sub_f32 v{M}, v{M}, v{A}")
    e(f"v_add_f32 v{A}, {fhex(1e-5)}, v{B}"); e(f"v_rsq_f32 v{A}, v{A}")
    e(f"v_mul_f32 v{B}, v{B}, v{A}"); e(f"v_mul_f32 v{B}, v{B}, v{A}")
    e(f"v_add_f32 v{B}, {fhex(1e-5)}, v{B}"); e(f"v_rsq_f32 v{B}, v{B}")
    SXr, SHr, DX, DH = G, G + 2, G + 4, G + 6
    e(f"v_mul_f32 v{SXr}, {fhex(QSCALE)}, v{A}"); e(f"v_mul_f32 v{DX}, v{M}, v{SXr}")
    e(f"v_mul_f32 v{SHr}, v{B}, v{A}"); e(f"v_mul_f32 v{DH}, v{M}, v{SHr}")
    U = 180
    e("s_mov_b32 s3, 262144"); e("s_mov_b32 s4, 524288")
    for i in range(3):
        for (sc, dl, dst, which) in [(SXr, DX, R + 4*i, 0), (SHr, DH, 156 + 4*i, 1)]:
            u = U + 8*which
            for p in range(4):
                e(f"v_pk_fma_f32 {vr(u+2*p,2)}, {vr(F+8*i+2*p,2)}, {vr(sc,2)}, {vr(dl,2)} op_sel_hi:[1,0,0]")
            for p in range(4): e(f"v_cvt_pk_bf16_f32 v{dst+p}, v{u+2*p}, v{u+2*p+1}")
            if which == 0:
                so = ["0", "s3", "s4"][i]
                k.vmem(f"buffer_store_dwordx4 {vr(dst,4)}, v{vN}, s[16:19], {so} offen sc1", "ln")
            else:
                k.vmem(f"buffer_store_dwordx4 {vr(dst,4)}, v{vX}, s[20:23], 0 offen offset:{128*i} sc1", "ln")
    st(k, 2)
    k.label(nm + "_st")
    hook_d()
    e("v_lshlrev_b32 v176, 12, v1"); e("s_lshl_b32 s3, s2, 4"); e(f"s_add_u32 s3, s3, {WS_F0}"); e(f"v_mov_b32 v177, s{S_TAG}")
    k.wait(vm=["ln"])
    e("s_barrier")
    e(f"s_cmp_lg_u32 s{S_WAVE}, 0"); e(f"s_cbranch_scc1 {k.L(nm+'_nf')}")
    e("s_mov_b64 exec, 0xff")
    e(f"buffer_store_dword v177, v176, s[{SF}:{SF+3}], s3 offen sc1")
    e("s_mov_b64 exec, -1")
    k.label(nm + "_nf")
    st(k, 3)
    k.vm = ["unknown"]*0

def strip_touch_addr(k, v, idx_s, row0):
    e = k.e
    e(f"v_add_u32 v{v}, s{idx_s}, v1")
    e(f"v_mul_u32_u24 v{v+1}, 1821, v{v}"); e(f"v_lshrrev_b32 v{v+1}, 14, v{v+1}")
    e(f"v_mul_u32_u24 v{v+1}, {9216-9*128}, v{v+1}"); e(f"v_lshl_add_u32 v{v}, v{v}, 7, v{v+1}")
    e(f"s_mul_i32 s3, s{S_XCD}, 1152"); e(f"s_add_u32 s3, s3, {row0*9216}"); e(f"v_add_u32 v{v}, s3, v{v}")

def publish(k, nm):
    e = k.e
    e("s_barrier")
    e(f"s_cmp_lg_u32 s{S_WAVE}, 0"); e(f"s_cbranch_scc1 {k.L(nm+'_nf1')}")
    e(f"s_lshl_b32 s3, s2, 7"); e(f"s_add_u32 s3, s3, {WS_F1}"); e(f"v_mov_b32 v2, s{S_TAG}"); e("v_mov_b32 v3, 0")
    e("s_mov_b64 exec, 1")
    e(f"buffer_store_dword v2, v3, s[{SF}:{SF+3}], s3 offen sc1")
    e("s_mov_b64 exec, -1")
    k.label(nm + "_nf1")

def mlp1(k, UNROLL=8):
    e = k.e
    SW, SH, SU, SB = 8, 12, 16, 20
    sUB, sOW, sOH, sOWm, sOHm, sRD, sWR, sWB, sCNT, sOT, sWH = 68, 69, 70, 71, 72, 73, 74, 75, 76, 77, 78
    sFT, sDT = 32, 33
    vT, vTD = 2, 3
    SLOT = 24576; NS = 6; DW = OPT('dw', 6); DH = 4
    ACC = 112
    vW, vH = 4, 7
    RAb, RBb, RA, RB = 10, 14, 18, 22
    BIAS = 32
    k.label("mlp1")
    k.vm = ["x"]; k.lg = []
    touch_code(k, "mlp1", 40, 30)
    e(f"s_sub_u32 s3, s{S_SLOT}, 22")
    e("s_mul_i32 s4, s3, 11"); e("s_lshr_b32 s4, s4, 5")
    e(f"s_mul_i32 s5, s4, 3"); e(f"s_sub_u32 s{sDT}, s3, s5")
    e(f"s_mul_i32 s6, s{S_XCD}, 3"); e(f"s_add_u32 s{sFT}, s6, s4")
    e(f"s_mul_i32 s{sOW}, s{sFT}, 384"); e(f"s_mul_i32 s{sOH}, s{sDT}, 384")
    e(f"s_add_u32 s{sOWm}, s{sOW}, {63*32*9216}"); e(f"s_add_u32 s{sOHm}, s{sOH}, {63*32*1152}")
    e(f"s_mul_i32 s{sWB}, s{S_WAVE}, 3072")
    e(f"s_lshl_b32 s7, s{S_WAVE}, 3")
    for i in range(3):
        e(f"v_add_u32 v26, {64*i}, v1")
        e("v_mul_u32_u24 v27, 2731, v26"); e("v_lshrrev_b32 v27, 16, v27")
        e("v_mul_u32_u24 v28, 24, v27"); e("v_sub_u32 v28, v26, v28")
        e("v_and_b32 v29, 6, v27"); e("v_xor_b32 v28, v28, v29")
        e("v_add_u32 v27, s7, v27")
        e("v_lshlrev_b32 v28, 4, v28")
        if i: e(f"v_subrev_u32 v28, {1024*i}, v28")
        e(f"v_mul_u32_u24 v29, 9216, v27"); e(f"v_add_u32 v{vW+i}, v29, v28")
        e(f"v_mul_u32_u24 v29, 1152, v27"); e(f"v_add_u32 v{vH+i}, v29, v28")
    wpol = [" nt" if NI else ""]
    def dma(i, which, tag):
        if which == 0:
            k.vmem(f"buffer_load_dwordx4 v{vW+i}, s[{SW}:{SW+3}], s{sOW} offen offset:{1024*i}{wpol[0]} lds", tag)
        else:
            k.vmem(f"buffer_load_dwordx4 v{vH+i}, s[{SH}:{SH+3}], s{sOH} offen offset:{1024*i}{SC} lds", tag)
    def wdma(s_):
        e(f"s_add_u32 m0, s{sWB}, {s_*SLOT}")
        for i in range(3): dma(i, 0, ("W", s_))
        e(f"s_add_u32 s{sOW}, s{sOW}, {32*9216}")
    def hdma(s_):
        e(f"s_add_u32 m0, s{sWB}, {s_*SLOT+12288}")
        for i in range(3): dma(i, 1, ("H", s_))
        e(f"s_add_u32 s{sOH}, s{sOH}, {32*1152}")
    def burst():
        k.vmem(f"buffer_load_dword v{vTD}, v{vT}, s[{SW}:{SW+3}], 0 offen", "touch")
        e(f"v_add_u32 v{vT}, {252*9216}, v{vT}")
    def hook_a():
        k.srd(SW, P_W1, 0, SIZE['w1'])
        for s_ in range(EW): wdma(s_)
    def hook_d():
        e(f"s_sub_u32 s4, s{S_SLOT}, 22"); e("s_lshl_b32 s4, s4, 2"); e(f"s_add_u32 s4, s4, s{S_WAVE}"); e("s_mul_i32 s4, s4, 63")
        strip_touch_addr(k, vT, 4, 0)
        e(f"s_and_b32 s4, s{S_WAVE}, 1"); e(f"s_lshr_b32 s7, s{S_WAVE}, 1")
        e("v_lshrrev_b32 v27, 2, v1"); e("v_bfe_u32 v28, v27, 1, 2"); e("v_mul_u32_u24 v27, 384, v27")
        e("v_and_b32 v29, 3, v1"); e("v_lshl_add_u32 v27, v29, 3, v27")
        e("s_mul_i32 s5, s4, 6"); e("s_mul_i32 s6, s7, 6")
        for q in range(4):
            e(f"s_add_u32 s3, s5, {q}"); e("v_xor_b32 v29, s3, v28"); e(f"v_lshl_add_u32 v{RAb+q}, v29, 5, v27")
            e(f"s_add_u32 s3, s6, {q}"); e("v_xor_b32 v29, s3, v28"); e(f"v_lshl_add_u32 v{RBb+q}, v29, 5, v27")
            e(f"v_add_u32 v{RBb+q}, 12288, v{RBb+q}")
        e(f"s_mul_i32 s3, s{sFT}, 6"); e("s_mul_i32 s31, s4, 3"); e("s_add_u32 s3, s3, s31"); e("s_mul_i32 s3, s3, 36")
        e(f"s_mul_i32 s31, s{sDT}, 12"); e("s_add_u32 s3, s3, s31"); e("s_add_u32 s3, s3, s6")
        e(f"s_lshl_b32 s{sUB}, s3, 10")
    ln_phase(k, "mlp1", hook_a, None, hook_d)
    for b in range(MB): burst()
    k.srd(24, P_B1, 0, SIZE['b1'])
    e(f"s_and_b32 s4, s{S_WAVE}, 1"); e(f"s_mul_i32 s3, s{sFT}, 384"); e("s_mul_i32 s31, s4, 192"); e("s_add_u32 s3, s3, s31")
    e("v_lshrrev_b32 v26, 4, v1"); e("v_lshlrev_b32 v27, 3, v26")
    for fb in range(6):
        k.vmem(f"buffer_load_dwordx2 v[{56+2*fb}:{57+2*fb}], v27, s[24:27], s3 offen offset:{32*fb}", "bias")
    MP = OPT('mp', 6)
    for s_ in range(EW, MP): wdma(s_)
    k.srd(SH, P_WS, WS_H, H_BYTES); k.srd(SU, P_WS, WS_U, U_BYTES)
    e(f"s_lshl_b32 s3, s{S_XCD}, 12"); e(f"s_lshl_b32 s4, s{S_WAVE}, 4"); e("s_add_u32 s3, s3, s4"); e(f"s_add_u32 s3, s3, {WS_F0}")
    e("v_lshlrev_b32 v26, 6, v1"); e("v_add_u32 v26, s3, v26")
    poll(k, "mlp1_p0", 26, 27)
    st(k, 4)
    for s_ in range(2): hdma(s_)
    def acc(fb, db): return ACC + (((fb >> 1)*6 + db)*2 + (fb & 1))*4
    def A(buf, i): return buf*48 + 4*i
    def B(buf, i): return buf*48 + 24 + 4*i
    e("s_mov_b32 s3, 0xffff0000")
    for fb in range(6):
        for h in range(2):
            e(f"v_lshlrev_b32 v{BIAS+4*fb+2*h}, 16, v{56+2*fb+h}")
            e(f"v_and_b32 v{BIAS+4*fb+2*h+1}, s3, v{56+2*fb+h}")
    for fb in range(6):
        for db in range(6):
            for r in range(0, 4, 2): e(f"v_pk_mov_b32 {vr(acc(fb,db)+r,2)}, {vr(BIAS+4*fb+r,2)}, {vr(BIAS+4*fb+r,2)} op_sel:[0,1]")
    def reads(ra, rb, buf):
        L = []
        for i in range(6):
            for h in range(2):
                L.append(f"ds_read_b64_tr_b16 {ar(B(buf,i)+2*h,2)}, v{rb+(i&3)} offset:{(i>>2)*128+h*6144}")
        for i in range(6):
            for h in range(2):
                L.append(f"ds_read_b64_tr_b16 {ar(A(buf,i)+2*h,2)}, v{ra+(i&3)} offset:{(i>>2)*128+h*6144}")
        return L
    hdma(2)
    k.wait(vm=[("H", 0)])
    e("s_barrier")
    for t in reads(RAb, RBb, 0): e(t)
    hdma(3)
    for s_ in range(MP, DW): wdma(s_)
    k.wait(vm=[("H", 2)])
    e(f"s_lshl_b32 s3, s2, 2"); e(f"s_add_u32 s3, s3, s{S_WAVE}"); e(f"s_cmp_eq_u32 s3, {176*4}")
    e(f"s_cselect_b32 s3, {WS_E}, {OOB}"); e("v_mov_b32 v26, s3"); e(f"v_mov_b32 v27, s{S_TAG}")
    e(f"buffer_store_dword v27, v26, s[{SF}:{SF+3}], 0 offen sc1")
    for q in range(4):
        e(f"v_add_u32 v{RA+q}, {SLOT}, v{RAb+q}"); e(f"v_add_u32 v{RB+q}, {SLOT}, v{RBb+q}")
    e(f"s_mov_b32 s{sWR}, {(DW % NS)*SLOT}"); e(f"s_mov_b32 s{sWH}, {(DH % NS)*SLOT}"); e(f"s_mov_b32 s{sRD}, {SLOT}")
    e(f"s_add_u32 s79, s{sWB}, 12288")
    e("s_waitcnt lgkmcnt(0)"); e("s_barrier")
    st(k, 5)
    for lab, cnt, pol in [("mlp1_loopn", NI, " nt"), ("mlp1_loop", 64//UNROLL - NI, "")]:
        if cnt == 0: continue
        wpol[0] = pol
        e(f"s_mov_b32 s{sCNT}, {cnt}")
        if SLOWT and pol:
            e(f"s_lshr_b32 s3, s{P_W1}, 7"); e(f"s_mul_i32 s4, s{sFT}, 3"); e("s_add_u32 s3, s3, s4"); e("s_sub_u32 s3, 3, s3"); e("s_and_b32 s3, s3, 7")
            e("s_cmp_lt_u32 s3, 3"); e(f"s_cselect_b32 s{sCNT}, {64//UNROLL}, s{sCNT}"); e(f"s_cbranch_scc1 {k.L('mlp1_loop')}")
        e(".p2align 6")
        k.label(lab)
        body0 = len(k.lines)
        for s_ in range(UNROLL):
            buf = s_ & 1
            g = Gaps(k); u = 0
            for fb in range(6):
                for db in range(6):
                    c = vr(acc(fb, db), 4)
                    g.mfma(u, f"{MF} {c}, {ar(A(buf,fb),4)}, {ar(B(buf,db),4)}, {c}"); u += 1
            dg = [2, 8, 14, 20, 26, 32]
            rg = [x for x in range(36) if x not in dg][:24]
            for n, t in enumerate(reads(RA, RB, buf ^ 1)): g.body(rg[n], t)
            g.head(0, f"s_add_u32 m0, s{sWR}, s{sWB}")
            g.head(1, f"s_min_u32 s{sOW}, s{sOW}, s{sOWm}")
            g.head(3, f"s_add_u32 s{sWR}, s{sWR}, {SLOT}")
            g.head(4, f"s_cmp_eq_u32 s{sWR}, {NS*SLOT}")
            g.head(5, f"s_cselect_b32 s{sWR}, 0, s{sWR}")
            g.head(9, f"s_add_u32 s{sRD}, s{sRD}, {SLOT}")
            g.head(10, f"s_cmp_eq_u32 s{sRD}, {NS*SLOT}")
            g.head(11, f"s_cselect_b32 s{sRD}, 0, s{sRD}")
            for i in range(3): g.body(dg[i], (lambda i=i: dma(i, 0, None)))
            g.head(15, f"s_add_u32 m0, s{sWH}, s79")
            g.head(16, f"s_add_u32 s{sOW}, s{sOW}, {32*9216}")
            g.head(17, f"s_min_u32 s{sOH}, s{sOH}, s{sOHm}")
            g.head(21, f"s_add_u32 s{sWH}, s{sWH}, {SLOT}")
            g.head(22, f"s_cmp_eq_u32 s{sWH}, {NS*SLOT}")
            g.head(23, f"s_cselect_b32 s{sWH}, 0, s{sWH}")
            for i in range(3): g.body(dg[3 + i], (lambda i=i: dma(i, 1, None)))
            g.head(33, f"s_add_u32 s{sOH}, s{sOH}, {32*1152}")
            for q in range(4): g.body(15 + q, f"v_add_u32 v{RB+q}, s{sRD}, v{RBb+q}")
            for q in range(4): g.body(30 + q//2, f"v_add_u32 v{RA+q}, s{sRD}, v{RAb+q}")
            if s_ == UNROLL - 1:
                g.head(31, f"s_sub_u32 s{sCNT}, s{sCNT}, 1")
                g.head(34, f"s_cmp_lg_u32 s{sCNT}, 0")
            g.head(35, f"s_waitcnt vmcnt({(DH-2)*6}) lgkmcnt(0)")
            g.head(35, "s_barrier")
            if s_ == UNROLL - 1:
                g.head(35, f"s_cbranch_scc1 {k.L(lab)}")
            g.emit(0, 36)
        k.loops.append((body0, len(k.lines)))
    k.vm = []; k.lg = []
    st(k, 6)
    C0, C1, ONE, TMP = 26, 28, 30, 40
    c0 = -2*math.sqrt(2/math.pi)*LOG2E
    for r in range(2):
        e(f"v_mov_b32 v{C0+r}, {fhex(c0)}"); e(f"v_mov_b32 v{C1+r}, {fhex(c0*0.044715)}"); e(f"v_mov_b32 v{ONE+r}, 1.0")
    e("v_lshlrev_b32 v4, 4, v1")
    for j in range(3):
        for db in range(0, 6, 2):
            base = [acc(2*j, db), acc(2*j, db+1)]
            pairs = [b + 2*p for b in base for p in range(4)]
            dst = [b + p for b in base for p in range(4)]
            gelu_pairs(k, pairs, dst, TMP + 16*((db//2) & 1), C0, C1, ONE)
            for q in range(2):
                off = (db + q)*1024
                so = f"s{sUB}"
                if off >= 4096:
                    e(f"s_add_u32 s3, s{sUB}, 4096"); so = "s3"; off -= 4096
                k.vmem(f"buffer_store_dwordx4 {vr(base[q],4)}, v4, s[{SU}:{SU+3}], {so} offen offset:{off} sc1")
        e(f"s_add_u32 s{sUB}, s{sUB}, {36*1024}")
    e("s_waitcnt vmcnt(18)")
    st(k, 8)
    e(f"s_branch {k.L('phase2')}")

def spare(k):
    e = k.e
    k.label("spare")
    k.vm = ["x"]; k.lg = []
    touch_code(k, "spare", 16, 30)
    ln_phase(k, "spare", lambda: None, lambda: None)
    if SLOWT:
        e("v_min_u32 v5, 53, v1"); e("v_cmp_lt_u32 vcc, 26, v5"); e("v_cndmask_b32 v2, 0, 1, vcc")
        e("v_mul_u32_u24 v3, 27, v2"); e("v_sub_u32 v5, v5, v3")
        e("v_mul_u32_u24 v3, 43, v5"); e("v_lshrrev_b32 v3, 7, v3"); e("v_mul_u32_u24 v6, 3, v3"); e("v_sub_u32 v5, v5, v6")
        e(f"s_lshr_b32 s3, s{P_W1}, 7"); e("s_sub_u32 s3, 3, s3"); e("s_and_b32 s3, s3, 7")
        e("v_lshl_add_u32 v3, v3, 3, s3"); e("v_mul_u32_u24 v3, 171, v3"); e("v_lshrrev_b32 v3, 9, v3"); e("v_mad_u32_u24 v3, v3, 3, v5")
        e(f"s_lshl_b32 s3, s{S_XCD}, 2"); e(f"s_add_u32 s3, s3, s{S_WAVE}"); e("s_lshl_b32 s3, s3, 1"); e("s_add_u32 s3, s3, 192")
        e("v_add_u32 v2, s3, v2"); e("v_mul_u32_u24 v2, 9216, v2"); e("v_lshl_add_u32 v2, v3, 7, v2")
        e(f"s_mov_b32 s4, {-(-(R2-192)//64)}")
        step = 64
    else:
        e("v_mul_u32_u24 v2, 7282, v1"); e("v_lshrrev_b32 v2, 16, v2")
        e("v_mul_u32_u24 v3, 9, v2"); e("v_sub_u32 v3, v1, v3"); e("v_min_u32 v2, 6, v2")
        e(f"s_mul_i32 s3, s{S_WAVE}, 7"); e("v_add_u32 v2, s3, v2"); e("v_mul_u32_u24 v2, 9216, v2"); e("v_lshl_add_u32 v2, v3, 7, v2")
        e(f"s_mul_i32 s3, s{S_XCD}, 1152"); e(f"s_add_u32 s3, s3, {R1*9216}"); e("v_add_u32 v2, s3, v2")
        e(f"s_mov_b32 s4, {-(-(R2-R1)//28)}")
        step = 28
    k.srd(8, P_B2, 0, SIZE['b2'])
    e("v_lshlrev_b32 v5, 7, v0"); e("buffer_load_dword v4, v5, s[8:11], 0 offen")
    k.srd(8, P_W1, 0, SIZE['w1'])
    k.label("pfloop")
    e("buffer_load_dword v4, v2, s[8:11], 0 offen")
    e(f"v_add_u32 v2, {step*9216}, v2")
    e("s_waitcnt vmcnt(1)")
    e("s_sub_u32 s4, s4, 1"); e("s_cmp_lg_u32 s4, 0"); e(f"s_cbranch_scc1 {k.L('pfloop')}")
    e("s_waitcnt vmcnt(0)")
    st(k, 8)
    e(f"s_branch {k.L('phase2')}")

def attn(k):
    e = k.e
    SQ, SX, SK, SV, SO = 8, 12, 16, 20, 24
    sOQ, sOQ2, sOX, sOKV, sW4, sW3, sOB, sNV, sHQ = 68, 69, 70, 71, 72, 73, 74, 75, 76
    sKVH, sRT0, sRH = 32, 33, 34
    QS = 28672
    KR, VR = 98304, 0
    vQA, vQB, vLIN, vKE, vKO, vPF, vTD = 4, 5, 6, 7, 8, 9, 21
    vXN = 16
    RQ, RX = 10, 14
    RK, RV = 22, 26
    LS, NM, QF, SS = 34, 40, 64, 160
    FK, FV = 192, 224
    DX = OPT("dx", 4)
    k.label("attn")
    k.vm = ["x"]; k.lg = []
    e(f"s_cmp_ge_u32 s{S_SLOT}, 11"); e("s_cselect_b32 s3, 1, 0")
    e("s_mul_i32 s4, s3, 11"); e(f"s_sub_u32 s4, s{S_SLOT}, s4")
    e(f"s_lshl_b32 s5, s{S_XCD}, 1"); e(f"s_add_u32 s{sKVH}, s5, s3")
    e(f"s_and_b32 s{sHQ}, s{S_WAVE}, 1"); e(f"s_lshr_b32 s{sRH}, s{S_WAVE}, 1")
    e(f"s_lshl_b32 s{sW4}, s{S_WAVE}, 12")
    e(f"s_mul_i32 s{sW3}, s{S_WAVE}, 3072"); e(f"s_add_u32 s{sW3}, s{sW3}, 16384")
    e(f"s_lshl_b32 s{sOQ}, s{sKVH}, 9")
    e(f"s_lshl_b32 s3, s{S_WAVE}, 16"); e(f"s_add_u32 s{sOQ}, s{sOQ}, s3")
    e(f"s_add_u32 s{sOQ2}, s{sOQ}, {4*8192-2048}")
    e(f"s_mul_i32 s{sRT0}, s4, 12")
    e(f"v_lshlrev_b32 v{vLIN}, 4, v1")
    e("v_lshrrev_b32 v46, 5, v1"); e("v_and_b32 v47, 31, v1")
    e("v_lshlrev_b32 v48, 2, v46"); e("v_xor_b32 v48, v47, v48"); e("v_lshlrev_b32 v48, 4, v48")
    e(f"v_lshl_add_u32 v{vQA}, v46, 13, v48")
    e(f"v_xor_b32 v{vQB}, 128, v{vQA}"); e(f"v_add_u32 v{vQB}, {2*8192-1024}, v{vQB}")
    def wq(n):
        slot = (n % 5)*QS
        L = [([f"s_add_u32 m0, s{sW4}, {slot}"], None)]
        for i in range(4):
            v = vQA if i % 2 == 0 else vQB
            so = sOQ if i < 2 else sOQ2
            hs = [f"s_add_u32 s{sOQ}, s{sOQ}, {32*8192}"] if i == 2 else []
            L.append((hs, (lambda v=v, so=so, i=i: k.vmem(f"buffer_load_dwordx4 v{v}, s[{SQ}:{SQ+3}], s{so} offen offset:{1024*i}{'' if QT0 <= n < QT0 + (NQ*11)//2 else NT} lds", ("w", n)))))
        L.append(([f"s_add_u32 s{sOQ2}, s{sOQ2}, {32*8192}"], None))
        return L
    def xn(n):
        slot = (n % 5)*QS
        L = [([f"s_add_u32 m0, s{sW3}, {slot}"], None)]
        for i in range(3):
            L.append(([], (lambda i=i: k.vmem(f"buffer_load_dwordx4 v{vXN+i}, s[{SX}:{SX+3}], s{sOX} offen offset:{1024*i}{SC} lds", ("x", n)))))
        L.append(([f"s_add_u32 s{sOX}, s{sOX}, {128*1024}"], None))
        return L
    def kvdma(which, s):
        base = KR + ((s + 3) % 4)*16384 if which == "K" else VR + (s % 4)*16384
        srd = SK if which == "K" else SV
        L = [([f"s_add_u32 m0, s{sW4}, {base}"], None), ([f"s_add_u32 s3, s{sOKV}, {s*16384}"], None)]
        for i in range(4):
            v = vKE if i % 2 == 0 else vKO
            L.append(([], (lambda v=v, i=i: k.vmem(f"buffer_load_dwordx4 v{v}, s[{srd}:{srd+3}], s3 offen offset:{1024*i}{'' if KVT else NT} lds", (which, s)))))
        return L
    def hook_a():
        k.srd(SQ, P_WQ, 0, SIZE['wq'])
        for n in range(EWA): run_now(k, wq(n))
    def hook_d():
        e(f"s_mul_i32 s3, s{S_WAVE}, 3"); e(f"s_add_u32 s3, s3, s{sRT0}"); e(f"s_lshl_b32 s{sOX}, s3, 10")
        for i in range(3):
            e(f"s_cmp_lt_u32 s3, {128-i}"); e(f"s_cselect_b32 s4, 0, {OOB - (1<<24)}"); e(f"v_add_u32 v{vXN+i}, s4, v{vLIN}")
        e(f"s_lshl_b32 s{sOKV}, s{sKVH}, 19"); e(f"s_add_u32 s{sOKV}, s{sOKV}, {1536*256}"); e(f"s_add_u32 s{sOKV}, s{sOKV}, s{sW4}")
        e(f"s_lshl_b32 s3, s{sKVH}, 1"); e(f"s_add_u32 s3, s3, s{sHQ}"); e("s_lshl_b32 s3, s3, 9")
        e(f"s_mul_i32 s31, s{sRH}, 6"); e(f"s_add_u32 s31, s31, s{sRT0}")
        e("s_add_u32 s3, s3, s31"); e(f"s_lshl_b32 s{sOB}, s3, 10")
        e(f"s_sub_u32 s{sNV}, 128, s31")
        e("v_lshrrev_b32 v46, 4, v1"); e("v_and_b32 v47, 15, v1")
        e("v_lshlrev_b32 v48, 1, v46"); e("v_xor_b32 v48, v47, v48"); e("v_lshlrev_b32 v48, 4, v48")
        e(f"v_lshl_add_u32 v{vKE}, v46, 8, v48"); e(f"v_xor_b32 v{vKO}, 128, v{vKE}")
        e("v_and_b32 v48, 7, v47"); e("v_lshlrev_b32 v48, 1, v48"); e("v_xor_b32 v48, v46, v48"); e("v_lshlrev_b32 v48, 4, v48")
        e("v_lshl_add_u32 v48, v47, 8, v48"); e(f"v_add_u32 v48, {KR}, v48")
        for j in range(4): e(f"v_xor_b32 v{RK+j}, {64*j}, v48")
        e("v_lshrrev_b32 v48, 2, v1"); e("v_and_b32 v49, 7, v48"); e("v_lshlrev_b32 v49, 5, v49")
        e("v_lshl_add_u32 v49, v48, 8, v49"); e("v_and_b32 v50, 3, v1"); e("v_lshl_add_u32 v49, v50, 3, v49")
        for et in range(8): e(f"v_xor_b32 v{RV+et}, {32*et}, v49")
        e("v_bfe_u32 v48, v1, 2, 2"); e("v_lshl_add_u32 v49, v46, 3, v48"); e("v_lshlrev_b32 v49, 9, v49")
        e("v_lshl_add_u32 v49, v48, 6, v49"); e("v_lshl_add_u32 v49, v50, 4, v49")
        e(f"s_lshl_b32 s3, s{sHQ}, 8"); e("v_add_u32 v49, s3, v49")
        for j in range(4): e(f"v_xor_b32 v{RQ+j}, {64*j}, v49")
        e(f"s_mul_i32 s3, s{sRH}, 6144"); e("s_add_u32 s3, s3, 16384"); e(f"v_add_u32 v{RX}, s3, v{vLIN}")
        for t in range(6): e(f"v_mov_b32 v{LS+t}, 0")
        if QTS:
            e(f"s_mul_i32 s3, s{sRT0}, 5462"); e("s_lshr_b32 s3, s3, 14"); e(f"s_add_u32 s3, s3, s{S_WAVE}")
            e("s_lshl_b32 s4, s3, 4"); e("v_lshrrev_b32 v58, 2, v1"); e("v_add_u32 v58, s4, v58")
            e("v_lshrrev_b32 v59, 2, v58"); e("v_and_b32 v58, 3, v58"); e("v_lshlrev_b32 v58, 7, v58"); e("v_lshl_add_u32 v58, v59, 13, v58")
            e(f"s_lshl_b32 s4, s{sKVH}, 9"); e(f"s_add_u32 s4, s4, {QT0*32*8192}"); e("v_add_u32 v58, s4, v58")
            e("s_mul_i32 s4, s3, 24"); e("v_min_u32 v60, 23, v1"); e("v_add_u32 v60, s4, v60"); e("v_min_u32 v60, 1023, v60"); e("v_lshlrev_b32 v60, 7, v60")
            e(f"s_lshl_b32 s4, s{sKVH}, 19"); e(f"s_add_u32 s4, s4, {1536*256}"); e("v_add_u32 v60, s4, v60")
            e("v_lshrrev_b32 v59, 2, v0"); e("v_lshlrev_b32 v59, 7, v59"); e(f"s_lshl_b32 s4, s2, 13"); e(f"s_add_u32 s4, s4, {WT0*9216}"); e("v_add_u32 v59, s4, v59")
            k.srd(92, P_W1, 0, SIZE['w1'])
        e(f"s_lshl_b32 s3, s{S_SLOT}, 8"); e("v_add_u32 v19, s3, v0"); e("v_cmp_eq_u32 vcc, 0, v19"); e(f"v_mov_b32 v20, {OOB - (1<<24)}")
        e("v_cndmask_b32 v19, v20, v19, vcc"); e("v_mov_b32 v20, 1")
        e(f"s_mul_i32 s3, s{S_WAVE}, 3"); e(f"s_add_u32 s3, s3, s{sRT0}"); e("s_lshl_b32 s3, s3, 1")
        e("v_min_u32 v46, 5, v1"); e("v_add_u32 v46, s3, v46"); e("v_min_u32 v46, 255, v46")
        e(f"s_lshl_b32 s3, s{S_XCD}, 12"); e(f"s_add_u32 s3, s3, {WS_F0}"); e("v_lshlrev_b32 v46, 4, v46"); e("v_add_u32 v46, s3, v46")
    def w3_b():
        e(f"s_mul_i32 s3, s{sRT0}, 5462"); e("s_lshr_b32 s3, s3, 10")
        e("v_add_u32 v56, s3, v1"); e("v_lshrrev_b32 v57, 2, v56"); e("v_and_b32 v56, 3, v56"); e("v_lshlrev_b32 v56, 7, v56")
        e("v_lshl_add_u32 v56, v57, 13, v56"); e(f"s_lshl_b32 s3, s{sKVH}, 9"); e(f"s_add_u32 s3, s3, {64*8192}")
        k.vmem(f"buffer_load_dword v54, v56, s[{SQ}:{SQ+3}], s3 offen", "touch")
    QT = OPT("qt", 0)
    ln_phase(k, "attn", hook_a, None, hook_d)
    HP = OPT("hp", 3)
    for n in range(EWA, HP): run_now(k, wq(n))
    k.srd(SX, P_WS, WS_XN, XN_BYTES)
    k.srd(SK, P_K, 0, SIZE['k']); k.srd(SV, P_V, 0, SIZE['v']); k.srd(SO, P_WS, WS_O, O_BYTES)
    poll(k, "attn_p0", 46, 47)
    st(k, 4)
    for n in range(2): run_now(k, xn(n))
    def qacc(t, eb): return QF + (((eb >> 1)*6 + t)*2 + (eb & 1))*4
    def QA(buf, eb): return buf*56 + 4*eb
    def QB(buf, t): return buf*56 + 32 + 4*t
    cur = [0]
    def qreads(n):
        buf = n & 1; off = (n % 5)*QS - cur[0]
        assert 0 <= off and off + QS <= 65536
        L = []
        for t in range(6):
            L.append(f"ds_read_b128 {ar(QB(buf,t),4)}, v{RX} offset:{off + 1024*t}")
        for eb in range(8):
            for h in range(2):
                L.append(f"ds_read_b64_tr_b16 {ar(QA(buf,eb)+2*h,2)}, v{RQ+(eb>>1)} offset:{off + h*2048 + (eb&1)*8}")
        return L
    def rebase(n):
        off = (n % 5)*QS - cur[0]
        if 0 <= off and off + QS <= 65536: return []
        d = off; cur[0] += d
        return [f"v_add_u32 v{r}, {d & 0xffffffff}, v{r}" for r in [RQ, RQ+1, RQ+2, RQ+3, RX]]
    k.wait(vm=[("x", 0)]); e("s_barrier")
    for t in qreads(0): e(t)
    if HP <= 2: run_now(k, wq(2))
    run_now(k, xn(2))
    k.wait(vm=[("x", 1)]); e("s_waitcnt lgkmcnt(0)"); e("s_barrier")
    st(k, 5)
    def kread(b, n):
        kb, j = n >> 2, n & 3
        off = ((b//2 + 3) % 4)*16384 + ((b & 1)*2 + kb)*4096
        return lambda: k.dsop(f"ds_read_b128 {ar(FK+4*n,4)}, v{RK+j} offset:{off}", ("k", b, n))
    def vread(b, et, h):
        off = ((b//2) % 4)*16384 + (b & 1)*8192 + h*4096
        return lambda: k.dsop(f"ds_read_b64_tr_b16 {ar(FV+4*et+2*h,2)}, v{RV+et} offset:{off}", ("v", b, et))
    KVL = OPT("kvl", 0)
    if KVL:
        extra = {13: kvdma("K", 0), 14: kvdma("K", 1), 15: kvdma("V", 0), 16: kvdma("V", 1)}
    else:
        extra = {13: kvdma("K", 0), 14: kvdma("K", 1) + kvdma("K", 2), 15: kvdma("V", 0) + kvdma("K", 3),
                 16: kvdma("V", 1) + kvdma("V", 2)}
    for n in range(18):
        buf = n & 1
        g = Gaps(k); u = 0
        for eb in range(8):
            for t in range(6):
                c = vr(qacc(t, eb), 4)
                g.mfma(u, f"{MF} {c}, {ar(QA(buf,eb),4)}, {ar(QB(buf,t),4)}, {c if n else 0}"); u += 1
        ramp = {0: [("w", 3), ("x", 3), ("w", 4)], 1: [("x", 4), ("w", 5), ("x", 5)], 2: [("w", 6), ("x", 6), ("w", 7)]}
        todo = ramp.get(n, [("x", n + 4), ("w", n + 5)])
        L = []; post = []
        for (c_, m) in todo:
            if m < 18 and not (c_ == "w" and m < HP): L += wq(m) if c_ == "w" else xn(m)
        L += extra.get(n, [])
        for (st_, kind) in QTS:
            if st_ != n: continue
            if kind == "q":
                L.append(([], (lambda: k.vmem(f"buffer_load_dword v{vTD}, v58, s[{SQ}:{SQ+3}], 0 offen", "touch"))))
                post.append(f"v_add_u32 v58, {176*8192}, v58")
            elif kind == "w":
                L.append(([], (lambda: k.vmem(f"buffer_load_dword v{vTD}, v59, s[92:95], 0 offen", "touch"))))
                post.append(f"v_add_u32 v59, {11264*128}, v59")
            else:
                srd = SK if kind == "k" else SV
                L.append(([], (lambda srd=srd: k.vmem(f"buffer_load_dword v{vTD}, v60, s[{srd}:{srd+3}], 0 offen", "touch"))))
        nd = sum(1 for hs, b in L if b)
        sp = max(3, min(6, 44 // max(nd, 1)))
        dg = [3 + sp*i for i in range(nd)]
        assert not dg or dg[-1] <= 45, (n, dg)
        place(g, L, dg)
        for t_ in post: g.body(47, t_)
        rg = [x for x in range(48) if x not in dg]
        if n < 17:
            for i, t in enumerate(qreads(n + 1)): g.body(rg[i], t)
            if n < 16:
                for i, t in enumerate(rebase(n + 2)): g.body(rg[22 + i], t)
        if n < 16:
            g.head(46, (lambda n=n: (k.wait(vm=[("x", n + 2), ("w", n + 2)]), e("s_waitcnt lgkmcnt(0)"))))
            g.head(47, "s_barrier")
        elif n == 16:
            g.head(46, (lambda: (k.wait(vm=[("K", 0)]), e("s_waitcnt lgkmcnt(0)"))))
            g.head(47, "s_barrier")
        else:
            for i in range(4): g.body(2*i, kread(0, i))
            late = []
            for j in range(4):
                for t in range(6):
                    src = QF + (j*6 + t)*8; dst = QF + (j*6 + t)*4
                    for p in range(4):
                        u_ = 10 + 12*j + 2*t + p//2
                        ins = f"v_cvt_pk_bf16_f32 v{dst+p}, v{src+2*p}, v{src+2*p+1}"
                        if u_ < 48: g.body(u_, ins)
                        else: late.append((u_ - 48, ins))
            hs = [f"s_mov_b32 s{SQ}, s{P_W2}", f"s_mov_b32 s{SQ+1}, s{P_W2+1}", f"s_mov_b32 s{SQ+2}, {SIZE['w2']}",
                  f"s_add_u32 s{SX}, s{P_W1}, {R2*9216}", f"s_addc_u32 s{SX+1}, s{P_W1+1}, 0", f"s_mov_b32 s{SX+2}, {SIZE['w1'] - R2*9216}",
                  f"s_mul_i32 s4, s2, {4*OPT('pfl', 16)*128}"]
            for i, h in enumerate(hs): g.head(i, h)
            sh = {64: 0, 32: 1, 16: 2}[OPT('pfl', 16)]
            g.body(7, f"v_lshrrev_b32 v{vPF}, {sh}, v0"); g.body(8, f"v_lshlrev_b32 v{vPF}, 7, v{vPF}"); g.body(9, f"v_add_u32 v{vPF}, s4, v{vPF}")
            g.head(47, (lambda: k.wait(lg=[("k", 0, 0)])))
        g.emit(0, 48)
    st(k, 6)
    def Q(t, j): return QF + (j*6 + t)*4
    def S(b, t): return SS + (b & 1)*48 + t*8
    def O(t, et): return ((t*4 + (et >> 1))*2 + (et & 1))*4
    g = Gaps(k)
    U0 = 44
    for b in range(16):
        base = 96*b
        for n in range(8):
            kb, j = n >> 2, n & 3
            for t in range(6):
                d = vr(S(b, t) + 4*kb, 4)
                c = d if j else (vr(NM + 4*t, 4) if b else "0")
                g.mfma(base + 6*n + t, f"{MF} {d}, {ar(FK+4*n,4)}, {vr(Q(t,j),4)}, {c}")
            g.head(base + 6*n - 1, (lambda b=b, n=n: k.wait(lg=[("k", b, n)])))
            if b == 0 and n >= 4: g.body(10 + 2*(n - 4), kread(b, n))
            elif b > 0: g.body(base + 4*n - 13, kread(b, n))
        pb = base + 96 + 48
        for et in range(8):
            for t in range(6):
                d = ar(O(t, et), 4)
                g.mfma(pb + 6*et + t, f"{MF} {d}, {ar(FV+4*et,4)}, {vr(S(b,t),4)}, {d if b else 0}")
            g.head(pb + 6*et - 1, (lambda b=b, et=et: k.wait(lg=[("v", b, et)])))
            for h in range(2): g.body(base + 96 + 4*(8 + 2*et + h) - 13, vread(b, et, h))
    for b in range(16):
        base = 96*b + U0
        for t in range(6):
            s = S(b, t)
            for r in range(8):
                m = 8*t + r
                ue, ua = base + 2*m, base + 2*m + 1
                if b == 0: ue, ua = max(ue, 48), max(ua, 48)
                g.body(ue, f"v_exp_f32 v{s+r}, v{s+r}")
                g.body(ua, f"v_add_f32 v{LS+t}, v{LS+t}, v{s+r}")
        for t in range(6):
            s = S(b, t)
            for c in range(4):
                g.body(base + 5 + 4*(4*t + c), f"v_cvt_pk_bf16_f32 v{s+c}, v{s+2*c}, v{s+2*c+1}")
    for s in range(7):
        ub = 96*(2*s + 2) + 95
        need = [("V", s + 1)] + ([("K", s + 2)] if s + 2 < 8 else [])
        g.head(ub - 1, (lambda need=need: k.wait(vm=need)))
        g.head(ub - 1, "s_barrier")
        if s + 4 < 8:
            L = kvdma("K", s + 4) + kvdma("V", s + 4)
            for i, (hs, bd) in enumerate(L):
                uu = ub + 1 + 8*i
                for h in hs: g.head(uu, h)
                if bd: g.b.setdefault(uu, []).insert(0, bd)
    LN_ = OPT("pfl", 16)
    RL = 704*LN_
    seq = []
    for (srd, nl, ptr, size) in [(SX, (2048 - R2)*72, None, 0), (SX, 36864, P_WO, SIZE['wo']), (SX, 18432, P_X, SIZE['x']), (SQ, 147456, None, 0)]:
        for r in range(-(-nl // RL)): seq.append((srd, r, ptr if r == 0 else None, size))
    pp = OPTS("pfpos", "")
    if pp: pos = [int(x) for x in pp.split(",")]
    elif LN_ == 64: pos = [60] + [96*p + 2 for p in (2, 4, 5, 6, 8, 10, 12)]
    else:
        p0, p1 = 60, 96*OPT("pfend", 14)
        pos = [2*((p0 + (p1 - p0)*i//(len(seq) - 1))//2) for i in range(len(seq))]
    assert len(pos) == len(seq), (len(pos), len(seq))
    cur_r = 0
    for (srd, r, ptr, size), p in zip(seq, pos):
        if r != cur_r:
            g.body(p - 6, f"v_add_u32 v{vPF}, {((r - cur_r)*RL*128) & 0xffffffff}, v{vPF}"); cur_r = r
        if ptr:
            for q, h in enumerate([f"s_mov_b32 s{SX}, s{ptr}", f"s_mov_b32 s{SX+1}, s{ptr+1}", f"s_mov_b32 s{SX+2}, {size}"]):
                g.head(p - 14 + 2*q, h)
            lastx = p
        g.b.setdefault(p, []).insert(0, (lambda srd=srd: k.vmem(f"buffer_load_dword v{vTD}, v{vPF}, s[{srd}:{srd+3}], 0 offen", "touch")))
    assert max(p for (sd, r, pt, sz), p in zip(seq, pos) if sd == SX) < 96*OPT("rankper", 9) + 50
    if DYN:
        pr = OPT("rankper", 9)
        for q, h in enumerate([f"s_mov_b32 s{SX}, s{P_DBG}", f"s_mov_b32 s{SX+1}, s{P_DBG+1}", f"s_mov_b32 s{SX+2}, 256"]):
            g.head(96*pr + 50 + 2*q, h)
        g.b.setdefault(96*pr + 94, []).insert(0, (lambda: k.vmem(f"buffer_atomic_add v20, v19, s[{SX}:{SX+3}], 0 offen sc0 sc1", "tk")))
        g.head(96*(pr+2) + 60, (lambda: k.wait(vm=["tk"])))
        g.body(96*(pr+2) + 60, "v_and_b32 v20, 7, v20")
        g.body(96*(pr+2) + 62, f"v_add_u32 v20, s{S_TAG}, v20")
        g.head(96*(pr+2) + 62, f"s_lshl_b32 s3, s{S_XCD}, 7")
        g.b.setdefault(96*(pr+2) + 66, []).insert(0, (lambda: k.vmem(f"buffer_store_dword v20, v19, s[{SF}:{SF+3}], s3 offen offset:{WS_R} sc1", "rk")))
    for (u_, ins) in late: g.body(u_, ins)
    place(g, kvdma("K", 2) if KVL else kvdma("V", 3), [11, 15, 19, 21], 0)
    if KVL:
        for i, (hs, bd) in enumerate(kvdma("K", 3) + kvdma("V", 2) + kvdma("V", 3)):
            uu = 96 + 10*i
            for h in hs: g.head(uu, h)
            if bd: g.b.setdefault(uu, []).insert(0, bd)
    mx = []
    for t in range(6): mx.append(f"v_max3_f32 v{NM+4*t}, v{S(0,t)}, v{S(0,t)+1}, v{S(0,t)+2}")
    for t in range(6): mx.append(f"v_max_f32 v{NM+4*t}, v{NM+4*t}, v{S(0,t)+3}")
    for sw in ["v_permlane32_swap_b32", "v_permlane16_swap_b32"]:
        for t in range(6): mx.append(f"v_mov_b32 v{NM+4*t+1}, v{NM+4*t}")
        for t in range(6): mx.append(f"{sw} v{NM+4*t}, v{NM+4*t+1}")
        for t in range(6): mx.append(f"v_max_f32 v{NM+4*t}, v{NM+4*t}, v{NM+4*t+1}")
    for t in range(6):
        for r in (1, 2, 3, 0): mx.append(f"v_mul_f32 v{NM+4*t+r}, -1.0, v{NM+4*t}")
    for i, ins in enumerate(mx): g.body(min(25 + i//2, 47), ins)
    g.head(44, (lambda: k.wait(vm=[("K", 1), ("V", 0)]))); g.head(44, "s_barrier")
    g.emit(0, 48)
    for t in range(6):
        s = S(0, t)
        for r in range(0, 8, 2): e(f"v_pk_add_f32 {vr(s+r,2)}, {vr(s+r,2)}, {vr(NM+4*t,2)}")
    items = []
    for u_ in range(48, 96):
        items += g.h.get(u_, []) + g.b.get(u_, [])
    for i in range(len(items) - 1):
        pass
    pend = []
    for it in items:
        if isinstance(it, str) and it.startswith("v_exp"):
            g._do(it)
            for q in pend: g._do(q)
            pend = []
        else: pend.append(it)
    for q in pend: g._do(q)
    TB = 96*15 + 48
    g.emit(96, TB)
    def cost(it):
        if callable(it): return 1
        return 2 if it.startswith(("v_exp", "v_rcp")) else 1
    def fill(mf, queue, ldsq=None):
        for m in mf:
            if callable(m): m()
            else: e(m)
            n = 2
            if ldsq:
                ldsq.pop(0)(); n = 1
            while queue and n >= cost(queue[0]):
                it = queue.pop(0); n -= cost(it); e(it)
            if queue and n == 2:
                e(queue.pop(0))
    def soft15(t, skip=0):
        s = S(15, t); q = []
        for r in range(8):
            if r >= skip: q.append(f"v_exp_f32 v{s+r}, v{s+r}")
            if r >= 1 and r - 1 >= skip: q.append(f"v_add_f32 v{LS+t}, v{LS+t}, v{s+r-1}")
            if r >= 2 and r % 2 == 0: q.append(f"v_cvt_pk_bf16_f32 v{s+r//2-1}, v{s+r-2}, v{s+r-1}")
        q.append(f"v_add_f32 v{LS+t}, v{LS+t}, v{s+7}")
        q.append(f"v_cvt_pk_bf16_f32 v{s+3}, v{s+6}, v{s+7}")
        return q
    def lred(t):
        m = NM + 4*t
        return [f"v_cmp_nge_f32 vcc, {fhex(THR)}, v{LS+t}", f"v_mov_b32 v{m+1}, v{LS+t}", f"v_mov_b32 v{m}, v{LS+t}",
                f"v_permlane32_swap_b32 v{m}, v{m+1}", f"v_add_f32 v{m}, v{m}, v{m+1}", f"v_mov_b32 v{m+1}, v{m}",
                f"v_permlane16_swap_b32 v{m}, v{m+1}", f"v_add_f32 v{m}, v{m}, v{m+1}", f"v_rcp_f32 v{m}, v{m}"]
    def v15read(et, h):
        off = 3*16384 + 8192 + h*4096
        return lambda: k.dsop(f"ds_read_b64_tr_b16 {ar(FK+4*et+2*h,2)}, v{RV+et} offset:{off}", ("v", 15, et))
    ldsq = [vread(14, et, h) for et in range(4, 8) for h in range(2)] + [v15read(et, h) for et in range(8) for h in range(2)]
    mf = []
    for et in range(4):
        for t in range(6):
            d = ar(O(t, et), 4)
            ins = f"{MF} {d}, {ar(FV+4*et,4)}, {vr(S(14,t),4)}, {d}"
            if t == 5 and et < 3: mf.append(lambda ins=ins, et=et: (e(ins), k.wait(lg=[("v", 14, et + 1)])))
            else: mf.append(ins)
    queue = soft15(0, skip=2)
    half = len(mf)//2
    for i, m in enumerate(mf):
        if callable(m): m()
        else: e(m)
        ldsq.pop(0)()
        if queue: e(queue.pop(0))
    for it in queue: e(it)
    e("s_waitcnt lgkmcnt(0)"); k.lg = []
    st(k, 7)
    for t in range(6):
        if t >= 2:
            e(f"s_cmp_le_u32 s{sNV}, {t}"); e(f"s_cbranch_scc1 {k.L('attn_done')}")
        mf = []
        for et in range(4, 8):
            d = ar(O(t, et), 4); mf.append(f"{MF} {d}, {ar(FV+4*et,4)}, {vr(S(14,t),4)}, {d}")
        for et in range(8):
            d = ar(O(t, et), 4); mf.append(f"{MF} {d}, {ar(FK+4*et,4)}, {vr(S(15,t),4)}, {d}")
        lr = lred(t); sm = soft15(t + 1) if t < 5 else []
        queue = []
        while lr or sm:
            if lr: queue.append(lr.pop(0))
            for _ in range(2):
                if sm: queue.append(sm.pop(0))
        fill(mf, queue)
        for it in queue: e(it)
        e(f"s_cbranch_vccnz {k.L('slow')}")
        for j in range(4):
            T = S(14 + (j & 1), t)
            for r in range(8): e(f"v_accvgpr_read_b32 v{T+r}, a{O(t,2*j)+r}")
            for r in range(0, 8, 2): e(f"v_pk_mul_f32 {vr(T+r,2)}, {vr(T+r,2)}, {vr(NM+4*t,2)} op_sel_hi:[1,0]")
            for p in range(4): e(f"v_cvt_pk_bf16_f32 v{T+p}, v{T+2*p}, v{T+2*p+1}")
            e(f"s_add_u32 s3, s{sOB}, {j*131072 + t*1024}")
            k.vmem(f"buffer_store_dwordx4 {vr(T,4)}, v{vLIN}, s[{SO}:{SO+3}], s3 offen sc1")
    k.label("attn_done")
    st(k, 8)
    def slow():
        k.label("slow")
        e("s_nop 15")
        e(f"s_sub_u32 s5, s{sOKV}, s{sW4}")
        e("v_and_b32 v2, 15, v1"); e("v_lshrrev_b32 v3, 4, v1"); e("v_lshlrev_b32 v3, 4, v3"); e("v_lshl_add_u32 v2, v2, 8, v3")
        e("v_add_u32 v3, 4096, v2")
        e(f"s_lshl_b32 s6, s{S_WAVE}, 13"); e("s_add_u32 s6, s6, 65536")
        for et in range(8): e(f"v_add_u32 v{RV+et}, s6, v{RV+et}")
        for t in range(6): e(f"v_mov_b32 v{NM+4*t}, 0xff800000")
        def kloads():
            for n in range(8):
                e(f"buffer_load_dwordx4 {ar(FK+4*n,4)}, v{2+(n>>2)}, s[{SK}:{SK+3}], s3 offen offset:{64*(n&3)}")
        def qk(first):
            for n in range(8):
                kb, j = n >> 2, n & 3
                for t in range(6):
                    d = vr(S(0, t) + 4*kb, 4)
                    e(f"{MF} {d}, {ar(FK+4*n,4)}, {vr(Q(t,j),4)}, {d if j else first(t)}")
            e("s_nop 15")
        e("s_mov_b32 s3, s5"); e("s_mov_b32 s4, 16")
        k.label("slow1")
        kloads(); e("s_waitcnt vmcnt(0)")
        qk(lambda t: "0")
        for t in range(6):
            for r in range(0, 8, 2): e(f"v_max3_f32 v{NM+4*t}, v{NM+4*t}, v{S(0,t)+r}, v{S(0,t)+r+1}")
        e("s_add_u32 s3, s3, 8192"); e("s_sub_u32 s4, s4, 1"); e("s_cmp_lg_u32 s4, 0"); e(f"s_cbranch_scc1 {k.L('slow1')}")
        for sw in ["v_permlane32_swap_b32", "v_permlane16_swap_b32"]:
            for t in range(6): e(f"v_mov_b32 v{NM+4*t+1}, v{NM+4*t}")
            for t in range(6): e(f"{sw} v{NM+4*t}, v{NM+4*t+1}")
            for t in range(6): e(f"v_max_f32 v{NM+4*t}, v{NM+4*t}, v{NM+4*t+1}")
        for t in range(6):
            for r in (1, 2, 3, 0): e(f"v_mul_f32 v{NM+4*t+r}, -1.0, v{NM+4*t}")
            e(f"v_mov_b32 v{LS+t}, 0")
        for r in range(192): e(f"v_accvgpr_write_b32 a{r}, 0")
        e("s_mov_b32 s3, s5"); e("s_mov_b32 s4, 16")
        k.label("slow2")
        kloads()
        for i in range(8):
            if i % 4 == 0:
                e(f"s_add_u32 m0, s6, {(i>>2)*4096}"); e(f"s_add_u32 s7, s3, {(i>>2)*4096}")
            e(f"buffer_load_dwordx4 v{vKE if i % 2 == 0 else vKO}, s[{SV}:{SV+3}], s7 offen offset:{1024*(i&3)} lds")
        e("s_waitcnt vmcnt(0)")
        for et in range(8):
            for h in range(2): e(f"ds_read_b64_tr_b16 {ar(FV+4*et+2*h,2)}, v{RV+et} offset:{h*4096}")
        qk(lambda t: vr(NM + 4*t, 4))
        for t in range(6):
            s_ = S(0, t)
            for r in range(8): e(f"v_exp_f32 v{s_+r}, v{s_+r}")
            for r in range(8): e(f"v_add_f32 v{LS+t}, v{LS+t}, v{s_+r}")
            for c in range(4): e(f"v_cvt_pk_bf16_f32 v{s_+c}, v{s_+2*c}, v{s_+2*c+1}")
        e("s_waitcnt lgkmcnt(0)")
        for et in range(8):
            for t in range(6):
                d = ar(O(t, et), 4)
                e(f"{MF} {d}, {ar(FV+4*et,4)}, {vr(S(0,t),4)}, {d}")
        e("s_add_u32 s3, s3, 8192"); e("s_sub_u32 s4, s4, 1"); e("s_cmp_lg_u32 s4, 0"); e(f"s_cbranch_scc1 {k.L('slow2')}")
        e("s_nop 15")
        for sw in ["v_permlane32_swap_b32", "v_permlane16_swap_b32"]:
            for t in range(6): e(f"v_mov_b32 v{NM+t}, v{LS+t}")
            for t in range(6): e(f"{sw} v{LS+t}, v{NM+t}")
            for t in range(6): e(f"v_add_f32 v{LS+t}, v{LS+t}, v{NM+t}")
        for t in range(6): e(f"v_rcp_f32 v{NM+2*t}, v{LS+t}")
        for t in range(6):
            if t >= 2:
                e(f"s_cmp_le_u32 s{sNV}, {t}"); e(f"s_cbranch_scc1 {k.L('attn_done')}")
            for j in range(4):
                T = SS + ((t*4 + j) % 8)*8
                for r in range(8): e(f"v_accvgpr_read_b32 v{T+r}, a{O(t,2*j)+r}")
                for r in range(0, 8, 2): e(f"v_pk_mul_f32 {vr(T+r,2)}, {vr(T+r,2)}, {vr(NM+2*t,2)} op_sel_hi:[1,0]")
                for p in range(4): e(f"v_cvt_pk_bf16_f32 v{T+p}, v{T+2*p}, v{T+2*p+1}")
                e(f"s_add_u32 s3, s{sOB}, {j*131072 + t*1024}")
                e(f"buffer_store_dwordx4 {vr(T,4)}, v{vLIN}, s[{SO}:{SO+3}], s3 offen sc1")
        e(f"s_branch {k.L('attn_done')}")
    return slow

ACC2 = 112
def acc2(db, sb): return ACC2 + (sb >> 1)*72 + db*8 + (sb & 1)*4
S_ROLE, S_SB, S_DB, S_RH, S_KP, S_TILE = 29, 30, 31, 32, 33, 34
SA, SB_, SP, SX2, SO2 = 8, 12, 16, 20, 24
sOA, sOB2, sM0A, sM0B, sCNT2, sWRP = 68, 69, 70, 71, 72, 73
sPST, sPLD, sFST, sFLD, sXO, sOWN = 75, 76, 77, 78, 35, 79
vL2 = 4
XA, vXW, vXR = 30, 32, 33

def epi_setup(k):
    e = k.e
    k.srd(SX2, P_X, 0, SIZE['x']); k.srd(SO2, P_OUT, 0, SIZE['out'])
    e(f"s_lshl_b32 s3, s{S_RH}, 1"); e(f"s_add_u32 s3, s3, s{S_KP}")
    e(f"s_cmp_eq_u32 s3, s{S_ROLE}"); e(f"s_cselect_b32 s{sOWN}, 1, 0")
    e(f"s_lshl_b32 s5, s{S_TILE}, 2"); e("s_add_u32 s3, s3, s5")
    e("s_lshl_b32 s4, s3, 7"); e(f"s_lshl_b32 s6, s{S_ROLE}, 2"); e(f"s_add_u32 s{sFST}, s4, s6"); e(f"s_add_u32 s{sFST}, s{sFST}, {WS_F}")
    e("s_lshl_b32 s3, s3, 2"); e(f"s_add_u32 s3, s3, s{S_ROLE}"); e(f"s_mul_i32 s{sPST}, s3, 9216")
    e(f"s_add_u32 s5, s5, s{S_ROLE}"); e(f"s_lshl_b32 s{sFLD}, s5, 7"); e(f"s_add_u32 s{sFLD}, s{sFLD}, {WS_F}"); e(f"s_mul_i32 s5, s5, {4*9216}")
    e(f"s_lshl_b32 s3, s{S_WAVE}, 10"); e(f"s_add_u32 s{sPLD}, s5, s3")
    e(f"s_lshl_b32 s3, s{S_SB}, 2"); e(f"s_add_u32 s3, s3, s{S_ROLE}"); e(f"s_mul_i32 s3, s3, {32*1152}")
    e(f"s_mul_i32 s4, s{S_DB}, 288"); e("s_add_u32 s3, s3, s4"); e(f"s_lshl_b32 s4, s{S_WAVE}, 5"); e(f"s_add_u32 s{sXO}, s3, s4")
    e("v_and_b32 v34, 15, v1"); e("v_mul_u32_u24 v34, 1152, v34"); e("v_lshrrev_b32 v35, 4, v1")
    e(f"v_lshl_add_u32 v{XA}, v35, 3, v34"); e(f"v_add_u32 v{XA+1}, {16*1152}, v{XA}")
    e(f"s_mul_i32 s3, s{S_WAVE}, 18432"); e(f"v_add_u32 v{vXW}, s3, v{vL2}")
    e(f"s_xor_b32 s4, s{S_WAVE}, 2"); e(f"s_mul_i32 s3, s4, 18432"); e(f"v_add_u32 v{vXR}, s3, v{vL2}")

def mainloop2(k, role):
    e = k.e
    isA = role == "A"
    vD, vP, RS, RP = 5, 10, 12, 14
    k.label("role" + role)
    k.vm = ["own"]; k.lg = []
    NK = 64 if isA else 72
    e(f"s_and_b32 s6, s{S_ROLE}, 1"); e(f"s_mul_i32 s3, s6, {NK}"); e(f"s_mov_b32 s{sCNT2}, {NK//8 - 1}")
    e(f"s_add_u32 s3, s3, s{S_KP}")
    PROG = (not isA) and OPT("prog", 1)
    if PROG:
        e("s_cmp_eq_u32 s6, 0"); e("s_cselect_b32 s4, 24, 0"); e("s_add_u32 s3, s3, s4")
        e("s_cmp_eq_u32 s6, 0"); e(f"s_cselect_b32 s{sWRP}, 3, -1")
    e(f"s_mul_i32 s{sM0A}, s{S_KP}, 10240"); e(f"s_mul_i32 s4, s{S_RH}, 5120"); e(f"s_add_u32 s{sM0A}, s{sM0A}, s4")
    if isA:
        k.srd(SA, P_WO, 0, SIZE['wo']); k.srd(SB_, P_WS, WS_O, O_BYTES)
        e(f"s_mul_i32 s{sOA}, s3, {32*1152}"); e(f"s_mul_i32 s4, s{S_RH}, {16*1152}"); e(f"s_add_u32 s{sOA}, s{sOA}, s4")
        e(f"s_mul_i32 s4, s{S_DB}, 288"); e(f"s_add_u32 s{sOA}, s{sOA}, s4")
        for i in range(5):
            e(f"v_add_u32 v34, {64*i}, v1")
            e("v_mul_u32_u24 v35, 3641, v34"); e("v_lshrrev_b32 v35, 16, v35")
            e(f"v_mul_u32_u24 v35, {1152-288}, v35"); e(f"v_lshl_add_u32 v{vD+i}, v{1 if i < 4 else 34}, 4, v35")
        e(f"v_mov_b32 v36, {OOB - (1<<24)}"); e("v_cmp_gt_u32 vcc, 32, v1"); e(f"v_cndmask_b32 v{vD+4}, v36, v{vD+4}, vcc")
        stepA = 64*1152
        e(f"s_lshl_b32 s4, s3, 7"); e(f"s_lshl_b32 s5, s{S_SB}, 3"); e("s_add_u32 s4, s4, s5")
        e(f"s_lshl_b32 s5, s{S_RH}, 2"); e("s_add_u32 s4, s4, s5"); e(f"s_lshl_b32 s{sOB2}, s4, 10")
        stepB = 2*128*1024
    else:
        k.srd(SA, P_WS, WS_U, U_BYTES); k.srd(SB_, P_W2, 0, SIZE['w2'])
        e("s_mul_i32 s4, s3, 36"); e(f"s_mul_i32 s5, s{S_DB}, 9"); e("s_add_u32 s4, s4, s5")
        e(f"s_mul_i32 s5, s{S_RH}, 5"); e("s_add_u32 s4, s4, s5"); e(f"s_lshl_b32 s{sOA}, s4, 10")
        stepA = 2*36*1024
        e(f"s_lshl_b32 s{sOB2}, s3, 17"); e(f"s_lshl_b32 s4, s{S_SB}, 8"); e(f"s_add_u32 s{sOB2}, s{sOB2}, s4")
        e(f"s_lshl_b32 s4, s{S_RH}, 7"); e(f"s_add_u32 s{sOB2}, s{sOB2}, s4")
        e("v_lshrrev_b32 v34, 3, v1"); e("v_and_b32 v35, 6, v34"); e("v_and_b32 v36, 7, v1"); e("v_xor_b32 v35, v35, v36")
        e("v_lshlrev_b32 v35, 4, v35"); e(f"v_lshl_add_u32 v{vP}, v34, 12, v35")
        e(f"v_add_u32 v{vP+1}, {8*4096-1024}, v{vP}")
        stepB = 64*4096
        e(f"s_lshl_b32 s{sM0B}, s{S_WAVE}, 12"); e(f"s_add_u32 s{sM0B}, s{sM0B}, 81920")
    if OPT("l2only", 0): stepA = stepB = 0
    WSC = SC if OPT("wsc", 0) else ""
    def FA(buf, db): return buf*36 + 4*db
    def FB(n, sb): return 72 + (n % (4 if isA else 2))*16 + 4*sb
    def dmaA(n):
        slot = (n % 4)*20480
        L = [([f"s_add_u32 m0, s{sM0A}, {slot}"], None)]
        for i in range(5):
            if isA: v = vD + i
            else: v = vL2 if i < 4 else vD + 1
            hs = [f"s_add_u32 m0, s{sM0A}, {slot+4096}"] if i == 4 else []
            fl = WSC if isA else SC
            L.append((hs, (lambda v=v, i=i: k.vmem(f"buffer_load_dwordx4 v{v}, s[{SA}:{SA+3}], s{sOA} offen offset:{1024*(i&3)}{fl} lds", ("A", n)))))
        L.append(([f"s_add_u32 s{sOA}, s{sOA}, {stepA}"], None))
        return L
    def dmaB(n):
        L = []
        if isA:
            for sb in range(4):
                L.append(([], (lambda sb=sb: k.vmem(f"buffer_load_dwordx4 {ar(FB(n,sb),4)}, v{vP+(sb>>1)}, s[{SB_}:{SB_+3}], s{sOB2} offen offset:{1024*(sb&1)}{SC}", ("B", n)))))
            L.append(([f"s_add_u32 s{sOB2}, s{sOB2}, {stepB}"], None))
        else:
            slot = (n % 4)*16384
            L.append(([f"s_add_u32 m0, s{sM0B}, {slot}"], None))
            for i in range(4):
                hs = [f"s_add_u32 s{sOB2}, s{sOB2}, {16*4096-2048}"] if i == 2 else []
                L.append((hs, (lambda i=i: k.vmem(f"buffer_load_dwordx4 v{vP+(i&1)}, s[{SB_}:{SB_+3}], s{sOB2} offen offset:{1024*i}{WSC} lds", ("B", n)))))
            L.append(([f"s_add_u32 s{sOB2}, s{sOB2}, {(stepB-(16*4096-2048)) & 0xffffffff}"], None))
        return L
    def reads(n):
        buf = n & 1; sl = n % 4
        r = RS + (1 if sl == 3 else 0); off = 0 if sl == 3 else sl*20480
        L = []
        if isA:
            for db in range(9):
                for h in range(2):
                    L.append(f"ds_read_b64_tr_b16 {ar(FA(buf,db)+2*h,2)}, v{r} offset:{off + db*32 + h*5120}")
        else:
            for sb in range(4):
                for h in range(2):
                    L.append(f"ds_read_b64_tr_b16 {ar(FB(n,sb)+2*h,2)}, v{RP+sb} offset:{sl*16384 + h*2048}")
            for db in range(9):
                L.append(f"ds_read_b128 {ar(FA(buf,db),4)}, v{r} offset:{off + db*1024}")
        return L
    W = dmaA if isA else dmaB
    e("s_barrier")
    run_now(k, W(0))
    if isA:
        e(f"s_lshl_b32 s4, s{S_KP}, 11"); e(f"v_add_u32 v{vP}, s4, v{vL2}"); e(f"v_xor_b32 v{vP+1}, 2048, v{vP}")
        e("v_lshrrev_b32 v34, 2, v1"); e("v_mul_u32_u24 v34, 288, v34"); e("v_and_b32 v35, 3, v1"); e("v_lshl_add_u32 v34, v35, 3, v34")
        e(f"s_mul_i32 s4, s{S_KP}, 10240"); e(f"v_add_u32 v{RS}, s4, v34"); e(f"v_add_u32 v{RS+1}, 61440, v{RS}")
        e(f"s_lshl_b32 s3, s{S_SB}, 7"); e(f"s_lshl_b32 s4, s{S_RH}, 6"); e("s_add_u32 s3, s3, s4")
        e("v_bfe_u32 v34, v1, 3, 1"); e("v_mul_u32_u24 v34, 63, v34"); e("v_add_u32 v34, s3, v34")
        e("v_mul_u32_u24 v34, 1366, v34"); e("v_lshrrev_b32 v34, 18, v34")
        e("v_and_b32 v35, 1, v1"); e("v_mad_u32_u24 v34, v35, 11, v34")
        e("v_bfe_u32 v35, v1, 1, 2"); e("v_lshl_add_u32 v34, v34, 3, v35")
        e(f"s_lshl_b32 s3, s6, 2"); e("v_add_u32 v34, s3, v34")
    else:
        e(f"s_mov_b32 s5, {OOB - (1<<24)}"); e(f"s_cmp_eq_u32 s{S_RH}, 0"); e(f"s_cselect_b32 s4, 4096, s5"); e(f"v_add_u32 v{vD+1}, s4, v{vL2}")
        e(f"s_mul_i32 s4, s{S_KP}, 10240"); e(f"v_add_u32 v{RS}, s4, v{vL2}"); e(f"v_add_u32 v{RS+1}, 61440, v{RS}")
        e("v_lshrrev_b32 v34, 2, v1"); e("v_bfe_u32 v35, v34, 1, 2"); e(f"s_lshl_b32 s4, s{S_KP}, 1"); e("v_xor_b32 v35, s4, v35")
        e("v_lshlrev_b32 v35, 5, v35"); e("v_lshl_add_u32 v35, v34, 7, v35"); e("v_and_b32 v36, 3, v1"); e("v_lshl_add_u32 v35, v36, 3, v35")
        e(f"v_add_u32 v35, s{sM0B}, v35")
        for sb in range(4): e(f"v_xor_b32 v{RP+sb}, {32*sb}, v35")
        k.srd(SP, P_B2, 0, SIZE['b2'])
        e(f"s_lshl_b32 s4, s{S_KP}, 2"); e(f"s_or_b32 s4, s4, s{S_ROLE}"); e("s_cmp_eq_u32 s4, 2"); e(f"s_cselect_b32 s{SP+2}, s{SP+2}, 0")
        e(f"s_lshl_b32 s4, s{S_SB}, 8"); e(f"s_lshl_b32 s5, s{S_RH}, 7"); e("s_add_u32 s4, s4, s5")
        e("v_and_b32 v28, 15, v1"); e("v_lshlrev_b32 v28, 1, v28")
        for sb in range(4):
            k.vmem(f"buffer_load_ushort v{24+sb}, v28, s[{SP}:{SP+3}], s4 offen offset:{32*sb}", "b2")
        e(f"s_mul_i32 s3, s{S_DB}, 144"); e("v_bfe_u32 v34, v1, 4, 1"); e("v_mul_u32_u24 v34, 143, v34"); e("v_add_u32 v34, s3, v34")
        e("v_mul_u32_u24 v34, 1366, v34"); e("v_lshrrev_b32 v34, 18, v34")
        e("v_and_b32 v35, 15, v1"); e("v_min_u32 v35, 11, v35")
        if PROG:
            e("s_xor_b32 s3, s6, 1"); e("s_lshl_b32 s3, s3, 1"); e("v_lshrrev_b32 v36, 1, v35"); e("v_cmp_eq_u32 s[92:93], s3, v36")
        e("v_mul_u32_u24 v36, 43, v35"); e("v_lshrrev_b32 v36, 7, v36")
        e("v_mul_u32_u24 v37, 3, v36"); e("v_sub_u32 v35, v35, v37")
        e("v_mad_u32_u24 v34, v35, 3, v34"); e("v_add_u32 v34, 22, v34"); e("v_lshl_add_u32 v34, v34, 3, v36")
        e(f"s_lshl_b32 s3, s6, 2"); e("v_add_u32 v34, s3, v34")
    e("v_lshlrev_b32 v38, 7, v34"); e(f"v_add_u32 v38, {WS_F1}, v38")
    PRE = (not isA) and OPT("pre", 0)
    if PRE:
        k.vmem(f"buffer_load_dword v37, v38, s[{SF}:{SF+3}], 0 offen sc1", "fl")
    epi_setup(k)
    k.wait(vm=["own"])
    publish(k, "role" + role)
    st(k, 0)
    if isA:
        run_now(k, W(1)); run_now(k, W(2)); run_now(k, W(3))
        for r in range(0, 144, 2): e(f"v_pk_mov_b32 {vr(ACC2+r,2)}, 0, 0")
    else:
        if not PRE: run_now(k, W(1)); run_now(k, W(2))
        if OPT("fine", 0): st(k, 3)
        e(f"s_waitcnt vmcnt({1 if PRE else 8})")
        if OPT("fine", 0): st(k, 4)
        for sb in range(4): e(f"v_lshlrev_b32 v{40+2*sb}, 16, v{24+sb}")
        for db in range(9):
            for sb in range(4):
                for r in range(0, 4, 2): e(f"v_pk_mov_b32 {vr(acc2(db,sb)+r,2)}, {vr(40+2*sb,2)}, {vr(40+2*sb,2)}")
    if OPT("fine", 0): e("s_waitcnt vmcnt(0)"); st(k, 5)
    poll(k, "p1" + role, 38, 37, "s[92:93]" if PROG else None, pre=PRE)
    st(k, 1)
    if isA:
        for n in range(3): run_now(k, dmaB(n))
    else:
        run_now(k, dmaA(0))
        if PRE: run_now(k, W(1))
        run_now(k, dmaA(1))
    k.srd(SP, P_WS, WS_P, P_BYTES)
    if not isA: k.wait(vm=[("A", 0)])
    e("s_barrier")
    for t in reads(0): e(t)
    if not isA:
        if PRE: run_now(k, W(2))
        run_now(k, dmaA(2)); run_now(k, dmaB(3)); run_now(k, dmaA(3))
    k.wait(vm=[("B", 1) if isA else ("A", 1)]); e("s_waitcnt lgkmcnt(0)"); e("s_barrier")
    st(k, 2)
    DB = 3 if isA else 4
    e(".p2align 6")
    k.label(f"loop{role}")
    body0 = len(k.lines)
    for n in range(4):
        buf = n & 1
        g = Gaps(k); u = 0
        for db in range(9):
            for sb in range(4):
                c = vr(acc2(db, sb), 4)
                g.mfma(u, f"{MF} {c}, {ar(FA(buf,db),4)}, {ar(FB(n,sb),4)}, {c}"); u += 1
        L = dmaB(n + DB) + dmaA(n + 4)
        dg = [2 + 4*i for i in range(9)]
        place(g, L, dg)
        rg = [x for x in range(36) if x not in dg]
        for i, t in enumerate(reads(n + 1)): g.body(rg[i], t)
        if n == 3: g.head(28, f"s_sub_u32 s{sCNT2}, s{sCNT2}, 1")
        if PROG and n == 3:
            g.head(29, f"s_cmp_eq_u32 s{sCNT2}, s{sWRP}"); g.head(29, f"s_cselect_b32 s4, {36*stepB}, 0"); g.head(30, f"s_cselect_b32 s5, {36*stepA}, 0")
            g.head(32, f"s_sub_u32 s{sOB2}, s{sOB2}, s4"); g.head(35, f"s_sub_u32 s{sOA}, s{sOA}, s5")
        if PROG and n < 2:
            g.head(35, f"s_cmp_eq_u32 s{sCNT2}, {NK//8 - 1}"); g.head(35, f"s_cbranch_scc1 {k.L('chk'+str(n))}")
            g.head(35, (lambda n=n: k.label("ret" + str(n))))
        g.head(35, "s_waitcnt vmcnt(18) lgkmcnt(0)")
        g.head(35, "s_barrier")
        if n == 3:
            g.head(35, f"s_cmp_lg_u32 s{sCNT2}, 0")
            g.head(35, f"s_cbranch_scc1 {k.L('loop'+role)}")
        g.emit(0, 36)
    k.loops.append((body0, len(k.lines)))
    if not OPT("fine", 0): st(k, 3)
    k.vm = [("B", DB - 2)]*4 + [("A", 2)]*5 + [("B", DB - 1)]*4 + [("A", 3)]*5; k.lg = []
    TA = lambda m, db: [0, 36, 136, 172][m] + 4*db
    TB_ = lambda m, sb: 72 + 16*m + 4*sb
    def treads(m):
        r = RS + (1 if m == 3 else 0); off = 0 if m == 3 else m*20480
        L = []
        def fb(sb):
            for h in range(2):
                L.append((f"ds_read_b64_tr_b16 {ar(TB_(m,sb)+2*h,2)}, v{RP+sb} offset:{m*16384 + h*2048}", ("t", m, 0 if sb >= 2 else 9)))
        if not isA: fb(2); fb(3)
        for db in range(9):
            if isA:
                for h in range(2): L.append((f"ds_read_b64_tr_b16 {ar(TA(m,db)+2*h,2)}, v{r} offset:{off + db*32 + h*5120}", ("t", m, db)))
            else: L.append((f"ds_read_b128 {ar(TA(m,db),4)}, v{r} offset:{off + db*1024}", ("t", m, db)))
        if not isA: fb(0); fb(1)
        return L
    g = Gaps(k); u = 0
    for m in range(4):
        for db in range(9):
            if m: g.head(u - 1, (lambda m=m, db=db: k.wait(lg=[("t", m, db)], vm=[("B", 3)] if (isA and m == 3 and db == 0) else ())))
            for sb in (2, 3):
                c = vr(acc2(db, sb), 4)
                g.mfma(u, f"{MF} {c}, {ar(TA(m,db),4)}, {ar(TB_(m,sb),4)}, {c}"); u += 1
        if m < 3:
            for i, (t, tag) in enumerate(treads(m + 1)): g.body(18*m + i, (lambda t=t, tag=tag: k.dsop(t, tag)))
        if m < 2:
            g.head(18*m + 16, (lambda m=m: k.wait(vm=[("A", m + 2)]))); g.head(18*m + 16, "s_barrier")
    if isA:
        for i, (hs, b) in enumerate(dmaB(3)[:4]): g.body(1 + 4*i, b)
    for db in range(9):
        for m in range(4):
            for sb in (0, 1):
                c = vr(acc2(db, sb), 4)
                g.mfma(u, f"{MF} {c}, {ar(TA(m,db),4)}, {ar(TB_(m,sb),4)}, {c}"); u += 1
    W0, WS_ = OPT("xw0", 62), OPT("xws", 10)
    def drain():
        e("s_waitcnt lgkmcnt(0)"); k.lg = []
    g.head(W0, drain); g.head(W0, "s_barrier")
    wp = [W0 + 1 + (i*WS_)//3 for i in range(18)]
    for i in range(18): g.body(wp[i], f"ds_write_b128 v{vXW}, {vr(ACC2+72+4*i,4)} offset:{1024*i}")
    xp = [x for x in range(74, 120, 2) if x not in wp and x - 1 not in wp][:6]
    for j in range(3):
        for sb in range(2):
            g.body(xp[2*j + sb], f"buffer_load_dwordx2 {vr(18+4*j+2*sb,2)}, v{XA+sb}, s[{SX2}:{SX2+3}], s{sXO} offen offset:{128*j}")
    R0_ = wp[-1] + 4
    g.head(R0_, "s_waitcnt lgkmcnt(0)"); g.head(R0_, "s_barrier")
    for i in range(18): g.body(min(R0_ + 1 + i, 143), f"ds_read_b128 {vr(40+4*i,4)}, v{vXR} offset:{1024*i}")
    g.emit(0, 144)
    k.vm = []; k.lg = []
    if isA: e(f"s_branch {k.L('epi')}")

def phase2(k):
    e = k.e
    k.label("phase2")
    st_save(k, 9, 0)
    if DYN:
        e("s_and_b32 s3, s2, 7"); e("s_lshl_b32 s3, s3, 7"); e(f"s_add_u32 s3, s3, {WS_R}")
        e("s_cmp_ge_u32 s2, 248"); e(f"s_cbranch_scc1 {k.L('rk_poll')}")
        e(f"s_load_dword s5, s[{P_WS}:{P_WS+1}], s3")
        e("s_waitcnt lgkmcnt(0)")
        e(f"s_sub_u32 s5, s5, s{S_TAG}"); e("s_cmp_lt_u32 s5, 8"); e(f"s_cbranch_scc1 {k.L('rk_ok')}")
        k.label("rk_poll")
        e("v_mov_b32 v34, s3"); e("s_mov_b32 s7, 0x80000")
        k.label("rk_loop")
        e(f"buffer_load_dword v35, v34, s[{SF}:{SF+3}], 0 offen sc1")
        e("s_waitcnt vmcnt(0)")
        e("v_readfirstlane_b32 s5, v35")
        e(f"s_sub_u32 s5, s5, s{S_TAG}"); e("s_cmp_lt_u32 s5, 8"); e(f"s_cbranch_scc1 {k.L('rk_ok')}")
        e("s_sleep 8"); e("s_sub_u32 s7, s7, 1"); e("s_cmp_lg_u32 s7, 0"); e(f"s_cbranch_scc1 {k.L('rk_loop')}")
        k.label("rk_ok")
        e("s_and_b32 s5, s5, 7"); e("s_xor_b32 s5, s5, 4")
        if STAMPS: e("v_writelane_b32 v39, s5, 16")
    else:
        e("s_and_b32 s5, s2, 7")
        if STAMPS: e("v_writelane_b32 v39, s5, 16")
    e(f"s_lshr_b32 s{S_ROLE}, s5, 1")
    e("s_and_b32 s3, s5, 1"); e("s_lshl_b32 s3, s3, 3"); e("s_lshr_b32 s4, s2, 5"); e(f"s_add_u32 s{S_SB}, s3, s4")
    e(f"s_bfe_u32 s{S_DB}, s2, 0x20003")
    e(f"s_lshl_b32 s{S_TILE}, s{S_SB}, 2"); e(f"s_add_u32 s{S_TILE}, s{S_TILE}, s{S_DB}")
    e(f"s_and_b32 s{S_RH}, s{S_WAVE}, 1"); e(f"s_lshr_b32 s{S_KP}, s{S_WAVE}, 1")
    e(f"v_lshlrev_b32 v{vL2}, 4, v1")
    e(f"s_cmp_ge_u32 s{S_ROLE}, 2"); e(f"s_cbranch_scc1 {k.L('roleB')}")
    mainloop2(k, "A")
    mainloop2(k, "B")
    k.label("epi")
    T, X, OWNL = 40, 18, 73728
    e(f"v_add_u32 v{vXW}, {OWNL}, v{vL2}")
    def reduce(own):
        k.lg = [("r", i) for i in range(18)]
        for db in range(9):
            k.wait(lg=[("r", 2*db + 1)])
            a = ACC2 + 8*db; t = T + 8*db
            for r in range(0, 8, 2): e(f"v_pk_add_f32 {vr(a+r,2)}, {vr(a+r,2)}, {vr(t+r,2)}")
            for p in range(4): e(f"v_cvt_pk_bf16_f32 v{a+p}, v{a+2*p}, v{a+2*p+1}")
            if own:
                k.dsop(f"ds_write_b128 v{vXW}, {vr(a,4)} offset:{1024*db}", "w")
            else:
                if db % 4 == 0 and db: e(f"s_add_u32 s{sPST}, s{sPST}, 4096")
                e(f"buffer_store_dwordx4 {vr(a,4)}, v{vL2}, s[{SP}:{SP+3}], s{sPST} offen offset:{1024*(db&3)} sc1")
    e(f"s_cmp_eq_u32 s{sOWN}, 1"); e(f"s_cbranch_scc1 {k.L('own')}")
    reduce(False)
    e(f"v_mov_b32 v8, s{S_TAG}"); e("v_mov_b32 v9, 0")
    e("s_barrier")
    e("s_waitcnt vmcnt(0)")
    e("s_mov_b64 exec, 1")
    e(f"buffer_store_dword v8, v9, s[{SF}:{SF+3}], s{sFST} offen sc1")
    e("s_mov_b64 exec, -1")
    e(f"s_branch {k.L('pub')}")
    k.label("own")
    reduce(True)
    e("s_waitcnt lgkmcnt(0)"); e("s_barrier")
    k.label("pub")
    if not OPT("fine", 0): st(k, 4)
    k.lg = []
    OW = 184
    e(f"s_lshl_b32 s3, s{S_WAVE}, 10"); e(f"v_add_u32 v{vXW}, s3, v{vXW}")
    for j in range(3): e(f"ds_read_b128 {vr(OW+4*j,4)}, v{vXW} offset:{4096*j}")
    e("s_mov_b32 s4, 0xffff0000")
    e(f"v_mov_b32 v12, {fhex(-LOG2E)}"); e("v_mov_b32 v14, 1.0")
    e("v_and_b32 v10, 3, v1"); e(f"v_cmp_ne_u32 s[62:63], s{S_ROLE}, v10"); e("v_lshlrev_b32 v10, 2, v10"); e(f"v_add_u32 v10, s{sFLD}, v10")
    for i, x in enumerate((1, 2, 3)):
        e(f"s_xor_b32 s3, s{S_ROLE}, {x}"); e("s_mul_i32 s3, s3, 9216"); e(f"s_add_u32 s{68+i}, s3, s{sPLD}")
    def PR(j, i): return 128 + 12*j + 4*i
    PP = OPT("pp", 1)
    if PP:
        e(f"s_lshl_b32 s6, 1, s{S_ROLE}"); e("s_xor_b32 s6, s6, 15"); e("s_mov_b32 s7, 0x80000")
        e(f"v_add_u32 v16, 4096, v{vL2}"); e(f"s_cmp_eq_u32 s{S_WAVE}, 0"); e(f"s_cselect_b32 s3, 0, {OOB - (1<<26)}"); e("s_add_u32 s3, s3, 8192"); e(f"v_add_u32 v17, s3, v{vL2}")
        k.label("p2")
        e(f"buffer_load_dword v11, v10, s[{SF}:{SF+3}], 0 offen sc1")
        e("s_waitcnt vmcnt(0)")
        e(f"v_cmp_eq_u32 vcc, s{S_TAG}, v11")
        e("s_and_b32 s5, vcc_lo, s6")
        e(f"s_cbranch_scc0 {k.L('p2_none')}")
        e("s_xor_b32 s6, s6, s5")
        for i, x in enumerate((1, 2, 3)):
            e(f"s_xor_b32 s3, s{S_ROLE}, {x}"); e("s_bitcmp1_b32 s5, s3"); e(f"s_cbranch_scc0 {k.L('p2_s'+str(i))}")
            for j in range(3):
                e(f"buffer_load_dwordx4 {vr(PR(j,i),4)}, v{[vL2,16,17][j]}, s[{SP}:{SP+3}], s{68+i} offen sc1")
            k.label("p2_s" + str(i))
        e("s_cmp_eq_u32 s6, 0"); e(f"s_cbranch_scc1 {k.L('p2_ok')}")
        k.label("p2_none")
        e("s_sub_u32 s7, s7, 1"); e("s_cmp_lg_u32 s7, 0"); e(f"s_cbranch_scc1 {k.L('p2')}")
        k.label("p2_ok")
    else:
        poll(k, "p2", 10, 11, "s[62:63]")
    if not OPT("fine", 0): st(k, 5)
    def ploads(j):
        for i in range(3):
            so = f"s{68+i}"
            if j:
                e(f"s_add_u32 s3, s{68+i}, {j*4096}"); so = "s3"
            k.vmem(f"buffer_load_dwordx4 {vr(PR(j,i),4)}, v{vL2}, s[{SP}:{SP+3}], {so} offen sc1", ("p", j))
    def unpack(dst, src):
        for p in range(4):
            e(f"v_lshlrev_b32 v{dst+2*p}, 16, v{src+p}"); e(f"v_and_b32 v{dst+2*p+1}, s4, v{src+p}")
    def padd(d, a, b):
        for r in range(0, 8, 2): e(f"v_pk_add_f32 {vr(d+r,2)}, {vr(a+r,2)}, {vr(b+r,2)}")
    def fin(j, isB):
        Y, U1, U2, U3 = 40 + 32*(j & 1), 48 + 32*(j & 1), 56 + 32*(j & 1), 64 + 32*(j & 1)
        mine = (OW + 4*j, PR(j, 0)); other = (PR(j, 1), PR(j, 2))
        ys, ss = (mine, other) if isB else (other, mine)
        unpack(Y, ys[0]); unpack(U1, ys[1]); padd(Y, Y, U1)
        for r in range(0, 8, 2): e(f"v_pk_mul_f32 {vr(U1+r,2)}, {vr(Y+r,2)}, v[12:13] op_sel_hi:[1,0]")
        for r in range(8): e(f"v_exp_f32 v{U1+r}, v{U1+r}")
        unpack(U2, ss[0]); unpack(U3, ss[1]); padd(U2, U2, U3)
        for r in range(0, 8, 2): e(f"v_pk_add_f32 {vr(U1+r,2)}, {vr(U1+r,2)}, v[14:15] op_sel_hi:[1,0]")
        for r in range(8): e(f"v_rcp_f32 v{U1+r}, v{U1+r}")
        unpack(U3, X + 4*j)
        for r in range(0, 8, 2): e(f"v_pk_mul_f32 {vr(Y+r,2)}, {vr(Y+r,2)}, {vr(U1+r,2)}")
        for r in range(0, 8, 2): e(f"v_pk_fma_f32 {vr(Y+r,2)}, {vr(Y+r,2)}, {vr(U2+r,2)}, {vr(U3+r,2)}")
        for p in range(4): e(f"v_cvt_pk_bf16_f32 v{Y+p}, v{Y+2*p}, v{Y+2*p+1}")
        for sb in range(2):
            k.vmem(f"buffer_store_dwordx2 {vr(Y+2*sb,2)}, v{XA+sb}, s[{SO2}:{SO2+3}], s{sXO} offen offset:{128*j}", "st")
    if not PP:
        e(f"s_cmp_lg_u32 s{S_WAVE}, 0"); e(f"s_cbranch_scc1 {k.L('no3')}")
        ploads(2)
        k.label("no3")
        k.vm = []
        ploads(0); ploads(1)
    e("s_waitcnt lgkmcnt(0)")
    e(f"s_cmp_ge_u32 s{S_ROLE}, 2"); e(f"s_cbranch_scc1 {k.L('finB')}")
    for isB in (False, True):
        if isB: k.label("finB")
        k.vm = [("p", 0), ("p", 1), ("p", 2)] if PP else [("p", 0)]*3 + [("p", 1)]*3
        k.wait(vm=[("p", 0)]); fin(0, isB)
        k.wait(vm=[("p", 1)]); fin(1, isB)
        e(f"s_cmp_lg_u32 s{S_WAVE}, 0"); e(f"s_cbranch_scc1 {k.L('fin')}")
        k.wait(vm=[("p", 2)]); fin(2, isB)
        if not isB: e(f"s_branch {k.L('fin')}")
    k.label("fin")
    if STAMPS:
        e("s_waitcnt vmcnt(0)"); st(k, 6); st_save(k, 7, 9); st_flush(k)
    if OPT("spin", 0):
        e("s_waitcnt vmcnt(0)"); e("s_memrealtime s[4:5]"); e("s_waitcnt lgkmcnt(0)")
        e("s_sub_u32 s3, s4, s98"); e(f"s_mul_i32 s3, s3, {OPT('spin', 0)}"); e("s_lshr_b32 s3, s3, 2"); e("s_min_u32 s3, s3, 100000")
        k.label("spin")
        e("s_memrealtime s[6:7]"); e("s_waitcnt lgkmcnt(0)")
        e("s_sub_u32 s6, s6, s4"); e("s_cmp_lt_u32 s6, s3"); e(f"s_cbranch_scc1 {k.L('spin')}")
    e("s_endpgm")

def fused():
    k = EK("fused_kernel", 256, 256, 163840, vgpr=512, sgpr=102, accum=256)
    k.loops = []
    e = k.e
    e("s_cmp_ge_u32 s2, 256"); e(f"s_cbranch_scc1 {k.L('exit')}")
    if OPT("spin", 0): e("s_memrealtime s[98:99]")
    st(k, 0)
    e("s_load_dwordx16 s[36:51], s[0:1], 0")
    e("s_load_dwordx8 s[52:59], s[0:1], 64")
    e("s_load_dwordx2 s[60:61], s[0:1], 96")
    e(f"s_and_b32 s{S_XCD}, s2, 7"); e(f"s_lshr_b32 s{S_SLOT}, s2, 3")
    e("v_lshrrev_b32 v1, 6, v0"); e("s_nop 0"); e(f"v_readfirstlane_b32 s{S_WAVE}, v1")
    e("v_and_b32 v1, 63, v0")
    touch_code(k, "entry", 40, 2)
    e("v_and_b32 v176, 7, v1"); e("v_lshrrev_b32 v177, 3, v1")
    e("s_lshl_b32 s3, s2, 3"); e("v_add_u32 v178, s3, v176"); e("v_mul_u32_u24 v178, 1152, v178")
    e("v_lshl_add_u32 v170, v177, 4, v178")
    e(f"s_mul_i32 s3, s{S_WAVE}, 384"); e("v_add_u32 v170, s3, v170")
    e(f"s_cmp_eq_u32 s{S_WAVE}, 3"); e(f"s_cselect_b32 s14, 0, {SIZE['x']}"); e("s_mov_b32 s15, 0x20000")
    e("s_waitcnt lgkmcnt(0)")
    e(f"s_mov_b32 s12, s{P_X}"); e(f"s_mov_b32 s13, s{P_X+1}")
    for i in range(3):
        e(f"buffer_load_dwordx4 {vr(100+4*i,4)}, v170, s[12:15], 0 offen offset:{128*i}{XNT}")
    e(f"s_cmp_ge_u32 s{S_SLOT}, 31"); e(f"s_cbranch_scc1 {k.L('spare')}")
    e(f"s_cmp_ge_u32 s{S_SLOT}, 22"); e(f"s_cbranch_scc1 {k.L('mlp1')}")
    slow = attn(k)
    phase2(k)
    k.label("exit"); e("s_endpgm")
    if OPT("prog", 1):
        k.label("chk0")
        e(f"buffer_load_dword v37, v38, s[{SF}:{SF+3}], 0 offen sc1")
        e(f"s_branch {k.L('ret0')}")
        k.label("chk1")
        e("s_waitcnt vmcnt(9)")
        e(f"v_cmp_ne_u32 vcc, s{S_TAG}, v37")
        e(f"s_cbranch_vccz {k.L('ret1')}")
        poll(k, "p1x", 38, 37)
        e(f"s_branch {k.L('ret1')}")
    e(".p2align 6"); mlp1(k)
    e(".p2align 6"); spare(k)
    k.label("end")
    slow()
    return k
```

```python
from common import *
from k1 import Gaps, MF, gelu_pairs

KNAME = "recurrent_scan__sliding_block_cached__mixer_token_mlp__prompt_kernel"
P_X, P_K, P_V, P_WQ, P_WO, P_BX, P_W1, P_B1, P_W2, P_B2, P_OUT, P_DBG, P_WS = 36, 38, 40, 42, 44, 46, 48, 50, 52, 54, 56, 58, 60
S_WAVE, S_XCD, S_SLOT = 28, 29, 30
S_TAG = 100
SF = 64
OOB = 0x7fffff00
LNX = 163584
NT = " nt" if OPT("nt", 1) else ""
SC = " sc1"
XNT = " nt" if OPT("xnt", 1) else ""
R2 = OPT("r2", 1184)
MB = OPT("mb", 0)
NI = OPT("ni", 2)
R1 = 252*MB if MB else (8*NI + OPT('dw', 6))*32
EW = OPT("ew", 1)
EWA = OPT("ewa", 1)
DYN = OPT("dyn", 1)
SLOWT = OPT("slowt", 0)
QTS = [(int(x[:-1]), x[-1]) for x in OPTS("qts", "").split(",") if x]
QT0 = OPT("qt0", 7)
NQ = sum(1 for a_, b_ in QTS if b_ == "q"); NWT = sum(1 for a_, b_ in QTS if b_ == "w")
WT0 = R1
R1 = R1 + (NWT*11264)//72
KVT = any(b_ == "k" for a_, b_ in QTS)
WS_R = 1024
THR = 2.0**OPT('thr', 80)

def SR(i): return [80, 82, 84, 86, 88, 90, 96, 98, 62][i]
def st(k, i):
    if STAMPS: k.e(f"s_memrealtime s[{SR(i)}:{SR(i)+1}]")
def st_save(k, n, lane0):
    if not STAMPS: return
    k.e("s_waitcnt lgkmcnt(0)")
    for i in range(n): k.e(f"v_writelane_b32 v39, s{SR(i)}, {lane0+i}")
def st_flush(k):
    if not STAMPS: return
    e = k.e
    e(f"s_add_u32 s8, s{P_WS}, {200<<20}"); e(f"s_addc_u32 s9, s{P_WS+1}, 0"); e("s_mov_b32 s10, 65536"); e("s_mov_b32 s11, 0x20000")
    e("s_lshl_b32 s3, s2, 7"); e("v_and_b32 v2, 63, v0"); e("v_lshlrev_b32 v2, 2, v2")
    e("s_mov_b64 exec, 0xffffffff")
    e("buffer_store_dword v39, v2, s[8:11], s3 offen")

def run_now(k, L):
    for hs, b in L:
        for h in hs: k.e(h)
        if b: b()

def place(g, L, dg, hp=0):
    di = 0
    for hs, b in L:
        for h in hs:
            g.head(hp, h); hp += 1
        if b:
            assert hp <= dg[di], (hp, dg, di)
            g.body(dg[di], b); hp = dg[di] + 1; di += 1

def touch_code(k, start, nlines, v):
    e = k.e
    e("s_getpc_b64 s[8:9]")
    e(f"s_mov_b32 s10, {nlines*128}"); e("s_mov_b32 s11, 0x20000")
    e(f"v_lshlrev_b32 v{v}, 5, v0")
    k.vmem(f"buffer_load_dword v{v+1}, v{v}, s[8:11], 0 offen", "pf")

def poll(k, name, vaddr, vtmp, mask=None, pre=False):
    e = k.e
    e("s_mov_b32 s7, 0x80000")
    if pre: e(f"s_branch {k.L(name+'_chk')}")
    k.label(name)
    e(f"buffer_load_dword v{vtmp}, v{vaddr}, s[{SF}:{SF+3}], 0 offen sc1")
    k.label(name + "_chk")
    e("s_waitcnt vmcnt(0)")
    e(f"v_cmp_ne_u32 vcc, s{S_TAG}, v{vtmp}")
    if mask: e(f"s_and_b64 vcc, vcc, {mask}")
    e(f"s_cbranch_vccz {k.L(name+'_ok')}")
    e("s_sleep 1"); e("s_sub_u32 s7, s7, 1"); e("s_cmp_lg_u32 s7, 0"); e(f"s_cbranch_scc1 {k.L(name)}")
    k.label(name + "_ok")
    k.vm = []

def ln_phase(k, nm, hook_a, w3_b, hook_d=lambda: None):
    e = k.e
    R, F, T = 100, 112, 140
    vX, vN, vL = 170, 171, 172
    e(f"s_mul_i32 s4, s{S_WAVE}, {6*131072}")
    e("v_lshrrev_b32 v178, 2, v177"); e("v_lshlrev_b32 v178, 17, v178"); e("v_and_b32 v179, 3, v177"); e("v_lshl_add_u32 v178, v179, 8, v178")
    e("v_lshl_add_u32 v178, v176, 4, v178")
    e("s_lshr_b32 s3, s2, 1"); e("s_lshl_b32 s3, s3, 10"); e("s_add_u32 s4, s4, s3"); e("s_and_b32 s3, s2, 1"); e("s_lshl_b32 s3, s3, 7"); e("s_add_u32 s4, s4, s3")
    e(f"v_add_u32 v{vN}, s4, v178")
    e(f"v_lshlrev_b32 v{vL}, 3, v176"); e(f"v_add_u32 v{vL}, {LNX}, v{vL}")
    e(f"s_lshl_b32 s3, s{S_WAVE}, 6"); e(f"v_add_u32 v173, s3, v{vL}")
    e("s_barrier")
    e(f"s_load_dword s{S_TAG}, s[{P_WS}:{P_WS+1}], {WS_E}")
    hook_a()
    e("s_getpc_b64 s[24:25]")
    k.label(nm + "_pc")
    e(f"s_sub_u32 s24, s24, {k.L(nm+'_pc')}-{k.name}"); e("s_subb_u32 s25, s25, 0")
    e(f"s_mov_b32 s26, {k.L('end')}-{k.name}"); e("s_mov_b32 s27, 0x20000")
    e(f"s_lshl_b32 s3, s{S_SLOT}, 2"); e(f"s_add_u32 s3, s3, s{S_WAVE}"); e("s_mul_i32 s3, s3, 768")
    e("v_min_u32 v174, 5, v1"); e("v_lshlrev_b32 v174, 7, v174"); e("v_add_u32 v174, s3, v174")
    k.vmem("buffer_load_dword v175, v174, s[24:27], 0 offen", "pf")
    k.srd(16, P_WS, WS_XN, XN_BYTES); k.srd(20, P_WS, WS_H, H_BYTES); k.srd(SF, P_WS, 0, FLAG_BYTES)
    e(f"s_cmp_lg_u32 s{S_WAVE}, 3"); e(f"s_cbranch_scc1 {k.L(nm+'_ln')}")
    e("s_waitcnt lgkmcnt(0)"); e("s_barrier")
    e(f"s_mul_i32 s{S_TAG}, s{S_TAG}, 0x9e3779b1"); e(f"s_add_u32 s{S_TAG}, s{S_TAG}, 0x7f4a7c15")
    e(f"s_branch {k.L(nm+'_st')}")
    k.label(nm + "_ln")
    e("s_mov_b32 s3, 0xffff0000")
    k.wait(vm=["x"])
    st(k, 1)
    for i in range(12):
        e(f"v_lshlrev_b32 v{F+2*i}, 16, v{R+i}"); e(f"v_and_b32 v{F+2*i+1}, s3, v{R+i}")
    def red(v):
        e(f"v_add_f32_dpp v{v}, v{v}, v{v} row_ror:8 row_mask:0xf bank_mask:0xf")
        for sw in ["v_permlane16_swap_b32", "v_permlane32_swap_b32"]:
            e(f"v_mov_b32 v{v+1}, v{v}"); e(f"{sw} v{v}, v{v+1}"); e(f"v_add_f32 v{v}, v{v}, v{v+1}")
    A, B = T, T + 2
    e(f"v_pk_add_f32 {vr(A,2)}, {vr(F,2)}, {vr(F+2,2)}"); e(f"v_pk_add_f32 {vr(B,2)}, {vr(F+4,2)}, {vr(F+6,2)}")
    for p in range(4, 12):
        d = A if p % 2 == 0 else B
        e(f"v_pk_add_f32 {vr(d,2)}, {vr(d,2)}, {vr(F+2*p,2)}")
    e(f"v_pk_add_f32 {vr(A,2)}, {vr(A,2)}, {vr(B,2)}"); e(f"v_add_f32 v{A}, v{A}, v{A+1}")
    red(A)
    M = T + 4
    e(f"v_mul_f32 v{M}, {fhex(1/192)}, v{A}")
    for p in range(12):
        e(f"v_pk_add_f32 {vr(F+2*p,2)}, {vr(F+2*p,2)}, {vr(M,2)} op_sel_hi:[1,0] neg_lo:[0,1] neg_hi:[0,1]")
    e(f"v_pk_mul_f32 {vr(A,2)}, {vr(F,2)}, {vr(F,2)}"); e(f"v_pk_mul_f32 {vr(B,2)}, {vr(F+2,2)}, {vr(F+2,2)}")
    for p in range(2, 12):
        d = A if p % 2 == 0 else B
        e(f"v_pk_fma_f32 {vr(d,2)}, {vr(F+2*p,2)}, {vr(F+2*p,2)}, {vr(d,2)}")
    e(f"v_pk_add_f32 {vr(A,2)}, {vr(A,2)}, {vr(B,2)}"); e(f"v_add_f32 v{A}, v{A}, v{A+1}")
    red(A)
    e(f"v_mov_b32 v{M+1}, v{A}")
    e(f"ds_write_b64 v173, {vr(M,2)}")
    e("s_waitcnt lgkmcnt(0)"); e("s_barrier")
    G = T + 8
    for w in range(3): e(f"ds_read_b64 {vr(G+2*w,2)}, v{vL} offset:{64*w}")
    e(f"s_mul_i32 s{S_TAG}, s{S_TAG}, 0x9e3779b1"); e(f"s_add_u32 s{S_TAG}, s{S_TAG}, 0x7f4a7c15")
    e("s_waitcnt lgkmcnt(0)")
    e(f"v_add_f32 v{A}, v{G}, v{G+2}"); e(f"v_add_f32 v{B}, v{G+1}, v{G+3}")
    e(f"v_add_f32 v{A}, v{A}, v{G+4}"); e(f"v_add_f32 v{B}, v{B}, v{G+5}")
    e(f"v_mul_f32 v{A}, {fhex(1/3)}, v{A}")
    for w in range(3): e(f"v_sub_f32 v{G+2*w}, v{G+2*w}, v{A}")
    e(f"v_mul_f32 v{A+1}, v{G}, v{G}"); e(f"v_fmac_f32 v{A+1}, v{G+2}, v{G+2}"); e(f"v_fmac_f32 v{A+1}, v{G+4}, v{G+4}")
    e(f"v_fmac_f32 v{B}, {fhex(192.0)}, v{A+1}")
    e(f"v_mul_f32 v{B}, {fhex(1/576)}, v{B}")
    e(f"v_sub_f32 v{M}, v{M}, v{A}")
    e(f"v_add_f32 v{A}, {fhex(1e-5)}, v{B}"); e(f"v_rsq_f32 v{A}, v{A}")
    e(f"v_mul_f32 v{B}, v{B}, v{A}"); e(f"v_mul_f32 v{B}, v{B}, v{A}")
    e(f"v_add_f32 v{B}, {fhex(1e-5)}, v{B}"); e(f"v_rsq_f32 v{B}, v{B}")
    SXr, SHr, DX, DH = G, G + 2, G + 4, G + 6
    e(f"v_mul_f32 v{SXr}, {fhex(QSCALE)}, v{A}"); e(f"v_mul_f32 v{DX}, v{M}, v{SXr}")
    e(f"v_mul_f32 v{SHr}, v{B}, v{A}"); e(f"v_mul_f32 v{DH}, v{M}, v{SHr}")
    U = 180
    e("s_mov_b32 s3, 262144"); e("s_mov_b32 s4, 524288")
    for i in range(3):
        for (sc, dl, dst, which) in [(SXr, DX, R + 4*i, 0), (SHr, DH, 156 + 4*i, 1)]:
            u = U + 8*which
            for p in range(4):
                e(f"v_pk_fma_f32 {vr(u+2*p,2)}, {vr(F+8*i+2*p,2)}, {vr(sc,2)}, {vr(dl,2)} op_sel_hi:[1,0,0]")
            for p in range(4): e(f"v_cvt_pk_bf16_f32 v{dst+p}, v{u+2*p}, v{u+2*p+1}")
            if which == 0:
                so = ["0", "s3", "s4"][i]
                k.vmem(f"buffer_store_dwordx4 {vr(dst,4)}, v{vN}, s[16:19], {so} offen sc1", "ln")
            else:
                k.vmem(f"buffer_store_dwordx4 {vr(dst,4)}, v{vX}, s[20:23], 0 offen offset:{128*i} sc1", "ln")
    st(k, 2)
    k.label(nm + "_st")
    hook_d()
    e("v_lshlrev_b32 v176, 12, v1"); e("s_lshl_b32 s3, s2, 4"); e(f"s_add_u32 s3, s3, {WS_F0}"); e(f"v_mov_b32 v177, s{S_TAG}")
    k.wait(vm=["ln"])
    e("s_barrier")
    e(f"s_cmp_lg_u32 s{S_WAVE}, 0"); e(f"s_cbranch_scc1 {k.L(nm+'_nf')}")
    e("s_mov_b64 exec, 0xff")
    e(f"buffer_store_dword v177, v176, s[{SF}:{SF+3}], s3 offen sc1")
    e("s_mov_b64 exec, -1")
    k.label(nm + "_nf")
    st(k, 3)
    k.vm = ["unknown"]*0

def strip_touch_addr(k, v, idx_s, row0):
    e = k.e
    e(f"v_add_u32 v{v}, s{idx_s}, v1")
    e(f"v_mul_u32_u24 v{v+1}, 1821, v{v}"); e(f"v_lshrrev_b32 v{v+1}, 14, v{v+1}")
    e(f"v_mul_u32_u24 v{v+1}, {9216-9*128}, v{v+1}"); e(f"v_lshl_add_u32 v{v}, v{v}, 7, v{v+1}")
    e(f"s_mul_i32 s3, s{S_XCD}, 1152"); e(f"s_add_u32 s3, s3, {row0*9216}"); e(f"v_add_u32 v{v}, s3, v{v}")

def publish(k, nm):
    e = k.e
    e("s_barrier")
    e(f"s_cmp_lg_u32 s{S_WAVE}, 0"); e(f"s_cbranch_scc1 {k.L(nm+'_nf1')}")
    e(f"s_lshl_b32 s3, s2, 7"); e(f"s_add_u32 s3, s3, {WS_F1}"); e(f"v_mov_b32 v2, s{S_TAG}"); e("v_mov_b32 v3, 0")
    e("s_mov_b64 exec, 1")
    e(f"buffer_store_dword v2, v3, s[{SF}:{SF+3}], s3 offen sc1")
    e("s_mov_b64 exec, -1")
    k.label(nm + "_nf1")

def mlp1(k, UNROLL=8):
    e = k.e
    SW, SH, SU, SB = 8, 12, 16, 20
    sUB, sOW, sOH, sOWm, sOHm, sRD, sWR, sWB, sCNT, sOT, sWH = 68, 69, 70, 71, 72, 73, 74, 75, 76, 77, 78
    sFT, sDT = 32, 33
    vT, vTD = 2, 3
    SLOT = 24576; NS = 6; DW = OPT('dw', 6); DH = 4
    ACC = 112
    vW, vH = 4, 7
    RAb, RBb, RA, RB = 10, 14, 18, 22
    BIAS = 32
    k.label("mlp1")
    k.vm = ["x"]; k.lg = []
    touch_code(k, "mlp1", 40, 30)
    e(f"s_sub_u32 s3, s{S_SLOT}, 22")
    e("s_mul_i32 s4, s3, 11"); e("s_lshr_b32 s4, s4, 5")
    e(f"s_mul_i32 s5, s4, 3"); e(f"s_sub_u32 s{sDT}, s3, s5")
    e(f"s_mul_i32 s6, s{S_XCD}, 3"); e(f"s_add_u32 s{sFT}, s6, s4")
    e(f"s_mul_i32 s{sOW}, s{sFT}, 384"); e(f"s_mul_i32 s{sOH}, s{sDT}, 384")
    e(f"s_add_u32 s{sOWm}, s{sOW}, {63*32*9216}"); e(f"s_add_u32 s{sOHm}, s{sOH}, {63*32*1152}")
    e(f"s_mul_i32 s{sWB}, s{S_WAVE}, 3072")
    e(f"s_lshl_b32 s7, s{S_WAVE}, 3")
    for i in range(3):
        e(f"v_add_u32 v26, {64*i}, v1")
        e("v_mul_u32_u24 v27, 2731, v26"); e("v_lshrrev_b32 v27, 16, v27")
        e("v_mul_u32_u24 v28, 24, v27"); e("v_sub_u32 v28, v26, v28")
        e("v_and_b32 v29, 6, v27"); e("v_xor_b32 v28, v28, v29")
        e("v_add_u32 v27, s7, v27")
        e("v_lshlrev_b32 v28, 4, v28")
        if i: e(f"v_subrev_u32 v28, {1024*i}, v28")
        e(f"v_mul_u32_u24 v29, 9216, v27"); e(f"v_add_u32 v{vW+i}, v29, v28")
        e(f"v_mul_u32_u24 v29, 1152, v27"); e(f"v_add_u32 v{vH+i}, v29, v28")
    wpol = [" nt" if NI else ""]
    def dma(i, which, tag):
        if which == 0:
            k.vmem(f"buffer_load_dwordx4 v{vW+i}, s[{SW}:{SW+3}], s{sOW} offen offset:{1024*i}{wpol[0]} lds", tag)
        else:
            k.vmem(f"buffer_load_dwordx4 v{vH+i}, s[{SH}:{SH+3}], s{sOH} offen offset:{1024*i}{SC} lds", tag)
    def wdma(s_):
        e(f"s_add_u32 m0, s{sWB}, {s_*SLOT}")
        for i in range(3): dma(i, 0, ("W", s_))
        e(f"s_add_u32 s{sOW}, s{sOW}, {32*9216}")
    def hdma(s_):
        e(f"s_add_u32 m0, s{sWB}, {s_*SLOT+12288}")
        for i in range(3): dma(i, 1, ("H", s_))
        e(f"s_add_u32 s{sOH}, s{sOH}, {32*1152}")
    def burst():
        k.vmem(f"buffer_load_dword v{vTD}, v{vT}, s[{SW}:{SW+3}], 0 offen", "touch")
        e(f"v_add_u32 v{vT}, {252*9216}, v{vT}")
    def hook_a():
        k.srd(SW, P_W1, 0, SIZE['w1'])
        for s_ in range(EW): wdma(s_)
    def hook_d():
        e(f"s_sub_u32 s4, s{S_SLOT}, 22"); e("s_lshl_b32 s4, s4, 2"); e(f"s_add_u32 s4, s4, s{S_WAVE}"); e("s_mul_i32 s4, s4, 63")
        strip_touch_addr(k, vT, 4, 0)
        e(f"s_and_b32 s4, s{S_WAVE}, 1"); e(f"s_lshr_b32 s7, s{S_WAVE}, 1")
        e("v_lshrrev_b32 v27, 2, v1"); e("v_bfe_u32 v28, v27, 1, 2"); e("v_mul_u32_u24 v27, 384, v27")
        e("v_and_b32 v29, 3, v1"); e("v_lshl_add_u32 v27, v29, 3, v27")
        e("s_mul_i32 s5, s4, 6"); e("s_mul_i32 s6, s7, 6")
        for q in range(4):
            e(f"s_add_u32 s3, s5, {q}"); e("v_xor_b32 v29, s3, v28"); e(f"v_lshl_add_u32 v{RAb+q}, v29, 5, v27")
            e(f"s_add_u32 s3, s6, {q}"); e("v_xor_b32 v29, s3, v28"); e(f"v_lshl_add_u32 v{RBb+q}, v29, 5, v27")
            e(f"v_add_u32 v{RBb+q}, 12288, v{RBb+q}")
        e(f"s_mul_i32 s3, s{sFT}, 6"); e("s_mul_i32 s31, s4, 3"); e("s_add_u32 s3, s3, s31"); e("s_mul_i32 s3, s3, 36")
        e(f"s_mul_i32 s31, s{sDT}, 12"); e("s_add_u32 s3, s3, s31"); e("s_add_u32 s3, s3, s6")
        e(f"s_lshl_b32 s{sUB}, s3, 10")
    ln_phase(k, "mlp1", hook_a, None, hook_d)
    for b in range(MB): burst()
    k.srd(24, P_B1, 0, SIZE['b1'])
    e(f"s_and_b32 s4, s{S_WAVE}, 1"); e(f"s_mul_i32 s3, s{sFT}, 384"); e("s_mul_i32 s31, s4, 192"); e("s_add_u32 s3, s3, s31")
    e("v_lshrrev_b32 v26, 4, v1"); e("v_lshlrev_b32 v27, 3, v26")
    for fb in range(6):
        k.vmem(f"buffer_load_dwordx2 v[{56+2*fb}:{57+2*fb}], v27, s[24:27], s3 offen offset:{32*fb}", "bias")
    MP = OPT('mp', 6)
    for s_ in range(EW, MP): wdma(s_)
    k.srd(SH, P_WS, WS_H, H_BYTES); k.srd(SU, P_WS, WS_U, U_BYTES)
    e(f"s_lshl_b32 s3, s{S_XCD}, 12"); e(f"s_lshl_b32 s4, s{S_WAVE}, 4"); e("s_add_u32 s3, s3, s4"); e(f"s_add_u32 s3, s3, {WS_F0}")
    e("v_lshlrev_b32 v26, 6, v1"); e("v_add_u32 v26, s3, v26")
    poll(k, "mlp1_p0", 26, 27)
    st(k, 4)
    for s_ in range(2): hdma(s_)
    def acc(fb, db): return ACC + (((fb >> 1)*6 + db)*2 + (fb & 1))*4
    def A(buf, i): return buf*48 + 4*i
    def B(buf, i): return buf*48 + 24 + 4*i
    e("s_mov_b32 s3, 0xffff0000")
    for fb in range(6):
        for h in range(2):
            e(f"v_lshlrev_b32 v{BIAS+4*fb+2*h}, 16, v{56+2*fb+h}")
            e(f"v_and_b32 v{BIAS+4*fb+2*h+1}, s3, v{56+2*fb+h}")
    for fb in range(6):
        for db in range(6):
            for r in range(0, 4, 2): e(f"v_pk_mov_b32 {vr(acc(fb,db)+r,2)}, {vr(BIAS+4*fb+r,2)}, {vr(BIAS+4*fb+r,2)} op_sel:[0,1]")
    def reads(ra, rb, buf):
        L = []
        for i in range(6):
            for h in range(2):
                L.append(f"ds_read_b64_tr_b16 {ar(B(buf,i)+2*h,2)}, v{rb+(i&3)} offset:{(i>>2)*128+h*6144}")
        for i in range(6):
            for h in range(2):
                L.append(f"ds_read_b64_tr_b16 {ar(A(buf,i)+2*h,2)}, v{ra+(i&3)} offset:{(i>>2)*128+h*6144}")
        return L
    hdma(2)
    k.wait(vm=[("H", 0)])
    e("s_barrier")
    for t in reads(RAb, RBb, 0): e(t)
    hdma(3)
    for s_ in range(MP, DW): wdma(s_)
    k.wait(vm=[("H", 2)])
    e(f"s_lshl_b32 s3, s2, 2"); e(f"s_add_u32 s3, s3, s{S_WAVE}"); e(f"s_cmp_eq_u32 s3, {176*4}")
    e(f"s_cselect_b32 s3, {WS_E}, {OOB}"); e("v_mov_b32 v26, s3"); e(f"v_mov_b32 v27, s{S_TAG}")
    e(f"buffer_store_dword v27, v26, s[{SF}:{SF+3}], 0 offen sc1")
    for q in range(4):
        e(f"v_add_u32 v{RA+q}, {SLOT}, v{RAb+q}"); e(f"v_add_u32 v{RB+q}, {SLOT}, v{RBb+q}")
    e(f"s_mov_b32 s{sWR}, {(DW % NS)*SLOT}"); e(f"s_mov_b32 s{sWH}, {(DH % NS)*SLOT}"); e(f"s_mov_b32 s{sRD}, {SLOT}")
    e(f"s_add_u32 s79, s{sWB}, 12288")
    e("s_waitcnt lgkmcnt(0)"); e("s_barrier")
    st(k, 5)
    for lab, cnt, pol in [("mlp1_loopn", NI, " nt"), ("mlp1_loop", 64//UNROLL - NI, "")]:
        if cnt == 0: continue
        wpol[0] = pol
        e(f"s_mov_b32 s{sCNT}, {cnt}")
        if SLOWT and pol:
            e(f"s_lshr_b32 s3, s{P_W1}, 7"); e(f"s_mul_i32 s4, s{sFT}, 3"); e("s_add_u32 s3, s3, s4"); e("s_sub_u32 s3, 3, s3"); e("s_and_b32 s3, s3, 7")
            e("s_cmp_lt_u32 s3, 3"); e(f"s_cselect_b32 s{sCNT}, {64//UNROLL}, s{sCNT}"); e(f"s_cbranch_scc1 {k.L('mlp1_loop')}")
        e(".p2align 6")
        k.label(lab)
        body0 = len(k.lines)
        for s_ in range(UNROLL):
            buf = s_ & 1
            g = Gaps(k); u = 0
            for fb in range(6):
                for db in range(6):
                    c = vr(acc(fb, db), 4)
                    g.mfma(u, f"{MF} {c}, {ar(A(buf,fb),4)}, {ar(B(buf,db),4)}, {c}"); u += 1
            dg = [2, 8, 14, 20, 26, 32]
            rg = [x for x in range(36) if x not in dg][:24]
            for n, t in enumerate(reads(RA, RB, buf ^ 1)): g.body(rg[n], t)
            g.head(0, f"s_add_u32 m0, s{sWR}, s{sWB}")
            g.head(1, f"s_min_u32 s{sOW}, s{sOW}, s{sOWm}")
            g.head(3, f"s_add_u32 s{sWR}, s{sWR}, {SLOT}")
            g.head(4, f"s_cmp_eq_u32 s{sWR}, {NS*SLOT}")
            g.head(5, f"s_cselect_b32 s{sWR}, 0, s{sWR}")
            g.head(9, f"s_add_u32 s{sRD}, s{sRD}, {SLOT}")
            g.head(10, f"s_cmp_eq_u32 s{sRD}, {NS*SLOT}")
            g.head(11, f"s_cselect_b32 s{sRD}, 0, s{sRD}")
            for i in range(3): g.body(dg[i], (lambda i=i: dma(i, 0, None)))
            g.head(15, f"s_add_u32 m0, s{sWH}, s79")
            g.head(16, f"s_add_u32 s{sOW}, s{sOW}, {32*9216}")
            g.head(17, f"s_min_u32 s{sOH}, s{sOH}, s{sOHm}")
            g.head(21, f"s_add_u32 s{sWH}, s{sWH}, {SLOT}")
            g.head(22, f"s_cmp_eq_u32 s{sWH}, {NS*SLOT}")
            g.head(23, f"s_cselect_b32 s{sWH}, 0, s{sWH}")
            for i in range(3): g.body(dg[3 + i], (lambda i=i: dma(i, 1, None)))
            g.head(33, f"s_add_u32 s{sOH}, s{sOH}, {32*1152}")
            for q in range(4): g.body(15 + q, f"v_add_u32 v{RB+q}, s{sRD}, v{RBb+q}")
            for q in range(4): g.body(30 + q//2, f"v_add_u32 v{RA+q}, s{sRD}, v{RAb+q}")
            if s_ == UNROLL - 1:
                g.head(31, f"s_sub_u32 s{sCNT}, s{sCNT}, 1")
                g.head(34, f"s_cmp_lg_u32 s{sCNT}, 0")
            g.head(35, f"s_waitcnt vmcnt({(DH-2)*6}) lgkmcnt(0)")
            g.head(35, "s_barrier")
            if s_ == UNROLL - 1:
                g.head(35, f"s_cbranch_scc1 {k.L(lab)}")
            g.emit(0, 36)
        k.loops.append((body0, len(k.lines)))
    k.vm = []; k.lg = []
    st(k, 6)
    C0, C1, ONE, TMP = 26, 28, 30, 40
    c0 = -2*math.sqrt(2/math.pi)*LOG2E
    for r in range(2):
        e(f"v_mov_b32 v{C0+r}, {fhex(c0)}"); e(f"v_mov_b32 v{C1+r}, {fhex(c0*0.044715)}"); e(f"v_mov_b32 v{ONE+r}, 1.0")
    e("v_lshlrev_b32 v4, 4, v1")
    for j in range(3):
        for db in range(0, 6, 2):
            base = [acc(2*j, db), acc(2*j, db+1)]
            pairs = [b + 2*p for b in base for p in range(4)]
            dst = [b + p for b in base for p in range(4)]
            gelu_pairs(k, pairs, dst, TMP + 16*((db//2) & 1), C0, C1, ONE)
            for q in range(2):
                off = (db + q)*1024
                so = f"s{sUB}"
                if off >= 4096:
                    e(f"s_add_u32 s3, s{sUB}, 4096"); so = "s3"; off -= 4096
                k.vmem(f"buffer_store_dwordx4 {vr(base[q],4)}, v4, s[{SU}:{SU+3}], {so} offen offset:{off} sc1")
        e(f"s_add_u32 s{sUB}, s{sUB}, {36*1024}")
    e("s_waitcnt vmcnt(18)")
    st(k, 8)
    e(f"s_branch {k.L('phase2')}")

def spare(k):
    e = k.e
    k.label("spare")
    k.vm = ["x"]; k.lg = []
    touch_code(k, "spare", 16, 30)
    ln_phase(k, "spare", lambda: None, lambda: None)
    if SLOWT:
        e("v_min_u32 v5, 53, v1"); e("v_cmp_lt_u32 vcc, 26, v5"); e("v_cndmask_b32 v2, 0, 1, vcc")
        e("v_mul_u32_u24 v3, 27, v2"); e("v_sub_u32 v5, v5, v3")
        e("v_mul_u32_u24 v3, 43, v5"); e("v_lshrrev_b32 v3, 7, v3"); e("v_mul_u32_u24 v6, 3, v3"); e("v_sub_u32 v5, v5, v6")
        e(f"s_lshr_b32 s3, s{P_W1}, 7"); e("s_sub_u32 s3, 3, s3"); e("s_and_b32 s3, s3, 7")
        e("v_lshl_add_u32 v3, v3, 3, s3"); e("v_mul_u32_u24 v3, 171, v3"); e("v_lshrrev_b32 v3, 9, v3"); e("v_mad_u32_u24 v3, v3, 3, v5")
        e(f"s_lshl_b32 s3, s{S_XCD}, 2"); e(f"s_add_u32 s3, s3, s{S_WAVE}"); e("s_lshl_b32 s3, s3, 1"); e("s_add_u32 s3, s3, 192")
        e("v_add_u32 v2, s3, v2"); e("v_mul_u32_u24 v2, 9216, v2"); e("v_lshl_add_u32 v2, v3, 7, v2")
        e(f"s_mov_b32 s4, {-(-(R2-192)//64)}")
        step = 64
    else:
        e("v_mul_u32_u24 v2, 7282, v1"); e("v_lshrrev_b32 v2, 16, v2")
        e("v_mul_u32_u24 v3, 9, v2"); e("v_sub_u32 v3, v1, v3"); e("v_min_u32 v2, 6, v2")
        e(f"s_mul_i32 s3, s{S_WAVE}, 7"); e("v_add_u32 v2, s3, v2"); e("v_mul_u32_u24 v2, 9216, v2"); e("v_lshl_add_u32 v2, v3, 7, v2")
        e(f"s_mul_i32 s3, s{S_XCD}, 1152"); e(f"s_add_u32 s3, s3, {R1*9216}"); e("v_add_u32 v2, s3, v2")
        e(f"s_mov_b32 s4, {-(-(R2-R1)//28)}")
        step = 28
    k.srd(8, P_B2, 0, SIZE['b2'])
    e("v_lshlrev_b32 v5, 7, v0"); e("buffer_load_dword v4, v5, s[8:11], 0 offen")
    k.srd(8, P_W1, 0, SIZE['w1'])
    k.label("pfloop")
    e("buffer_load_dword v4, v2, s[8:11], 0 offen")
    e(f"v_add_u32 v2, {step*9216}, v2")
    e("s_waitcnt vmcnt(1)")
    e("s_sub_u32 s4, s4, 1"); e("s_cmp_lg_u32 s4, 0"); e(f"s_cbranch_scc1 {k.L('pfloop')}")
    e("s_waitcnt vmcnt(0)")
    st(k, 8)
    e(f"s_branch {k.L('phase2')}")

def attn(k):
    e = k.e
    SQ, SX, SK, SV, SO = 8, 12, 16, 20, 24
    sOQ, sOQ2, sOX, sOKV, sW4, sW3, sOB, sNV, sHQ = 68, 69, 70, 71, 72, 73, 74, 75, 76
    sKVH, sRT0, sRH = 32, 33, 34
    QS = 28672
    KR, VR = 98304, 0
    vQA, vQB, vLIN, vKE, vKO, vPF, vTD = 4, 5, 6, 7, 8, 9, 21
    vXN = 16
    RQ, RX = 10, 14
    RK, RV = 22, 26
    LS, NM, QF, SS = 34, 40, 64, 160
    FK, FV = 192, 224
    DX = OPT("dx", 4)
    k.label("attn")
    k.vm = ["x"]; k.lg = []
    e(f"s_cmp_ge_u32 s{S_SLOT}, 11"); e("s_cselect_b32 s3, 1, 0")
    e("s_mul_i32 s4, s3, 11"); e(f"s_sub_u32 s4, s{S_SLOT}, s4")
    e(f"s_lshl_b32 s5, s{S_XCD}, 1"); e(f"s_add_u32 s{sKVH}, s5, s3")
    e(f"s_and_b32 s{sHQ}, s{S_WAVE}, 1"); e(f"s_lshr_b32 s{sRH}, s{S_WAVE}, 1")
    e(f"s_lshl_b32 s{sW4}, s{S_WAVE}, 12")
    e(f"s_mul_i32 s{sW3}, s{S_WAVE}, 3072"); e(f"s_add_u32 s{sW3}, s{sW3}, 16384")
    e(f"s_lshl_b32 s{sOQ}, s{sKVH}, 9")
    e(f"s_lshl_b32 s3, s{S_WAVE}, 16"); e(f"s_add_u32 s{sOQ}, s{sOQ}, s3")
    e(f"s_add_u32 s{sOQ2}, s{sOQ}, {4*8192-2048}")
    e(f"s_mul_i32 s{sRT0}, s4, 12")
    e(f"v_lshlrev_b32 v{vLIN}, 4, v1")
    e("v_lshrrev_b32 v46, 5, v1"); e("v_and_b32 v47, 31, v1")
    e("v_lshlrev_b32 v48, 2, v46"); e("v_xor_b32 v48, v47, v48"); e("v_lshlrev_b32 v48, 4, v48")
    e(f"v_lshl_add_u32 v{vQA}, v46, 13, v48")
    e(f"v_xor_b32 v{vQB}, 128, v{vQA}"); e(f"v_add_u32 v{vQB}, {2*8192-1024}, v{vQB}")
    def wq(n):
        slot = (n % 5)*QS
        L = [([f"s_add_u32 m0, s{sW4}, {slot}"], None)]
        for i in range(4):
            v = vQA if i % 2 == 0 else vQB
            so = sOQ if i < 2 else sOQ2
            hs = [f"s_add_u32 s{sOQ}, s{sOQ}, {32*8192}"] if i == 2 else []
            L.append((hs, (lambda v=v, so=so, i=i: k.vmem(f"buffer_load_dwordx4 v{v}, s[{SQ}:{SQ+3}], s{so} offen offset:{1024*i}{'' if QT0 <= n < QT0 + (NQ*11)//2 else NT} lds", ("w", n)))))
        L.append(([f"s_add_u32 s{sOQ2}, s{sOQ2}, {32*8192}"], None))
        return L
    def xn(n):
        slot = (n % 5)*QS
        L = [([f"s_add_u32 m0, s{sW3}, {slot}"], None)]
        for i in range(3):
            L.append(([], (lambda i=i: k.vmem(f"buffer_load_dwordx4 v{vXN+i}, s[{SX}:{SX+3}], s{sOX} offen offset:{1024*i}{SC} lds", ("x", n)))))
        L.append(([f"s_add_u32 s{sOX}, s{sOX}, {128*1024}"], None))
        return L
    def kvdma(which, s):
        base = KR + ((s + 3) % 4)*16384 if which == "K" else VR + (s % 4)*16384
        srd = SK if which == "K" else SV
        L = [([f"s_add_u32 m0, s{sW4}, {base}"], None), ([f"s_add_u32 s3, s{sOKV}, {s*16384}"], None)]
        for i in range(4):
            v = vKE if i % 2 == 0 else vKO
            L.append(([], (lambda v=v, i=i: k.vmem(f"buffer_load_dwordx4 v{v}, s[{srd}:{srd+3}], s3 offen offset:{1024*i}{'' if KVT else NT} lds", (which, s)))))
        return L
    def hook_a():
        k.srd(SQ, P_WQ, 0, SIZE['wq'])
        for n in range(EWA): run_now(k, wq(n))
    def hook_d():
        e(f"s_mul_i32 s3, s{S_WAVE}, 3"); e(f"s_add_u32 s3, s3, s{sRT0}"); e(f"s_lshl_b32 s{sOX}, s3, 10")
        for i in range(3):
            e(f"s_cmp_lt_u32 s3, {128-i}"); e(f"s_cselect_b32 s4, 0, {OOB - (1<<24)}"); e(f"v_add_u32 v{vXN+i}, s4, v{vLIN}")
        e(f"s_lshl_b32 s{sOKV}, s{sKVH}, 19"); e(f"s_add_u32 s{sOKV}, s{sOKV}, {1536*256}"); e(f"s_add_u32 s{sOKV}, s{sOKV}, s{sW4}")
        e(f"s_lshl_b32 s3, s{sKVH}, 1"); e(f"s_add_u32 s3, s3, s{sHQ}"); e("s_lshl_b32 s3, s3, 9")
        e(f"s_mul_i32 s31, s{sRH}, 6"); e(f"s_add_u32 s31, s31, s{sRT0}")
        e("s_add_u32 s3, s3, s31"); e(f"s_lshl_b32 s{sOB}, s3, 10")
        e(f"s_sub_u32 s{sNV}, 128, s31")
        e("v_lshrrev_b32 v46, 4, v1"); e("v_and_b32 v47, 15, v1")
        e("v_lshlrev_b32 v48, 1, v46"); e("v_xor_b32 v48, v47, v48"); e("v_lshlrev_b32 v48, 4, v48")
        e(f"v_lshl_add_u32 v{vKE}, v46, 8, v48"); e(f"v_xor_b32 v{vKO}, 128, v{vKE}")
        e("v_and_b32 v48, 7, v47"); e("v_lshlrev_b32 v48, 1, v48"); e("v_xor_b32 v48, v46, v48"); e("v_lshlrev_b32 v48, 4, v48")
        e("v_lshl_add_u32 v48, v47, 8, v48"); e(f"v_add_u32 v48, {KR}, v48")
        for j in range(4): e(f"v_xor_b32 v{RK+j}, {64*j}, v48")
        e("v_lshrrev_b32 v48, 2, v1"); e("v_and_b32 v49, 7, v48"); e("v_lshlrev_b32 v49, 5, v49")
        e("v_lshl_add_u32 v49, v48, 8, v49"); e("v_and_b32 v50, 3, v1"); e("v_lshl_add_u32 v49, v50, 3, v49")
        for et in range(8): e(f"v_xor_b32 v{RV+et}, {32*et}, v49")
        e("v_bfe_u32 v48, v1, 2, 2"); e("v_lshl_add_u32 v49, v46, 3, v48"); e("v_lshlrev_b32 v49, 9, v49")
        e("v_lshl_add_u32 v49, v48, 6, v49"); e("v_lshl_add_u32 v49, v50, 4, v49")
        e(f"s_lshl_b32 s3, s{sHQ}, 8"); e("v_add_u32 v49, s3, v49")
        for j in range(4): e(f"v_xor_b32 v{RQ+j}, {64*j}, v49")
        e(f"s_mul_i32 s3, s{sRH}, 6144"); e("s_add_u32 s3, s3, 16384"); e(f"v_add_u32 v{RX}, s3, v{vLIN}")
        for t in range(6): e(f"v_mov_b32 v{LS+t}, 0")
        if QTS:
            e(f"s_mul_i32 s3, s{sRT0}, 5462"); e("s_lshr_b32 s3, s3, 14"); e(f"s_add_u32 s3, s3, s{S_WAVE}")
            e("s_lshl_b32 s4, s3, 4"); e("v_lshrrev_b32 v58, 2, v1"); e("v_add_u32 v58, s4, v58")
            e("v_lshrrev_b32 v59, 2, v58"); e("v_and_b32 v58, 3, v58"); e("v_lshlrev_b32 v58, 7, v58"); e("v_lshl_add_u32 v58, v59, 13, v58")
            e(f"s_lshl_b32 s4, s{sKVH}, 9"); e(f"s_add_u32 s4, s4, {QT0*32*8192}"); e("v_add_u32 v58, s4, v58")
            e("s_mul_i32 s4, s3, 24"); e("v_min_u32 v60, 23, v1"); e("v_add_u32 v60, s4, v60"); e("v_min_u32 v60, 1023, v60"); e("v_lshlrev_b32 v60, 7, v60")
            e(f"s_lshl_b32 s4, s{sKVH}, 19"); e(f"s_add_u32 s4, s4, {1536*256}"); e("v_add_u32 v60, s4, v60")
            e("v_lshrrev_b32 v59, 2, v0"); e("v_lshlrev_b32 v59, 7, v59"); e(f"s_lshl_b32 s4, s2, 13"); e(f"s_add_u32 s4, s4, {WT0*9216}"); e("v_add_u32 v59, s4, v59")
            k.srd(92, P_W1, 0, SIZE['w1'])
        e(f"s_lshl_b32 s3, s{S_SLOT}, 8"); e("v_add_u32 v19, s3, v0"); e("v_cmp_eq_u32 vcc, 0, v19"); e(f"v_mov_b32 v20, {OOB - (1<<24)}")
        e("v_cndmask_b32 v19, v20, v19, vcc"); e("v_mov_b32 v20, 1")
        e(f"s_mul_i32 s3, s{S_WAVE}, 3"); e(f"s_add_u32 s3, s3, s{sRT0}"); e("s_lshl_b32 s3, s3, 1")
        e("v_min_u32 v46, 5, v1"); e("v_add_u32 v46, s3, v46"); e("v_min_u32 v46, 255, v46")
        e(f"s_lshl_b32 s3, s{S_XCD}, 12"); e(f"s_add_u32 s3, s3, {WS_F0}"); e("v_lshlrev_b32 v46, 4, v46"); e("v_add_u32 v46, s3, v46")
    def w3_b():
        e(f"s_mul_i32 s3, s{sRT0}, 5462"); e("s_lshr_b32 s3, s3, 10")
        e("v_add_u32 v56, s3, v1"); e("v_lshrrev_b32 v57, 2, v56"); e("v_and_b32 v56, 3, v56"); e("v_lshlrev_b32 v56, 7, v56")
        e("v_lshl_add_u32 v56, v57, 13, v56"); e(f"s_lshl_b32 s3, s{sKVH}, 9"); e(f"s_add_u32 s3, s3, {64*8192}")
        k.vmem(f"buffer_load_dword v54, v56, s[{SQ}:{SQ+3}], s3 offen", "touch")
    QT = OPT("qt", 0)
    ln_phase(k, "attn", hook_a, None, hook_d)
    HP = OPT("hp", 3)
    for n in range(EWA, HP): run_now(k, wq(n))
    k.srd(SX, P_WS, WS_XN, XN_BYTES)
    k.srd(SK, P_K, 0, SIZE['k']); k.srd(SV, P_V, 0, SIZE['v']); k.srd(SO, P_WS, WS_O, O_BYTES)
    poll(k, "attn_p0", 46, 47)
    st(k, 4)
    for n in range(2): run_now(k, xn(n))
    def qacc(t, eb): return QF + (((eb >> 1)*6 + t)*2 + (eb & 1))*4
    def QA(buf, eb): return buf*56 + 4*eb
    def QB(buf, t): return buf*56 + 32 + 4*t
    cur = [0]
    def qreads(n):
        buf = n & 1; off = (n % 5)*QS - cur[0]
        assert 0 <= off and off + QS <= 65536
        L = []
        for t in range(6):
            L.append(f"ds_read_b128 {ar(QB(buf,t),4)}, v{RX} offset:{off + 1024*t}")
        for eb in range(8):
            for h in range(2):
                L.append(f"ds_read_b64_tr_b16 {ar(QA(buf,eb)+2*h,2)}, v{RQ+(eb>>1)} offset:{off + h*2048 + (eb&1)*8}")
        return L
    def rebase(n):
        off = (n % 5)*QS - cur[0]
        if 0 <= off and off + QS <= 65536: return []
        d = off; cur[0] += d
        return [f"v_add_u32 v{r}, {d & 0xffffffff}, v{r}" for r in [RQ, RQ+1, RQ+2, RQ+3, RX]]
    k.wait(vm=[("x", 0)]); e("s_barrier")
    for t in qreads(0): e(t)
    if HP <= 2: run_now(k, wq(2))
    run_now(k, xn(2))
    k.wait(vm=[("x", 1)]); e("s_waitcnt lgkmcnt(0)"); e("s_barrier")
    st(k, 5)
    def kread(b, n):
        kb, j = n >> 2, n & 3
        off = ((b//2 + 3) % 4)*16384 + ((b & 1)*2 + kb)*4096
        return lambda: k.dsop(f"ds_read_b128 {ar(FK+4*n,4)}, v{RK+j} offset:{off}", ("k", b, n))
    def vread(b, et, h):
        off = ((b//2) % 4)*16384 + (b & 1)*8192 + h*4096
        return lambda: k.dsop(f"ds_read_b64_tr_b16 {ar(FV+4*et+2*h,2)}, v{RV+et} offset:{off}", ("v", b, et))
    KVL = OPT("kvl", 0)
    if KVL:
        extra = {13: kvdma("K", 0), 14: kvdma("K", 1), 15: kvdma("V", 0), 16: kvdma("V", 1)}
    else:
        extra = {13: kvdma("K", 0), 14: kvdma("K", 1) + kvdma("K", 2), 15: kvdma("V", 0) + kvdma("K", 3),
                 16: kvdma("V", 1) + kvdma("V", 2)}
    for n in range(18):
        buf = n & 1
        g = Gaps(k); u = 0
        for eb in range(8):
            for t in range(6):
                c = vr(qacc(t, eb), 4)
                g.mfma(u, f"{MF} {c}, {ar(QA(buf,eb),4)}, {ar(QB(buf,t),4)}, {c if n else 0}"); u += 1
        ramp = {0: [("w", 3), ("x", 3), ("w", 4)], 1: [("x", 4), ("w", 5), ("x", 5)], 2: [("w", 6), ("x", 6), ("w", 7)]}
        todo = ramp.get(n, [("x", n + 4), ("w", n + 5)])
        L = []; post = []
        for (c_, m) in todo:
            if m < 18 and not (c_ == "w" and m < HP): L += wq(m) if c_ == "w" else xn(m)
        L += extra.get(n, [])
        for (st_, kind) in QTS:
            if st_ != n: continue
            if kind == "q":
                L.append(([], (lambda: k.vmem(f"buffer_load_dword v{vTD}, v58, s[{SQ}:{SQ+3}], 0 offen", "touch"))))
                post.append(f"v_add_u32 v58, {176*8192}, v58")
            elif kind == "w":
                L.append(([], (lambda: k.vmem(f"buffer_load_dword v{vTD}, v59, s[92:95], 0 offen", "touch"))))
                post.append(f"v_add_u32 v59, {11264*128}, v59")
            else:
                srd = SK if kind == "k" else SV
                L.append(([], (lambda srd=srd: k.vmem(f"buffer_load_dword v{vTD}, v60, s[{srd}:{srd+3}], 0 offen", "touch"))))
        nd = sum(1 for hs, b in L if b)
        sp = max(3, min(6, 44 // max(nd, 1)))
        dg = [3 + sp*i for i in range(nd)]
        assert not dg or dg[-1] <= 45, (n, dg)
        place(g, L, dg)
        for t_ in post: g.body(47, t_)
        rg = [x for x in range(48) if x not in dg]
        if n < 17:
            for i, t in enumerate(qreads(n + 1)): g.body(rg[i], t)
            if n < 16:
                for i, t in enumerate(rebase(n + 2)): g.body(rg[22 + i], t)
        if n < 16:
            g.head(46, (lambda n=n: (k.wait(vm=[("x", n + 2), ("w", n + 2)]), e("s_waitcnt lgkmcnt(0)"))))
            g.head(47, "s_barrier")
        elif n == 16:
            g.head(46, (lambda: (k.wait(vm=[("K", 0)]), e("s_waitcnt lgkmcnt(0)"))))
            g.head(47, "s_barrier")
        else:
            for i in range(4): g.body(2*i, kread(0, i))
            late = []
            for j in range(4):
                for t in range(6):
                    src = QF + (j*6 + t)*8; dst = QF + (j*6 + t)*4
                    for p in range(4):
                        u_ = 10 + 12*j + 2*t + p//2
                        ins = f"v_cvt_pk_bf16_f32 v{dst+p}, v{src+2*p}, v{src+2*p+1}"
                        if u_ < 48: g.body(u_, ins)
                        else: late.append((u_ - 48, ins))
            hs = [f"s_mov_b32 s{SQ}, s{P_W2}", f"s_mov_b32 s{SQ+1}, s{P_W2+1}", f"s_mov_b32 s{SQ+2}, {SIZE['w2']}",
                  f"s_add_u32 s{SX}, s{P_W1}, {R2*9216}", f"s_addc_u32 s{SX+1}, s{P_W1+1}, 0", f"s_mov_b32 s{SX+2}, {SIZE['w1'] - R2*9216}",
                  f"s_mul_i32 s4, s2, {4*OPT('pfl', 16)*128}"]
            for i, h in enumerate(hs): g.head(i, h)
            sh = {64: 0, 32: 1, 16: 2}[OPT('pfl', 16)]
            g.body(7, f"v_lshrrev_b32 v{vPF}, {sh}, v0"); g.body(8, f"v_lshlrev_b32 v{vPF}, 7, v{vPF}"); g.body(9, f"v_add_u32 v{vPF}, s4, v{vPF}")
            g.head(47, (lambda: k.wait(lg=[("k", 0, 0)])))
        g.emit(0, 48)
    st(k, 6)
    def Q(t, j): return QF + (j*6 + t)*4
    def S(b, t): return SS + (b & 1)*48 + t*8
    def O(t, et): return ((t*4 + (et >> 1))*2 + (et & 1))*4
    g = Gaps(k)
    U0 = 44
    for b in range(16):
        base = 96*b
        for n in range(8):
            kb, j = n >> 2, n & 3
            for t in range(6):
                d = vr(S(b, t) + 4*kb, 4)
                c = d if j else (vr(NM + 4*t, 4) if b else "0")
                g.mfma(base + 6*n + t, f"{MF} {d}, {ar(FK+4*n,4)}, {vr(Q(t,j),4)}, {c}")
            g.head(base + 6*n - 1, (lambda b=b, n=n: k.wait(lg=[("k", b, n)])))
            if b == 0 and n >= 4: g.body(10 + 2*(n - 4), kread(b, n))
            elif b > 0: g.body(base + 4*n - 13, kread(b, n))
        pb = base + 96 + 48
        for et in range(8):
            for t in range(6):
                d = ar(O(t, et), 4)
                g.mfma(pb + 6*et + t, f"{MF} {d}, {ar(FV+4*et,4)}, {vr(S(b,t),4)}, {d if b else 0}")
            g.head(pb + 6*et - 1, (lambda b=b, et=et: k.wait(lg=[("v", b, et)])))
            for h in range(2): g.body(base + 96 + 4*(8 + 2*et + h) - 13, vread(b, et, h))
    for b in range(16):
        base = 96*b + U0
        for t in range(6):
            s = S(b, t)
            for r in range(8):
                m = 8*t + r
                ue, ua = base + 2*m, base + 2*m + 1
                if b == 0: ue, ua = max(ue, 48), max(ua, 48)
                g.body(ue, f"v_exp_f32 v{s+r}, v{s+r}")
                g.body(ua, f"v_add_f32 v{LS+t}, v{LS+t}, v{s+r}")
        for t in range(6):
            s = S(b, t)
            for c in range(4):
                g.body(base + 5 + 4*(4*t + c), f"v_cvt_pk_bf16_f32 v{s+c}, v{s+2*c}, v{s+2*c+1}")
    for s in range(7):
        ub = 96*(2*s + 2) + 95
        need = [("V", s + 1)] + ([("K", s + 2)] if s + 2 < 8 else [])
        g.head(ub - 1, (lambda need=need: k.wait(vm=need)))
        g.head(ub - 1, "s_barrier")
        if s + 4 < 8:
            L = kvdma("K", s + 4) + kvdma("V", s + 4)
            for i, (hs, bd) in enumerate(L):
                uu = ub + 1 + 8*i
                for h in hs: g.head(uu, h)
                if bd: g.b.setdefault(uu, []).insert(0, bd)
    LN_ = OPT("pfl", 16)
    RL = 704*LN_
    seq = []
    for (srd, nl, ptr, size) in [(SX, (2048 - R2)*72, None, 0), (SX, 36864, P_WO, SIZE['wo']), (SX, 18432, P_X, SIZE['x']), (SQ, 147456, None, 0)]:
        for r in range(-(-nl // RL)): seq.append((srd, r, ptr if r == 0 else None, size))
    pp = OPTS("pfpos", "")
    if pp: pos = [int(x) for x in pp.split(",")]
    elif LN_ == 64: pos = [60] + [96*p + 2 for p in (2, 4, 5, 6, 8, 10, 12)]
    else:
        p0, p1 = 60, 96*OPT("pfend", 14)
        pos = [2*((p0 + (p1 - p0)*i//(len(seq) - 1))//2) for i in range(len(seq))]
    assert len(pos) == len(seq), (len(pos), len(seq))
    cur_r = 0
    for (srd, r, ptr, size), p in zip(seq, pos):
        if r != cur_r:
            g.body(p - 6, f"v_add_u32 v{vPF}, {((r - cur_r)*RL*128) & 0xffffffff}, v{vPF}"); cur_r = r
        if ptr:
            for q, h in enumerate([f"s_mov_b32 s{SX}, s{ptr}", f"s_mov_b32 s{SX+1}, s{ptr+1}", f"s_mov_b32 s{SX+2}, {size}"]):
                g.head(p - 14 + 2*q, h)
            lastx = p
        g.b.setdefault(p, []).insert(0, (lambda srd=srd: k.vmem(f"buffer_load_dword v{vTD}, v{vPF}, s[{srd}:{srd+3}], 0 offen", "touch")))
    assert max(p for (sd, r, pt, sz), p in zip(seq, pos) if sd == SX) < 96*OPT("rankper", 9) + 50
    if DYN:
        pr = OPT("rankper", 9)
        for q, h in enumerate([f"s_mov_b32 s{SX}, s{P_DBG}", f"s_mov_b32 s{SX+1}, s{P_DBG+1}", f"s_mov_b32 s{SX+2}, 256"]):
            g.head(96*pr + 50 + 2*q, h)
        g.b.setdefault(96*pr + 94, []).insert(0, (lambda: k.vmem(f"buffer_atomic_add v20, v19, s[{SX}:{SX+3}], 0 offen sc0 sc1", "tk")))
        g.head(96*(pr+2) + 60, (lambda: k.wait(vm=["tk"])))
        g.body(96*(pr+2) + 60, "v_and_b32 v20, 7, v20")
        g.body(96*(pr+2) + 62, f"v_add_u32 v20, s{S_TAG}, v20")
        g.head(96*(pr+2) + 62, f"s_lshl_b32 s3, s{S_XCD}, 7")
        g.b.setdefault(96*(pr+2) + 66, []).insert(0, (lambda: k.vmem(f"buffer_store_dword v20, v19, s[{SF}:{SF+3}], s3 offen offset:{WS_R} sc1", "rk")))
    for (u_, ins) in late: g.body(u_, ins)
    place(g, kvdma("K", 2) if KVL else kvdma("V", 3), [11, 15, 19, 21], 0)
    if KVL:
        for i, (hs, bd) in enumerate(kvdma("K", 3) + kvdma("V", 2) + kvdma("V", 3)):
            uu = 96 + 10*i
            for h in hs: g.head(uu, h)
            if bd: g.b.setdefault(uu, []).insert(0, bd)
    mx = []
    for t in range(6): mx.append(f"v_max3_f32 v{NM+4*t}, v{S(0,t)}, v{S(0,t)+1}, v{S(0,t)+2}")
    for t in range(6): mx.append(f"v_max_f32 v{NM+4*t}, v{NM+4*t}, v{S(0,t)+3}")
    for sw in ["v_permlane32_swap_b32", "v_permlane16_swap_b32"]:
        for t in range(6): mx.append(f"v_mov_b32 v{NM+4*t+1}, v{NM+4*t}")
        for t in range(6): mx.append(f"{sw} v{NM+4*t}, v{NM+4*t+1}")
        for t in range(6): mx.append(f"v_max_f32 v{NM+4*t}, v{NM+4*t}, v{NM+4*t+1}")
    for t in range(6):
        for r in (1, 2, 3, 0): mx.append(f"v_mul_f32 v{NM+4*t+r}, -1.0, v{NM+4*t}")
    for i, ins in enumerate(mx): g.body(min(25 + i//2, 47), ins)
    g.head(44, (lambda: k.wait(vm=[("K", 1), ("V", 0)]))); g.head(44, "s_barrier")
    g.emit(0, 48)
    for t in range(6):
        s = S(0, t)
        for r in range(0, 8, 2): e(f"v_pk_add_f32 {vr(s+r,2)}, {vr(s+r,2)}, {vr(NM+4*t,2)}")
    items = []
    for u_ in range(48, 96):
        items += g.h.get(u_, []) + g.b.get(u_, [])
    for i in range(len(items) - 1):
        pass
    pend = []
    for it in items:
        if isinstance(it, str) and it.startswith("v_exp"):
            g._do(it)
            for q in pend: g._do(q)
            pend = []
        else: pend.append(it)
    for q in pend: g._do(q)
    TB = 96*15 + 48
    g.emit(96, TB)
    def cost(it):
        if callable(it): return 1
        return 2 if it.startswith(("v_exp", "v_rcp")) else 1
    def fill(mf, queue, ldsq=None):
        for m in mf:
            if callable(m): m()
            else: e(m)
            n = 2
            if ldsq:
                ldsq.pop(0)(); n = 1
            while queue and n >= cost(queue[0]):
                it = queue.pop(0); n -= cost(it); e(it)
            if queue and n == 2:
                e(queue.pop(0))
    def soft15(t, skip=0):
        s = S(15, t); q = []
        for r in range(8):
            if r >= skip: q.append(f"v_exp_f32 v{s+r}, v{s+r}")
            if r >= 1 and r - 1 >= skip: q.append(f"v_add_f32 v{LS+t}, v{LS+t}, v{s+r-1}")
            if r >= 2 and r % 2 == 0: q.append(f"v_cvt_pk_bf16_f32 v{s+r//2-1}, v{s+r-2}, v{s+r-1}")
        q.append(f"v_add_f32 v{LS+t}, v{LS+t}, v{s+7}")
        q.append(f"v_cvt_pk_bf16_f32 v{s+3}, v{s+6}, v{s+7}")
        return q
    def lred(t):
        m = NM + 4*t
        return [f"v_cmp_nge_f32 vcc, {fhex(THR)}, v{LS+t}", f"v_mov_b32 v{m+1}, v{LS+t}", f"v_mov_b32 v{m}, v{LS+t}",
                f"v_permlane32_swap_b32 v{m}, v{m+1}", f"v_add_f32 v{m}, v{m}, v{m+1}", f"v_mov_b32 v{m+1}, v{m}",
                f"v_permlane16_swap_b32 v{m}, v{m+1}", f"v_add_f32 v{m}, v{m}, v{m+1}", f"v_rcp_f32 v{m}, v{m}"]
    def v15read(et, h):
        off = 3*16384 + 8192 + h*4096
        return lambda: k.dsop(f"ds_read_b64_tr_b16 {ar(FK+4*et+2*h,2)}, v{RV+et} offset:{off}", ("v", 15, et))
    ldsq = [vread(14, et, h) for et in range(4, 8) for h in range(2)] + [v15read(et, h) for et in range(8) for h in range(2)]
    mf = []
    for et in range(4):
        for t in range(6):
            d = ar(O(t, et), 4)
            ins = f"{MF} {d}, {ar(FV+4*et,4)}, {vr(S(14,t),4)}, {d}"
            if t == 5 and et < 3: mf.append(lambda ins=ins, et=et: (e(ins), k.wait(lg=[("v", 14, et + 1)])))
            else: mf.append(ins)
    queue = soft15(0, skip=2)
    half = len(mf)//2
    for i, m in enumerate(mf):
        if callable(m): m()
        else: e(m)
        ldsq.pop(0)()
        if queue: e(queue.pop(0))
    for it in queue: e(it)
    e("s_waitcnt lgkmcnt(0)"); k.lg = []
    st(k, 7)
    for t in range(6):
        if t >= 2:
            e(f"s_cmp_le_u32 s{sNV}, {t}"); e(f"s_cbranch_scc1 {k.L('attn_done')}")
        mf = []
        for et in range(4, 8):
            d = ar(O(t, et), 4); mf.append(f"{MF} {d}, {ar(FV+4*et,4)}, {vr(S(14,t),4)}, {d}")
        for et in range(8):
            d = ar(O(t, et), 4); mf.append(f"{MF} {d}, {ar(FK+4*et,4)}, {vr(S(15,t),4)}, {d}")
        lr = lred(t); sm = soft15(t + 1) if t < 5 else []
        queue = []
        while lr or sm:
            if lr: queue.append(lr.pop(0))
            for _ in range(2):
                if sm: queue.append(sm.pop(0))
        fill(mf, queue)
        for it in queue: e(it)
        e(f"s_cbranch_vccnz {k.L('slow')}")
        for j in range(4):
            T = S(14 + (j & 1), t)
            for r in range(8): e(f"v_accvgpr_read_b32 v{T+r}, a{O(t,2*j)+r}")
            for r in range(0, 8, 2): e(f"v_pk_mul_f32 {vr(T+r,2)}, {vr(T+r,2)}, {vr(NM+4*t,2)} op_sel_hi:[1,0]")
            for p in range(4): e(f"v_cvt_pk_bf16_f32 v{T+p}, v{T+2*p}, v{T+2*p+1}")
            e(f"s_add_u32 s3, s{sOB}, {j*131072 + t*1024}")
            k.vmem(f"buffer_store_dwordx4 {vr(T,4)}, v{vLIN}, s[{SO}:{SO+3}], s3 offen sc1")
    k.label("attn_done")
    st(k, 8)
    def slow():
        k.label("slow")
        e("s_nop 15")
        e(f"s_sub_u32 s5, s{sOKV}, s{sW4}")
        e("v_and_b32 v2, 15, v1"); e("v_lshrrev_b32 v3, 4, v1"); e("v_lshlrev_b32 v3, 4, v3"); e("v_lshl_add_u32 v2, v2, 8, v3")
        e("v_add_u32 v3, 4096, v2")
        e(f"s_lshl_b32 s6, s{S_WAVE}, 13"); e("s_add_u32 s6, s6, 65536")
        for et in range(8): e(f"v_add_u32 v{RV+et}, s6, v{RV+et}")
        for t in range(6): e(f"v_mov_b32 v{NM+4*t}, 0xff800000")
        def kloads():
            for n in range(8):
                e(f"buffer_load_dwordx4 {ar(FK+4*n,4)}, v{2+(n>>2)}, s[{SK}:{SK+3}], s3 offen offset:{64*(n&3)}")
        def qk(first):
            for n in range(8):
                kb, j = n >> 2, n & 3
                for t in range(6):
                    d = vr(S(0, t) + 4*kb, 4)
                    e(f"{MF} {d}, {ar(FK+4*n,4)}, {vr(Q(t,j),4)}, {d if j else first(t)}")
            e("s_nop 15")
        e("s_mov_b32 s3, s5"); e("s_mov_b32 s4, 16")
        k.label("slow1")
        kloads(); e("s_waitcnt vmcnt(0)")
        qk(lambda t: "0")
        for t in range(6):
            for r in range(0, 8, 2): e(f"v_max3_f32 v{NM+4*t}, v{NM+4*t}, v{S(0,t)+r}, v{S(0,t)+r+1}")
        e("s_add_u32 s3, s3, 8192"); e("s_sub_u32 s4, s4, 1"); e("s_cmp_lg_u32 s4, 0"); e(f"s_cbranch_scc1 {k.L('slow1')}")
        for sw in ["v_permlane32_swap_b32", "v_permlane16_swap_b32"]:
            for t in range(6): e(f"v_mov_b32 v{NM+4*t+1}, v{NM+4*t}")
            for t in range(6): e(f"{sw} v{NM+4*t}, v{NM+4*t+1}")
            for t in range(6): e(f"v_max_f32 v{NM+4*t}, v{NM+4*t}, v{NM+4*t+1}")
        for t in range(6):
            for r in (1, 2, 3, 0): e(f"v_mul_f32 v{NM+4*t+r}, -1.0, v{NM+4*t}")
            e(f"v_mov_b32 v{LS+t}, 0")
        for r in range(192): e(f"v_accvgpr_write_b32 a{r}, 0")
        e("s_mov_b32 s3, s5"); e("s_mov_b32 s4, 16")
        k.label("slow2")
        kloads()
        for i in range(8):
            if i % 4 == 0:
                e(f"s_add_u32 m0, s6, {(i>>2)*4096}"); e(f"s_add_u32 s7, s3, {(i>>2)*4096}")
            e(f"buffer_load_dwordx4 v{vKE if i % 2 == 0 else vKO}, s[{SV}:{SV+3}], s7 offen offset:{1024*(i&3)} lds")
        e("s_waitcnt vmcnt(0)")
        for et in range(8):
            for h in range(2): e(f"ds_read_b64_tr_b16 {ar(FV+4*et+2*h,2)}, v{RV+et} offset:{h*4096}")
        qk(lambda t: vr(NM + 4*t, 4))
        for t in range(6):
            s_ = S(0, t)
            for r in range(8): e(f"v_exp_f32 v{s_+r}, v{s_+r}")
            for r in range(8): e(f"v_add_f32 v{LS+t}, v{LS+t}, v{s_+r}")
            for c in range(4): e(f"v_cvt_pk_bf16_f32 v{s_+c}, v{s_+2*c}, v{s_+2*c+1}")
        e("s_waitcnt lgkmcnt(0)")
        for et in range(8):
            for t in range(6):
                d = ar(O(t, et), 4)
                e(f"{MF} {d}, {ar(FV+4*et,4)}, {vr(S(0,t),4)}, {d}")
        e("s_add_u32 s3, s3, 8192"); e("s_sub_u32 s4, s4, 1"); e("s_cmp_lg_u32 s4, 0"); e(f"s_cbranch_scc1 {k.L('slow2')}")
        e("s_nop 15")
        for sw in ["v_permlane32_swap_b32", "v_permlane16_swap_b32"]:
            for t in range(6): e(f"v_mov_b32 v{NM+t}, v{LS+t}")
            for t in range(6): e(f"{sw} v{LS+t}, v{NM+t}")
            for t in range(6): e(f"v_add_f32 v{LS+t}, v{LS+t}, v{NM+t}")
        for t in range(6): e(f"v_rcp_f32 v{NM+2*t}, v{LS+t}")
        for t in range(6):
            if t >= 2:
                e(f"s_cmp_le_u32 s{sNV}, {t}"); e(f"s_cbranch_scc1 {k.L('attn_done')}")
            for j in range(4):
                T = SS + ((t*4 + j) % 8)*8
                for r in range(8): e(f"v_accvgpr_read_b32 v{T+r}, a{O(t,2*j)+r}")
                for r in range(0, 8, 2): e(f"v_pk_mul_f32 {vr(T+r,2)}, {vr(T+r,2)}, {vr(NM+2*t,2)} op_sel_hi:[1,0]")
                for p in range(4): e(f"v_cvt_pk_bf16_f32 v{T+p}, v{T+2*p}, v{T+2*p+1}")
                e(f"s_add_u32 s3, s{sOB}, {j*131072 + t*1024}")
                e(f"buffer_store_dwordx4 {vr(T,4)}, v{vLIN}, s[{SO}:{SO+3}], s3 offen sc1")
        e(f"s_branch {k.L('attn_done')}")
    return slow

ACC2 = 112
def acc2(db, sb): return ACC2 + (sb >> 1)*72 + db*8 + (sb & 1)*4
S_ROLE, S_SB, S_DB, S_RH, S_KP, S_TILE = 29, 30, 31, 32, 33, 34
SA, SB_, SP, SX2, SO2 = 8, 12, 16, 20, 24
sOA, sOB2, sM0A, sM0B, sCNT2, sWRP = 68, 69, 70, 71, 72, 73
sPST, sPLD, sFST, sFLD, sXO, sOWN = 75, 76, 77, 78, 35, 79
vL2 = 4
XA, vXW, vXR = 30, 32, 33

def epi_setup(k):
    e = k.e
    k.srd(SX2, P_X, 0, SIZE['x']); k.srd(SO2, P_OUT, 0, SIZE['out'])
    e(f"s_lshl_b32 s3, s{S_RH}, 1"); e(f"s_add_u32 s3, s3, s{S_KP}")
    e(f"s_cmp_eq_u32 s3, s{S_ROLE}"); e(f"s_cselect_b32 s{sOWN}, 1, 0")
    e(f"s_lshl_b32 s5, s{S_TILE}, 2"); e("s_add_u32 s3, s3, s5")
    e("s_lshl_b32 s4, s3, 7"); e(f"s_lshl_b32 s6, s{S_ROLE}, 2"); e(f"s_add_u32 s{sFST}, s4, s6"); e(f"s_add_u32 s{sFST}, s{sFST}, {WS_F}")
    e("s_lshl_b32 s3, s3, 2"); e(f"s_add_u32 s3, s3, s{S_ROLE}"); e(f"s_mul_i32 s{sPST}, s3, 9216")
    e(f"s_add_u32 s5, s5, s{S_ROLE}"); e(f"s_lshl_b32 s{sFLD}, s5, 7"); e(f"s_add_u32 s{sFLD}, s{sFLD}, {WS_F}"); e(f"s_mul_i32 s5, s5, {4*9216}")
    e(f"s_lshl_b32 s3, s{S_WAVE}, 10"); e(f"s_add_u32 s{sPLD}, s5, s3")
    e(f"s_lshl_b32 s3, s{S_SB}, 2"); e(f"s_add_u32 s3, s3, s{S_ROLE}"); e(f"s_mul_i32 s3, s3, {32*1152}")
    e(f"s_mul_i32 s4, s{S_DB}, 288"); e("s_add_u32 s3, s3, s4"); e(f"s_lshl_b32 s4, s{S_WAVE}, 5"); e(f"s_add_u32 s{sXO}, s3, s4")
    e("v_and_b32 v34, 15, v1"); e("v_mul_u32_u24 v34, 1152, v34"); e("v_lshrrev_b32 v35, 4, v1")
    e(f"v_lshl_add_u32 v{XA}, v35, 3, v34"); e(f"v_add_u32 v{XA+1}, {16*1152}, v{XA}")
    e(f"s_mul_i32 s3, s{S_WAVE}, 18432"); e(f"v_add_u32 v{vXW}, s3, v{vL2}")
    e(f"s_xor_b32 s4, s{S_WAVE}, 2"); e(f"s_mul_i32 s3, s4, 18432"); e(f"v_add_u32 v{vXR}, s3, v{vL2}")

def mainloop2(k, role):
    e = k.e
    isA = role == "A"
    vD, vP, RS, RP = 5, 10, 12, 14
    k.label("role" + role)
    k.vm = ["own"]; k.lg = []
    NK = 64 if isA else 72
    e(f"s_and_b32 s6, s{S_ROLE}, 1"); e(f"s_mul_i32 s3, s6, {NK}"); e(f"s_mov_b32 s{sCNT2}, {NK//8 - 1}")
    e(f"s_add_u32 s3, s3, s{S_KP}")
    PROG = (not isA) and OPT("prog", 1)
    if PROG:
        e("s_cmp_eq_u32 s6, 0"); e("s_cselect_b32 s4, 24, 0"); e("s_add_u32 s3, s3, s4")
        e("s_cmp_eq_u32 s6, 0"); e(f"s_cselect_b32 s{sWRP}, 3, -1")
    e(f"s_mul_i32 s{sM0A}, s{S_KP}, 10240"); e(f"s_mul_i32 s4, s{S_RH}, 5120"); e(f"s_add_u32 s{sM0A}, s{sM0A}, s4")
    if isA:
        k.srd(SA, P_WO, 0, SIZE['wo']); k.srd(SB_, P_WS, WS_O, O_BYTES)
        e(f"s_mul_i32 s{sOA}, s3, {32*1152}"); e(f"s_mul_i32 s4, s{S_RH}, {16*1152}"); e(f"s_add_u32 s{sOA}, s{sOA}, s4")
        e(f"s_mul_i32 s4, s{S_DB}, 288"); e(f"s_add_u32 s{sOA}, s{sOA}, s4")
        for i in range(5):
            e(f"v_add_u32 v34, {64*i}, v1")
            e("v_mul_u32_u24 v35, 3641, v34"); e("v_lshrrev_b32 v35, 16, v35")
            e(f"v_mul_u32_u24 v35, {1152-288}, v35"); e(f"v_lshl_add_u32 v{vD+i}, v{1 if i < 4 else 34}, 4, v35")
        e(f"v_mov_b32 v36, {OOB - (1<<24)}"); e("v_cmp_gt_u32 vcc, 32, v1"); e(f"v_cndmask_b32 v{vD+4}, v36, v{vD+4}, vcc")
        stepA = 64*1152
        e(f"s_lshl_b32 s4, s3, 7"); e(f"s_lshl_b32 s5, s{S_SB}, 3"); e("s_add_u32 s4, s4, s5")
        e(f"s_lshl_b32 s5, s{S_RH}, 2"); e("s_add_u32 s4, s4, s5"); e(f"s_lshl_b32 s{sOB2}, s4, 10")
        stepB = 2*128*1024
    else:
        k.srd(SA, P_WS, WS_U, U_BYTES); k.srd(SB_, P_W2, 0, SIZE['w2'])
        e("s_mul_i32 s4, s3, 36"); e(f"s_mul_i32 s5, s{S_DB}, 9"); e("s_add_u32 s4, s4, s5")
        e(f"s_mul_i32 s5, s{S_RH}, 5"); e("s_add_u32 s4, s4, s5"); e(f"s_lshl_b32 s{sOA}, s4, 10")
        stepA = 2*36*1024
        e(f"s_lshl_b32 s{sOB2}, s3, 17"); e(f"s_lshl_b32 s4, s{S_SB}, 8"); e(f"s_add_u32 s{sOB2}, s{sOB2}, s4")
        e(f"s_lshl_b32 s4, s{S_RH}, 7"); e(f"s_add_u32 s{sOB2}, s{sOB2}, s4")
        e("v_lshrrev_b32 v34, 3, v1"); e("v_and_b32 v35, 6, v34"); e("v_and_b32 v36, 7, v1"); e("v_xor_b32 v35, v35, v36")
        e("v_lshlrev_b32 v35, 4, v35"); e(f"v_lshl_add_u32 v{vP}, v34, 12, v35")
        e(f"v_add_u32 v{vP+1}, {8*4096-1024}, v{vP}")
        stepB = 64*4096
        e(f"s_lshl_b32 s{sM0B}, s{S_WAVE}, 12"); e(f"s_add_u32 s{sM0B}, s{sM0B}, 81920")
    if OPT("l2only", 0): stepA = stepB = 0
    WSC = SC if OPT("wsc", 0) else ""
    def FA(buf, db): return buf*36 + 4*db
    def FB(n, sb): return 72 + (n % (4 if isA else 2))*16 + 4*sb
    def dmaA(n):
        slot = (n % 4)*20480
        L = [([f"s_add_u32 m0, s{sM0A}, {slot}"], None)]
        for i in range(5):
            if isA: v = vD + i
            else: v = vL2 if i < 4 else vD + 1
            hs = [f"s_add_u32 m0, s{sM0A}, {slot+4096}"] if i == 4 else []
            fl = WSC if isA else SC
            L.append((hs, (lambda v=v, i=i: k.vmem(f"buffer_load_dwordx4 v{v}, s[{SA}:{SA+3}], s{sOA} offen offset:{1024*(i&3)}{fl} lds", ("A", n)))))
        L.append(([f"s_add_u32 s{sOA}, s{sOA}, {stepA}"], None))
        return L
    def dmaB(n):
        L = []
        if isA:
            for sb in range(4):
                L.append(([], (lambda sb=sb: k.vmem(f"buffer_load_dwordx4 {ar(FB(n,sb),4)}, v{vP+(sb>>1)}, s[{SB_}:{SB_+3}], s{sOB2} offen offset:{1024*(sb&1)}{SC}", ("B", n)))))
            L.append(([f"s_add_u32 s{sOB2}, s{sOB2}, {stepB}"], None))
        else:
            slot = (n % 4)*16384
            L.append(([f"s_add_u32 m0, s{sM0B}, {slot}"], None))
            for i in range(4):
                hs = [f"s_add_u32 s{sOB2}, s{sOB2}, {16*4096-2048}"] if i == 2 else []
                L.append((hs, (lambda i=i: k.vmem(f"buffer_load_dwordx4 v{vP+(i&1)}, s[{SB_}:{SB_+3}], s{sOB2} offen offset:{1024*i}{WSC} lds", ("B", n)))))
            L.append(([f"s_add_u32 s{sOB2}, s{sOB2}, {(stepB-(16*4096-2048)) & 0xffffffff}"], None))
        return L
    def reads(n):
        buf = n & 1; sl = n % 4
        r = RS + (1 if sl == 3 else 0); off = 0 if sl == 3 else sl*20480
        L = []
        if isA:
            for db in range(9):
                for h in range(2):
                    L.append(f"ds_read_b64_tr_b16 {ar(FA(buf,db)+2*h,2)}, v{r} offset:{off + db*32 + h*5120}")
        else:
            for sb in range(4):
                for h in range(2):
                    L.append(f"ds_read_b64_tr_b16 {ar(FB(n,sb)+2*h,2)}, v{RP+sb} offset:{sl*16384 + h*2048}")
            for db in range(9):
                L.append(f"ds_read_b128 {ar(FA(buf,db),4)}, v{r} offset:{off + db*1024}")
        return L
    W = dmaA if isA else dmaB
    e("s_barrier")
    run_now(k, W(0))
    if isA:
        e(f"s_lshl_b32 s4, s{S_KP}, 11"); e(f"v_add_u32 v{vP}, s4, v{vL2}"); e(f"v_xor_b32 v{vP+1}, 2048, v{vP}")
        e("v_lshrrev_b32 v34, 2, v1"); e("v_mul_u32_u24 v34, 288, v34"); e("v_and_b32 v35, 3, v1"); e("v_lshl_add_u32 v34, v35, 3, v34")
        e(f"s_mul_i32 s4, s{S_KP}, 10240"); e(f"v_add_u32 v{RS}, s4, v34"); e(f"v_add_u32 v{RS+1}, 61440, v{RS}")
        e(f"s_lshl_b32 s3, s{S_SB}, 7"); e(f"s_lshl_b32 s4, s{S_RH}, 6"); e("s_add_u32 s3, s3, s4")
        e("v_bfe_u32 v34, v1, 3, 1"); e("v_mul_u32_u24 v34, 63, v34"); e("v_add_u32 v34, s3, v34")
        e("v_mul_u32_u24 v34, 1366, v34"); e("v_lshrrev_b32 v34, 18, v34")
        e("v_and_b32 v35, 1, v1"); e("v_mad_u32_u24 v34, v35, 11, v34")
        e("v_bfe_u32 v35, v1, 1, 2"); e("v_lshl_add_u32 v34, v34, 3, v35")
        e(f"s_lshl_b32 s3, s6, 2"); e("v_add_u32 v34, s3, v34")
    else:
        e(f"s_mov_b32 s5, {OOB - (1<<24)}"); e(f"s_cmp_eq_u32 s{S_RH}, 0"); e(f"s_cselect_b32 s4, 4096, s5"); e(f"v_add_u32 v{vD+1}, s4, v{vL2}")
        e(f"s_mul_i32 s4, s{S_KP}, 10240"); e(f"v_add_u32 v{RS}, s4, v{vL2}"); e(f"v_add_u32 v{RS+1}, 61440, v{RS}")
        e("v_lshrrev_b32 v34, 2, v1"); e("v_bfe_u32 v35, v34, 1, 2"); e(f"s_lshl_b32 s4, s{S_KP}, 1"); e("v_xor_b32 v35, s4, v35")
        e("v_lshlrev_b32 v35, 5, v35"); e("v_lshl_add_u32 v35, v34, 7, v35"); e("v_and_b32 v36, 3, v1"); e("v_lshl_add_u32 v35, v36, 3, v35")
        e(f"v_add_u32 v35, s{sM0B}, v35")
        for sb in range(4): e(f"v_xor_b32 v{RP+sb}, {32*sb}, v35")
        k.srd(SP, P_B2, 0, SIZE['b2'])
        e(f"s_lshl_b32 s4, s{S_KP}, 2"); e(f"s_or_b32 s4, s4, s{S_ROLE}"); e("s_cmp_eq_u32 s4, 2"); e(f"s_cselect_b32 s{SP+2}, s{SP+2}, 0")
        e(f"s_lshl_b32 s4, s{S_SB}, 8"); e(f"s_lshl_b32 s5, s{S_RH}, 7"); e("s_add_u32 s4, s4, s5")
        e("v_and_b32 v28, 15, v1"); e("v_lshlrev_b32 v28, 1, v28")
        for sb in range(4):
            k.vmem(f"buffer_load_ushort v{24+sb}, v28, s[{SP}:{SP+3}], s4 offen offset:{32*sb}", "b2")
        e(f"s_mul_i32 s3, s{S_DB}, 144"); e("v_bfe_u32 v34, v1, 4, 1"); e("v_mul_u32_u24 v34, 143, v34"); e("v_add_u32 v34, s3, v34")
        e("v_mul_u32_u24 v34, 1366, v34"); e("v_lshrrev_b32 v34, 18, v34")
        e("v_and_b32 v35, 15, v1"); e("v_min_u32 v35, 11, v35")
        if PROG:
            e("s_xor_b32 s3, s6, 1"); e("s_lshl_b32 s3, s3, 1"); e("v_lshrrev_b32 v36, 1, v35"); e("v_cmp_eq_u32 s[92:93], s3, v36")
        e("v_mul_u32_u24 v36, 43, v35"); e("v_lshrrev_b32 v36, 7, v36")
        e("v_mul_u32_u24 v37, 3, v36"); e("v_sub_u32 v35, v35, v37")
        e("v_mad_u32_u24 v34, v35, 3, v34"); e("v_add_u32 v34, 22, v34"); e("v_lshl_add_u32 v34, v34, 3, v36")
        e(f"s_lshl_b32 s3, s6, 2"); e("v_add_u32 v34, s3, v34")
    e("v_lshlrev_b32 v38, 7, v34"); e(f"v_add_u32 v38, {WS_F1}, v38")
    PRE = (not isA) and OPT("pre", 0)
    if PRE:
        k.vmem(f"buffer_load_dword v37, v38, s[{SF}:{SF+3}], 0 offen sc1", "fl")
    epi_setup(k)
    k.wait(vm=["own"])
    publish(k, "role" + role)
    st(k, 0)
    if isA:
        run_now(k, W(1)); run_now(k, W(2)); run_now(k, W(3))
        for r in range(0, 144, 2): e(f"v_pk_mov_b32 {vr(ACC2+r,2)}, 0, 0")
    else:
        if not PRE: run_now(k, W(1)); run_now(k, W(2))
        if OPT("fine", 0): st(k, 3)
        e(f"s_waitcnt vmcnt({1 if PRE else 8})")
        if OPT("fine", 0): st(k, 4)
        for sb in range(4): e(f"v_lshlrev_b32 v{40+2*sb}, 16, v{24+sb}")
        for db in range(9):
            for sb in range(4):
                for r in range(0, 4, 2): e(f"v_pk_mov_b32 {vr(acc2(db,sb)+r,2)}, {vr(40+2*sb,2)}, {vr(40+2*sb,2)}")
    if OPT("fine", 0): e("s_waitcnt vmcnt(0)"); st(k, 5)
    poll(k, "p1" + role, 38, 37, "s[92:93]" if PROG else None, pre=PRE)
    st(k, 1)
    if isA:
        for n in range(3): run_now(k, dmaB(n))
    else:
        run_now(k, dmaA(0))
        if PRE: run_now(k, W(1))
        run_now(k, dmaA(1))
    k.srd(SP, P_WS, WS_P, P_BYTES)
    if not isA: k.wait(vm=[("A", 0)])
    e("s_barrier")
    for t in reads(0): e(t)
    if not isA:
        if PRE: run_now(k, W(2))
        run_now(k, dmaA(2)); run_now(k, dmaB(3)); run_now(k, dmaA(3))
    k.wait(vm=[("B", 1) if isA else ("A", 1)]); e("s_waitcnt lgkmcnt(0)"); e("s_barrier")
    st(k, 2)
    DB = 3 if isA else 4
    e(".p2align 6")
    k.label(f"loop{role}")
    body0 = len(k.lines)
    for n in range(4):
        buf = n & 1
        g = Gaps(k); u = 0
        for db in range(9):
            for sb in range(4):
                c = vr(acc2(db, sb), 4)
                g.mfma(u, f"{MF} {c}, {ar(FA(buf,db),4)}, {ar(FB(n,sb),4)}, {c}"); u += 1
        L = dmaB(n + DB) + dmaA(n + 4)
        dg = [2 + 4*i for i in range(9)]
        place(g, L, dg)
        rg = [x for x in range(36) if x not in dg]
        for i, t in enumerate(reads(n + 1)): g.body(rg[i], t)
        if n == 3: g.head(28, f"s_sub_u32 s{sCNT2}, s{sCNT2}, 1")
        if PROG and n == 3:
            g.head(29, f"s_cmp_eq_u32 s{sCNT2}, s{sWRP}"); g.head(29, f"s_cselect_b32 s4, {36*stepB}, 0"); g.head(30, f"s_cselect_b32 s5, {36*stepA}, 0")
            g.head(32, f"s_sub_u32 s{sOB2}, s{sOB2}, s4"); g.head(35, f"s_sub_u32 s{sOA}, s{sOA}, s5")
        if PROG and n < 2:
            g.head(35, f"s_cmp_eq_u32 s{sCNT2}, {NK//8 - 1}"); g.head(35, f"s_cbranch_scc1 {k.L('chk'+str(n))}")
            g.head(35, (lambda n=n: k.label("ret" + str(n))))
        g.head(35, "s_waitcnt vmcnt(18) lgkmcnt(0)")
        g.head(35, "s_barrier")
        if n == 3:
            g.head(35, f"s_cmp_lg_u32 s{sCNT2}, 0")
            g.head(35, f"s_cbranch_scc1 {k.L('loop'+role)}")
        g.emit(0, 36)
    k.loops.append((body0, len(k.lines)))
    if not OPT("fine", 0): st(k, 3)
    k.vm = [("B", DB - 2)]*4 + [("A", 2)]*5 + [("B", DB - 1)]*4 + [("A", 3)]*5; k.lg = []
    TA = lambda m, db: [0, 36, 136, 172][m] + 4*db
    TB_ = lambda m, sb: 72 + 16*m + 4*sb
    def treads(m):
        r = RS + (1 if m == 3 else 0); off = 0 if m == 3 else m*20480
        L = []
        def fb(sb):
            for h in range(2):
                L.append((f"ds_read_b64_tr_b16 {ar(TB_(m,sb)+2*h,2)}, v{RP+sb} offset:{m*16384 + h*2048}", ("t", m, 0 if sb >= 2 else 9)))
        if not isA: fb(2); fb(3)
        for db in range(9):
            if isA:
                for h in range(2): L.append((f"ds_read_b64_tr_b16 {ar(TA(m,db)+2*h,2)}, v{r} offset:{off + db*32 + h*5120}", ("t", m, db)))
            else: L.append((f"ds_read_b128 {ar(TA(m,db),4)}, v{r} offset:{off + db*1024}", ("t", m, db)))
        if not isA: fb(0); fb(1)
        return L
    g = Gaps(k); u = 0
    for m in range(4):
        for db in range(9):
            if m: g.head(u - 1, (lambda m=m, db=db: k.wait(lg=[("t", m, db)], vm=[("B", 3)] if (isA and m == 3 and db == 0) else ())))
            for sb in (2, 3):
                c = vr(acc2(db, sb), 4)
                g.mfma(u, f"{MF} {c}, {ar(TA(m,db),4)}, {ar(TB_(m,sb),4)}, {c}"); u += 1
        if m < 3:
            for i, (t, tag) in enumerate(treads(m + 1)): g.body(18*m + i, (lambda t=t, tag=tag: k.dsop(t, tag)))
        if m < 2:
            g.head(18*m + 16, (lambda m=m: k.wait(vm=[("A", m + 2)]))); g.head(18*m + 16, "s_barrier")
    if isA:
        for i, (hs, b) in enumerate(dmaB(3)[:4]): g.body(1 + 4*i, b)
    for db in range(9):
        for m in range(4):
            for sb in (0, 1):
                c = vr(acc2(db, sb), 4)
                g.mfma(u, f"{MF} {c}, {ar(TA(m,db),4)}, {ar(TB_(m,sb),4)}, {c}"); u += 1
    W0, WS_ = OPT("xw0", 62), OPT("xws", 10)
    def drain():
        e("s_waitcnt lgkmcnt(0)"); k.lg = []
    g.head(W0, drain); g.head(W0, "s_barrier")
    wp = [W0 + 1 + (i*WS_)//3 for i in range(18)]
    for i in range(18): g.body(wp[i], f"ds_write_b128 v{vXW}, {vr(ACC2+72+4*i,4)} offset:{1024*i}")
    xp = [x for x in range(74, 120, 2) if x not in wp and x - 1 not in wp][:6]
    for j in range(3):
        for sb in range(2):
            g.body(xp[2*j + sb], f"buffer_load_dwordx2 {vr(18+4*j+2*sb,2)}, v{XA+sb}, s[{SX2}:{SX2+3}], s{sXO} offen offset:{128*j}")
    R0_ = wp[-1] + 4
    g.head(R0_, "s_waitcnt lgkmcnt(0)"); g.head(R0_, "s_barrier")
    for i in range(18): g.body(min(R0_ + 1 + i, 143), f"ds_read_b128 {vr(40+4*i,4)}, v{vXR} offset:{1024*i}")
    g.emit(0, 144)
    k.vm = []; k.lg = []
    if isA: e(f"s_branch {k.L('epi')}")

def phase2(k):
    e = k.e
    k.label("phase2")
    st_save(k, 9, 0)
    if DYN:
        e("s_and_b32 s3, s2, 7"); e("s_lshl_b32 s3, s3, 7"); e(f"s_add_u32 s3, s3, {WS_R}")
        e("s_cmp_ge_u32 s2, 248"); e(f"s_cbranch_scc1 {k.L('rk_poll')}")
        e(f"s_load_dword s5, s[{P_WS}:{P_WS+1}], s3")
        e("s_waitcnt lgkmcnt(0)")
        e(f"s_sub_u32 s5, s5, s{S_TAG}"); e("s_cmp_lt_u32 s5, 8"); e(f"s_cbranch_scc1 {k.L('rk_ok')}")
        k.label("rk_poll")
        e("v_mov_b32 v34, s3"); e("s_mov_b32 s7, 0x80000")
        k.label("rk_loop")
        e(f"buffer_load_dword v35, v34, s[{SF}:{SF+3}], 0 offen sc1")
        e("s_waitcnt vmcnt(0)")
        e("v_readfirstlane_b32 s5, v35")
        e(f"s_sub_u32 s5, s5, s{S_TAG}"); e("s_cmp_lt_u32 s5, 8"); e(f"s_cbranch_scc1 {k.L('rk_ok')}")
        e("s_sleep 8"); e("s_sub_u32 s7, s7, 1"); e("s_cmp_lg_u32 s7, 0"); e(f"s_cbranch_scc1 {k.L('rk_loop')}")
        k.label("rk_ok")
        e("s_and_b32 s5, s5, 7"); e("s_xor_b32 s5, s5, 4")
        if STAMPS: e("v_writelane_b32 v39, s5, 16")
    else:
        e("s_and_b32 s5, s2, 7")
        if STAMPS: e("v_writelane_b32 v39, s5, 16")
    e(f"s_lshr_b32 s{S_ROLE}, s5, 1")
    e("s_and_b32 s3, s5, 1"); e("s_lshl_b32 s3, s3, 3"); e("s_lshr_b32 s4, s2, 5"); e(f"s_add_u32 s{S_SB}, s3, s4")
    e(f"s_bfe_u32 s{S_DB}, s2, 0x20003")
    e(f"s_lshl_b32 s{S_TILE}, s{S_SB}, 2"); e(f"s_add_u32 s{S_TILE}, s{S_TILE}, s{S_DB}")
    e(f"s_and_b32 s{S_RH}, s{S_WAVE}, 1"); e(f"s_lshr_b32 s{S_KP}, s{S_WAVE}, 1")
    e(f"v_lshlrev_b32 v{vL2}, 4, v1")
    e(f"s_cmp_ge_u32 s{S_ROLE}, 2"); e(f"s_cbranch_scc1 {k.L('roleB')}")
    mainloop2(k, "A")
    mainloop2(k, "B")
    k.label("epi")
    T, X, OWNL = 40, 18, 73728
    e(f"v_add_u32 v{vXW}, {OWNL}, v{vL2}")
    def reduce(own):
        k.lg = [("r", i) for i in range(18)]
        for db in range(9):
            k.wait(lg=[("r", 2*db + 1)])
            a = ACC2 + 8*db; t = T + 8*db
            for r in range(0, 8, 2): e(f"v_pk_add_f32 {vr(a+r,2)}, {vr(a+r,2)}, {vr(t+r,2)}")
            for p in range(4): e(f"v_cvt_pk_bf16_f32 v{a+p}, v{a+2*p}, v{a+2*p+1}")
            if own:
                k.dsop(f"ds_write_b128 v{vXW}, {vr(a,4)} offset:{1024*db}", "w")
            else:
                if db % 4 == 0 and db: e(f"s_add_u32 s{sPST}, s{sPST}, 4096")
                e(f"buffer_store_dwordx4 {vr(a,4)}, v{vL2}, s[{SP}:{SP+3}], s{sPST} offen offset:{1024*(db&3)} sc1")
    e(f"s_cmp_eq_u32 s{sOWN}, 1"); e(f"s_cbranch_scc1 {k.L('own')}")
    reduce(False)
    e(f"v_mov_b32 v8, s{S_TAG}"); e("v_mov_b32 v9, 0")
    e("s_barrier")
    e("s_waitcnt vmcnt(0)")
    e("s_mov_b64 exec, 1")
    e(f"buffer_store_dword v8, v9, s[{SF}:{SF+3}], s{sFST} offen sc1")
    e("s_mov_b64 exec, -1")
    e(f"s_branch {k.L('pub')}")
    k.label("own")
    reduce(True)
    e("s_waitcnt lgkmcnt(0)"); e("s_barrier")
    k.label("pub")
    if not OPT("fine", 0): st(k, 4)
    k.lg = []
    OW = 184
    e(f"s_lshl_b32 s3, s{S_WAVE}, 10"); e(f"v_add_u32 v{vXW}, s3, v{vXW}")
    for j in range(3): e(f"ds_read_b128 {vr(OW+4*j,4)}, v{vXW} offset:{4096*j}")
    e("s_mov_b32 s4, 0xffff0000")
    e(f"v_mov_b32 v12, {fhex(-LOG2E)}"); e("v_mov_b32 v14, 1.0")
    e("v_and_b32 v10, 3, v1"); e(f"v_cmp_ne_u32 s[62:63], s{S_ROLE}, v10"); e("v_lshlrev_b32 v10, 2, v10"); e(f"v_add_u32 v10, s{sFLD}, v10")
    for i, x in enumerate((1, 2, 3)):
        e(f"s_xor_b32 s3, s{S_ROLE}, {x}"); e("s_mul_i32 s3, s3, 9216"); e(f"s_add_u32 s{68+i}, s3, s{sPLD}")
    def PR(j, i): return 128 + 12*j + 4*i
    PP = OPT("pp", 1)
    if PP:
        e(f"s_lshl_b32 s6, 1, s{S_ROLE}"); e("s_xor_b32 s6, s6, 15"); e("s_mov_b32 s7, 0x80000")
        e(f"v_add_u32 v16, 4096, v{vL2}"); e(f"s_cmp_eq_u32 s{S_WAVE}, 0"); e(f"s_cselect_b32 s3, 0, {OOB - (1<<26)}"); e("s_add_u32 s3, s3, 8192"); e(f"v_add_u32 v17, s3, v{vL2}")
        k.label("p2")
        e(f"buffer_load_dword v11, v10, s[{SF}:{SF+3}], 0 offen sc1")
        e("s_waitcnt vmcnt(0)")
        e(f"v_cmp_eq_u32 vcc, s{S_TAG}, v11")
        e("s_and_b32 s5, vcc_lo, s6")
        e(f"s_cbranch_scc0 {k.L('p2_none')}")
        e("s_xor_b32 s6, s6, s5")
        for i, x in enumerate((1, 2, 3)):
            e(f"s_xor_b32 s3, s{S_ROLE}, {x}"); e("s_bitcmp1_b32 s5, s3"); e(f"s_cbranch_scc0 {k.L('p2_s'+str(i))}")
            for j in range(3):
                e(f"buffer_load_dwordx4 {vr(PR(j,i),4)}, v{[vL2,16,17][j]}, s[{SP}:{SP+3}], s{68+i} offen sc1")
            k.label("p2_s" + str(i))
        e("s_cmp_eq_u32 s6, 0"); e(f"s_cbranch_scc1 {k.L('p2_ok')}")
        k.label("p2_none")
        e("s_sub_u32 s7, s7, 1"); e("s_cmp_lg_u32 s7, 0"); e(f"s_cbranch_scc1 {k.L('p2')}")
        k.label("p2_ok")
    else:
        poll(k, "p2", 10, 11, "s[62:63]")
    if not OPT("fine", 0): st(k, 5)
    def ploads(j):
        for i in range(3):
            so = f"s{68+i}"
            if j:
                e(f"s_add_u32 s3, s{68+i}, {j*4096}"); so = "s3"
            k.vmem(f"buffer_load_dwordx4 {vr(PR(j,i),4)}, v{vL2}, s[{SP}:{SP+3}], {so} offen sc1", ("p", j))
    def unpack(dst, src):
        for p in range(4):
            e(f"v_lshlrev_b32 v{dst+2*p}, 16, v{src+p}"); e(f"v_and_b32 v{dst+2*p+1}, s4, v{src+p}")
    def padd(d, a, b):
        for r in range(0, 8, 2): e(f"v_pk_add_f32 {vr(d+r,2)}, {vr(a+r,2)}, {vr(b+r,2)}")
    def fin(j, isB):
        Y, U1, U2, U3 = 40 + 32*(j & 1), 48 + 32*(j & 1), 56 + 32*(j & 1), 64 + 32*(j & 1)
        mine = (OW + 4*j, PR(j, 0)); other = (PR(j, 1), PR(j, 2))
        ys, ss = (mine, other) if isB else (other, mine)
        unpack(Y, ys[0]); unpack(U1, ys[1]); padd(Y, Y, U1)
        for r in range(0, 8, 2): e(f"v_pk_mul_f32 {vr(U1+r,2)}, {vr(Y+r,2)}, v[12:13] op_sel_hi:[1,0]")
        for r in range(8): e(f"v_exp_f32 v{U1+r}, v{U1+r}")
        unpack(U2, ss[0]); unpack(U3, ss[1]); padd(U2, U2, U3)
        for r in range(0, 8, 2): e(f"v_pk_add_f32 {vr(U1+r,2)}, {vr(U1+r,2)}, v[14:15] op_sel_hi:[1,0]")
        for r in range(8): e(f"v_rcp_f32 v{U1+r}, v{U1+r}")
        unpack(U3, X + 4*j)
        for r in range(0, 8, 2): e(f"v_pk_mul_f32 {vr(Y+r,2)}, {vr(Y+r,2)}, {vr(U1+r,2)}")
        for r in range(0, 8, 2): e(f"v_pk_fma_f32 {vr(Y+r,2)}, {vr(Y+r,2)}, {vr(U2+r,2)}, {vr(U3+r,2)}")
        for p in range(4): e(f"v_cvt_pk_bf16_f32 v{Y+p}, v{Y+2*p}, v{Y+2*p+1}")
        for sb in range(2):
            k.vmem(f"buffer_store_dwordx2 {vr(Y+2*sb,2)}, v{XA+sb}, s[{SO2}:{SO2+3}], s{sXO} offen offset:{128*j}", "st")
    if not PP:
        e(f"s_cmp_lg_u32 s{S_WAVE}, 0"); e(f"s_cbranch_scc1 {k.L('no3')}")
        ploads(2)
        k.label("no3")
        k.vm = []
        ploads(0); ploads(1)
    e("s_waitcnt lgkmcnt(0)")
    e(f"s_cmp_ge_u32 s{S_ROLE}, 2"); e(f"s_cbranch_scc1 {k.L('finB')}")
    for isB in (False, True):
        if isB: k.label("finB")
        k.vm = [("p", 0), ("p", 1), ("p", 2)] if PP else [("p", 0)]*3 + [("p", 1)]*3
        k.wait(vm=[("p", 0)]); fin(0, isB)
        k.wait(vm=[("p", 1)]); fin(1, isB)
        e(f"s_cmp_lg_u32 s{S_WAVE}, 0"); e(f"s_cbranch_scc1 {k.L('fin')}")
        k.wait(vm=[("p", 2)]); fin(2, isB)
        if not isB: e(f"s_branch {k.L('fin')}")
    k.label("fin")
    if STAMPS:
        e("s_waitcnt vmcnt(0)"); st(k, 6); st_save(k, 7, 9); st_flush(k)
    if OPTS("probe", ""):
        i, j, cls = [int(x) for x in OPTS("probe", "").split(",")]
        e("s_nop 1"); e(f"v_readlane_b32 s3, v39, {i}"); e(f"v_readlane_b32 s4, v39, {j}"); e("s_nop 3")
        e("s_sub_u32 s3, s4, s3"); e("s_lshl_b32 s3, s3, 3"); e("s_min_u32 s3, s3, 100000")
        if cls == 0: e("s_cmp_lt_u32 s2, 176"); e("s_cselect_b32 s3, s3, 0")
        if cls == 1: e("s_sub_u32 s4, s2, 176"); e("s_cmp_lt_u32 s4, 72"); e("s_cselect_b32 s3, s3, 0")
        e("s_memrealtime s[4:5]"); e("s_waitcnt lgkmcnt(0)")
        k.label("spinp")
        e("s_memrealtime s[6:7]"); e("s_waitcnt lgkmcnt(0)")
        e("s_sub_u32 s6, s6, s4"); e("s_cmp_lt_u32 s6, s3"); e(f"s_cbranch_scc1 {k.L('spinp')}")
    if OPT("spin", 0):
        e("s_waitcnt vmcnt(0)"); e("s_memrealtime s[4:5]"); e("s_waitcnt lgkmcnt(0)")
        e("s_sub_u32 s3, s4, s98"); e(f"s_mul_i32 s3, s3, {OPT('spin', 0)}"); e("s_lshr_b32 s3, s3, 2"); e("s_min_u32 s3, s3, 100000")
        k.label("spin")
        e("s_memrealtime s[6:7]"); e("s_waitcnt lgkmcnt(0)")
        e("s_sub_u32 s6, s6, s4"); e("s_cmp_lt_u32 s6, s3"); e(f"s_cbranch_scc1 {k.L('spin')}")
    e("s_endpgm")

def fused():
    k = EK("fused_kernel", 256, 256, 163840, vgpr=512, sgpr=102, accum=256)
    k.loops = []
    e = k.e
    e("s_cmp_ge_u32 s2, 256"); e(f"s_cbranch_scc1 {k.L('exit')}")
    if OPT("spin", 0): e("s_memrealtime s[98:99]")
    st(k, 0)
    e("s_load_dwordx16 s[36:51], s[0:1], 0")
    e("s_load_dwordx8 s[52:59], s[0:1], 64")
    e("s_load_dwordx2 s[60:61], s[0:1], 96")
    e(f"s_and_b32 s{S_XCD}, s2, 7"); e(f"s_lshr_b32 s{S_SLOT}, s2, 3")
    e("v_lshrrev_b32 v1, 6, v0"); e("s_nop 0"); e(f"v_readfirstlane_b32 s{S_WAVE}, v1")
    e("v_and_b32 v1, 63, v0")
    touch_code(k, "entry", 40, 2)
    e("v_and_b32 v176, 7, v1"); e("v_lshrrev_b32 v177, 3, v1")
    e("s_lshl_b32 s3, s2, 3"); e("v_add_u32 v178, s3, v176"); e("v_mul_u32_u24 v178, 1152, v178")
    e("v_lshl_add_u32 v170, v177, 4, v178")
    e(f"s_mul_i32 s3, s{S_WAVE}, 384"); e("v_add_u32 v170, s3, v170")
    e(f"s_cmp_eq_u32 s{S_WAVE}, 3"); e(f"s_cselect_b32 s14, 0, {SIZE['x']}"); e("s_mov_b32 s15, 0x20000")
    e("s_waitcnt lgkmcnt(0)")
    e(f"s_mov_b32 s12, s{P_X}"); e(f"s_mov_b32 s13, s{P_X+1}")
    for i in range(3):
        e(f"buffer_load_dwordx4 {vr(100+4*i,4)}, v170, s[12:15], 0 offen offset:{128*i}{XNT}")
    e(f"s_cmp_ge_u32 s{S_SLOT}, 31"); e(f"s_cbranch_scc1 {k.L('spare')}")
    e(f"s_cmp_ge_u32 s{S_SLOT}, 22"); e(f"s_cbranch_scc1 {k.L('mlp1')}")
    slow = attn(k)
    phase2(k)
    k.label("exit"); e("s_endpgm")
    if OPT("prog", 1):
        k.label("chk0")
        e(f"buffer_load_dword v37, v38, s[{SF}:{SF+3}], 0 offen sc1")
        e(f"s_branch {k.L('ret0')}")
        k.label("chk1")
        e("s_waitcnt vmcnt(9)")
        e(f"v_cmp_ne_u32 vcc, s{S_TAG}, v37")
        e(f"s_cbranch_vccz {k.L('ret1')}")
        poll(k, "p1x", 38, 37)
        e(f"s_branch {k.L('ret1')}")
    e(".p2align 6"); mlp1(k)
    e(".p2align 6"); spare(k)
    k.label("end")
    slow()
    return k
```

```python
from common import *
from k1 import Gaps, MF, gelu_pairs

KNAME = "recurrent_scan__sliding_block_cached__mixer_token_mlp__prompt_kernel"
P_X, P_K, P_V, P_WQ, P_WO, P_BX, P_W1, P_B1, P_W2, P_B2, P_OUT, P_DBG, P_WS = 36, 38, 40, 42, 44, 46, 48, 50, 52, 54, 56, 58, 60
S_WAVE, S_XCD, S_SLOT = 28, 29, 30
S_TAG = 100
SF = 64
OOB = 0x7fffff00
LNX = 163584
NT = " nt" if OPT("nt", 1) else ""
SC = " sc1"
XNT = " nt" if OPT("xnt", 1) else ""
R2 = OPT("r2", 1248)
MB = OPT("mb", 0)
NI = OPT("ni", 0)
R1 = 252*MB if MB else (8*NI + OPT('dw', 6))*32
EW = OPT("ew", 1)
EWA = OPT("ewa", 1)
ZD = OPT("z", 0)
DYN = OPT("dyn", 1) and not ZD
SLOWT = OPT("slowt", 0)
SQ0 = OPT("sq0", 18)
STAG = OPT("stag", 1)
W2C = OPT("w2c", 0)
QTS = [(int(x[:-1]), x[-1]) for x in OPTS("qts", "99w,1w,3w,5w").split(",") if x]
QT0 = OPT("qt0", 7)
NQ = sum(1 for a_, b_ in QTS if b_ == "q"); NWT = sum(1 for a_, b_ in QTS if b_ == "w")
WT0 = R1
R1 = R1 + (NWT*11264)//72
KVT = any(b_ == "k" for a_, b_ in QTS)
WS_R = 1024
THR = 2.0**OPT('thr', 80)

def SR(i): return [80, 82, 84, 86, 88, 90, 96, 98, 62][i]
def st(k, i):
    if STAMPS: k.e(f"{'s_memtime' if OPT('cyc', 0) else 's_memrealtime'} s[{SR(i)}:{SR(i)+1}]")
def st_save(k, n, lane0):
    if not STAMPS: return
    k.e("s_waitcnt lgkmcnt(0)")
    for i in range(n): k.e(f"v_writelane_b32 v39, s{SR(i)}, {lane0+i}")
def st_flush(k):
    if not STAMPS: return
    e = k.e
    e(f"s_add_u32 s8, s{P_WS}, {200<<20}"); e(f"s_addc_u32 s9, s{P_WS+1}, 0"); e("s_mov_b32 s10, 65536"); e("s_mov_b32 s11, 0x20000")
    e("s_lshl_b32 s3, s2, 7"); e("v_and_b32 v2, 63, v0"); e("v_lshlrev_b32 v2, 2, v2")
    e("s_mov_b64 exec, 0xffffffff")
    e("buffer_store_dword v39, v2, s[8:11], s3 offen")

def run_now(k, L):
    for hs, b in L:
        for h in hs: k.e(h)
        if b: b()

def place(g, L, dg, hp=0):
    di = 0
    for hs, b in L:
        for h in hs:
            g.head(hp, h); hp += 1
        if b:
            assert hp <= dg[di], (hp, dg, di)
            g.body(dg[di], b); hp = dg[di] + 1; di += 1

def touch_code(k, start, nlines, v):
    e = k.e
    e("s_getpc_b64 s[8:9]")
    e(f"s_mov_b32 s10, {nlines*128}"); e("s_mov_b32 s11, 0x20000")
    e(f"v_lshlrev_b32 v{v}, 5, v0")
    k.vmem(f"buffer_load_dword v{v+1}, v{v}, s[8:11], 0 offen", "pf")

def poll(k, name, vaddr, vtmp, mask=None, pre=False, slp=1):
    e = k.e
    e("s_mov_b32 s7, 0x80000")
    if pre: e(f"s_branch {k.L(name+'_chk')}")
    k.label(name)
    e(f"buffer_load_dword v{vtmp}, v{vaddr}, s[{SF}:{SF+3}], 0 offen sc1")
    k.label(name + "_chk")
    e("s_waitcnt vmcnt(0)")
    e(f"v_cmp_ne_u32 vcc, s{S_TAG}, v{vtmp}")
    if mask: e(f"s_and_b64 vcc, vcc, {mask}")
    e(f"s_cbranch_vccz {k.L(name+'_ok')}")
    e(f"s_sleep {slp}"); e("s_sub_u32 s7, s7, 1"); e("s_cmp_lg_u32 s7, 0"); e(f"s_cbranch_scc1 {k.L(name)}")
    k.label(name + "_ok")
    k.vm = []

def ln_phase(k, nm, hook_a, w3_b, hook_d=lambda: None):
    e = k.e
    R, F, T = 100, 112, 140
    vX, vN, vL = 170, 171, 172
    e(f"s_mul_i32 s4, s{S_WAVE}, {6*131072}")
    e("v_lshrrev_b32 v178, 2, v177"); e("v_lshlrev_b32 v178, 17, v178"); e("v_and_b32 v179, 3, v177"); e("v_lshl_add_u32 v178, v179, 8, v178")
    e("v_lshl_add_u32 v178, v176, 4, v178")
    e("s_lshr_b32 s3, s2, 1"); e("s_lshl_b32 s3, s3, 10"); e("s_add_u32 s4, s4, s3"); e("s_and_b32 s3, s2, 1"); e("s_lshl_b32 s3, s3, 7"); e("s_add_u32 s4, s4, s3")
    e(f"v_add_u32 v{vN}, s4, v178")
    e(f"v_lshlrev_b32 v{vL}, 3, v176"); e(f"v_add_u32 v{vL}, {LNX}, v{vL}")
    e(f"s_lshl_b32 s3, s{S_WAVE}, 6"); e(f"v_add_u32 v173, s3, v{vL}")
    e("s_barrier")
    e(f"s_load_dword s{S_TAG}, s[{P_WS}:{P_WS+1}], {WS_E}")
    hook_a()
    e("s_getpc_b64 s[24:25]")
    k.label(nm + "_pc")
    e(f"s_sub_u32 s24, s24, {k.L(nm+'_pc')}-{k.name}"); e("s_subb_u32 s25, s25, 0")
    e(f"s_mov_b32 s26, {k.L('end')}-{k.name}"); e("s_mov_b32 s27, 0x20000")
    e(f"s_lshl_b32 s3, s{S_SLOT}, 2"); e(f"s_add_u32 s3, s3, s{S_WAVE}"); e("s_mul_i32 s3, s3, 896")
    e("v_min_u32 v174, 6, v1"); e("v_lshlrev_b32 v174, 7, v174"); e("v_add_u32 v174, s3, v174")
    k.vmem("buffer_load_dword v175, v174, s[24:27], 0 offen", "pf")
    k.srd(16, P_WS, WS_XN, XN_BYTES); k.srd(20, P_WS, WS_H, H_BYTES); k.srd(SF, P_WS, 0, FLAG_BYTES)
    if OPT("ftouch", 1):
        e("s_lshl_b32 s3, s2, 2"); e(f"s_add_u32 s3, s3, s{S_WAVE}"); e("s_lshl_b32 s3, s3, 7"); e("v_mov_b32 v174, s3")
        k.vmem(f"buffer_load_dword v175, v174, s[{SF}:{SF+3}], 0 offen sc1", "pf")
    e(f"s_cmp_lg_u32 s{S_WAVE}, 3"); e(f"s_cbranch_scc1 {k.L(nm+'_ln')}")
    e("s_waitcnt lgkmcnt(0)"); e("s_barrier")
    e(f"s_mul_i32 s{S_TAG}, s{S_TAG}, 0x9e3779b1"); e(f"s_add_u32 s{S_TAG}, s{S_TAG}, 0x7f4a7c15")
    e(f"s_branch {k.L(nm+'_st')}")
    k.label(nm + "_ln")
    e("s_mov_b32 s3, 0xffff0000")
    k.wait(vm=["x"])
    st(k, 1)
    for i in range(12):
        e(f"v_lshlrev_b32 v{F+2*i}, 16, v{R+i}"); e(f"v_and_b32 v{F+2*i+1}, s3, v{R+i}")
    def red(v):
        e(f"v_add_f32_dpp v{v}, v{v}, v{v} row_ror:8 row_mask:0xf bank_mask:0xf")
        for sw in ["v_permlane16_swap_b32", "v_permlane32_swap_b32"]:
            e(f"v_mov_b32 v{v+1}, v{v}"); e(f"{sw} v{v}, v{v+1}"); e(f"v_add_f32 v{v}, v{v}, v{v+1}")
    A, B = T, T + 2
    e(f"v_pk_add_f32 {vr(A,2)}, {vr(F,2)}, {vr(F+2,2)}"); e(f"v_pk_add_f32 {vr(B,2)}, {vr(F+4,2)}, {vr(F+6,2)}")
    for p in range(4, 12):
        d = A if p % 2 == 0 else B
        e(f"v_pk_add_f32 {vr(d,2)}, {vr(d,2)}, {vr(F+2*p,2)}")
    e(f"v_pk_add_f32 {vr(A,2)}, {vr(A,2)}, {vr(B,2)}"); e(f"v_add_f32 v{A}, v{A}, v{A+1}")
    red(A)
    M = T + 4
    e(f"v_mul_f32 v{M}, {fhex(1/192)}, v{A}")
    for p in range(12):
        e(f"v_pk_add_f32 {vr(F+2*p,2)}, {vr(F+2*p,2)}, {vr(M,2)} op_sel_hi:[1,0] neg_lo:[0,1] neg_hi:[0,1]")
    e(f"v_pk_mul_f32 {vr(A,2)}, {vr(F,2)}, {vr(F,2)}"); e(f"v_pk_mul_f32 {vr(B,2)}, {vr(F+2,2)}, {vr(F+2,2)}")
    for p in range(2, 12):
        d = A if p % 2 == 0 else B
        e(f"v_pk_fma_f32 {vr(d,2)}, {vr(F+2*p,2)}, {vr(F+2*p,2)}, {vr(d,2)}")
    e(f"v_pk_add_f32 {vr(A,2)}, {vr(A,2)}, {vr(B,2)}"); e(f"v_add_f32 v{A}, v{A}, v{A+1}")
    red(A)
    e(f"v_mov_b32 v{M+1}, v{A}")
    e(f"ds_write_b64 v173, {vr(M,2)}")
    e("s_waitcnt lgkmcnt(0)"); e("s_barrier")
    G = T + 8
    for w in range(3): e(f"ds_read_b64 {vr(G+2*w,2)}, v{vL} offset:{64*w}")
    e(f"s_mul_i32 s{S_TAG}, s{S_TAG}, 0x9e3779b1"); e(f"s_add_u32 s{S_TAG}, s{S_TAG}, 0x7f4a7c15")
    e("s_waitcnt lgkmcnt(0)")
    e(f"v_add_f32 v{A}, v{G}, v{G+2}"); e(f"v_add_f32 v{B}, v{G+1}, v{G+3}")
    e(f"v_add_f32 v{A}, v{A}, v{G+4}"); e(f"v_add_f32 v{B}, v{B}, v{G+5}")
    e(f"v_mul_f32 v{A}, {fhex(1/3)}, v{A}")
    for w in range(3): e(f"v_sub_f32 v{G+2*w}, v{G+2*w}, v{A}")
    e(f"v_mul_f32 v{A+1}, v{G}, v{G}"); e(f"v_fmac_f32 v{A+1}, v{G+2}, v{G+2}"); e(f"v_fmac_f32 v{A+1}, v{G+4}, v{G+4}")
    e(f"v_fmac_f32 v{B}, {fhex(192.0)}, v{A+1}")
    e(f"v_mul_f32 v{B}, {fhex(1/576)}, v{B}")
    e(f"v_sub_f32 v{M}, v{M}, v{A}")
    e(f"v_add_f32 v{A}, {fhex(1e-5)}, v{B}"); e(f"v_rsq_f32 v{A}, v{A}")
    e(f"v_mul_f32 v{B}, v{B}, v{A}"); e(f"v_mul_f32 v{B}, v{B}, v{A}")
    e(f"v_add_f32 v{B}, {fhex(1e-5)}, v{B}"); e(f"v_rsq_f32 v{B}, v{B}")
    SXr, SHr, DX, DH = G, G + 2, G + 4, G + 6
    e(f"v_mul_f32 v{SXr}, {fhex(QSCALE)}, v{A}"); e(f"v_mul_f32 v{DX}, v{M}, v{SXr}")
    e(f"v_mul_f32 v{SHr}, v{B}, v{A}"); e(f"v_mul_f32 v{DH}, v{M}, v{SHr}")
    U = 180
    e("s_mov_b32 s3, 262144"); e("s_mov_b32 s4, 524288")
    for i in range(3):
        for (sc, dl, dst, which) in [(SXr, DX, R + 4*i, 0), (SHr, DH, 156 + 4*i, 1)]:
            u = U + 8*which
            for p in range(4):
                e(f"v_pk_fma_f32 {vr(u+2*p,2)}, {vr(F+8*i+2*p,2)}, {vr(sc,2)}, {vr(dl,2)} op_sel_hi:[1,0,0]")
            for p in range(4): e(f"v_cvt_pk_bf16_f32 v{dst+p}, v{u+2*p}, v{u+2*p+1}")
            if which == 0:
                so = ["0", "s3", "s4"][i]
                k.vmem(f"buffer_store_dwordx4 {vr(dst,4)}, v{vN}, s[16:19], {so} offen sc1", "ln")
            else:
                k.vmem(f"buffer_store_dwordx4 {vr(dst,4)}, v{vX}, s[20:23], 0 offen offset:{128*i} sc1", "ln")
    st(k, 2)
    k.label(nm + "_st")
    hook_d()
    e("v_lshlrev_b32 v176, 12, v1"); e("s_lshl_b32 s3, s2, 4"); e(f"s_add_u32 s3, s3, {WS_F0}"); e(f"v_mov_b32 v177, s{S_TAG}")
    k.wait(vm=["ln"])
    e("s_barrier")
    e(f"s_cmp_lg_u32 s{S_WAVE}, 0"); e(f"s_cbranch_scc1 {k.L(nm+'_nf')}")
    e("s_mov_b64 exec, 0xff")
    e(f"buffer_store_dword v177, v176, s[{SF}:{SF+3}], s3 offen sc1")
    e("s_mov_b64 exec, -1")
    k.label(nm + "_nf")
    st(k, 3)
    k.vm = ["unknown"]*0

def strip_touch_addr(k, v, idx_s, row0):
    e = k.e
    e(f"v_add_u32 v{v}, s{idx_s}, v1")
    e(f"v_mul_u32_u24 v{v+1}, 1821, v{v}"); e(f"v_lshrrev_b32 v{v+1}, 14, v{v+1}")
    e(f"v_mul_u32_u24 v{v+1}, {9216-9*128}, v{v+1}"); e(f"v_lshl_add_u32 v{v}, v{v}, 7, v{v+1}")
    e(f"s_mul_i32 s3, s{S_XCD}, 1152"); e(f"s_add_u32 s3, s3, {row0*9216}"); e(f"v_add_u32 v{v}, s3, v{v}")

def publish(k, nm, level=3):
    e = k.e
    e("s_barrier")
    e(f"s_cmp_lg_u32 s{S_WAVE}, 0"); e(f"s_cbranch_scc1 {k.L(nm+'_nf1')}")
    e(f"s_lshl_b32 s3, s2, 7"); e(f"s_add_u32 s3, s3, {WS_F1}"); e(f"v_mov_b32 v2, s{S_TAG}"); e("v_mov_b32 v3, 0")
    if ZD: e(f"v_add_u32 v2, {level}, v2")
    e("s_mov_b64 exec, 1")
    e(f"buffer_store_dword v2, v3, s[{SF}:{SF+3}], s3 offen sc1")
    e("s_mov_b64 exec, -1")
    k.label(nm + "_nf1")

def mlp1(k, UNROLL=8):
    e = k.e
    SW, SH, SU, SB = 8, 12, 16, 20
    sUB, sOW, sOH, sOWm, sOHm, sRD, sWR, sWB, sCNT, sOT, sWH = 68, 69, 70, 71, 72, 73, 74, 75, 76, 77, 78
    sFT, sDT = 32, 33
    vT, vTD = 2, 3
    SLOT = 24576; NS = 6; DW = OPT('dw', 6); DH = OPT('dh', 4)
    ACC = 112
    vW, vH = 4, 7
    RAb, RBb, RA, RB = 10, 14, 18, 22
    BIAS = 32
    k.label("mlp1")
    k.vm = ["x"]; k.lg = []
    touch_code(k, "mlp1", 40, 30)
    e(f"s_sub_u32 s3, s{S_SLOT}, 22")
    e("s_mul_i32 s4, s3, 11"); e("s_lshr_b32 s4, s4, 5")
    e(f"s_mul_i32 s5, s4, 3"); e(f"s_sub_u32 s{sDT}, s3, s5")
    e(f"s_mul_i32 s6, s{S_XCD}, 3"); e(f"s_add_u32 s{sFT}, s6, s4")
    e(f"s_mul_i32 s{sOW}, s{sFT}, 384"); e(f"s_mul_i32 s{sOH}, s{sDT}, 384")
    e(f"s_add_u32 s{sOWm}, s{sOW}, {63*32*9216}"); e(f"s_add_u32 s{sOHm}, s{sOH}, {63*32*1152}")
    e(f"s_mul_i32 s{sWB}, s{S_WAVE}, 3072")
    e(f"s_lshl_b32 s7, s{S_WAVE}, 3")
    for i in range(3):
        e(f"v_add_u32 v26, {64*i}, v1")
        e("v_mul_u32_u24 v27, 2731, v26"); e("v_lshrrev_b32 v27, 16, v27")
        e("v_mul_u32_u24 v28, 24, v27"); e("v_sub_u32 v28, v26, v28")
        e("v_and_b32 v29, 6, v27"); e("v_xor_b32 v28, v28, v29")
        e("v_add_u32 v27, s7, v27")
        e("v_lshlrev_b32 v28, 4, v28")
        if i: e(f"v_subrev_u32 v28, {1024*i}, v28")
        e(f"v_mul_u32_u24 v29, 9216, v27"); e(f"v_add_u32 v{vW+i}, v29, v28")
        e(f"v_mul_u32_u24 v29, 1152, v27"); e(f"v_add_u32 v{vH+i}, v29, v28")
    wpol = [" nt"]
    def dma(i, which, tag):
        if which == 0:
            k.vmem(f"buffer_load_dwordx4 v{vW+i}, s[{SW}:{SW+3}], s{sOW} offen offset:{1024*i}{wpol[0]} lds", tag)
        else:
            k.vmem(f"buffer_load_dwordx4 v{vH+i}, s[{SH}:{SH+3}], s{sOH} offen offset:{1024*i}{SC} lds", tag)
    def wdma(s_):
        e(f"s_add_u32 m0, s{sWB}, {s_*SLOT}")
        for i in range(3): dma(i, 0, ("W", s_))
        e(f"s_add_u32 s{sOW}, s{sOW}, {32*9216}")
    def hdma(s_):
        e(f"s_add_u32 m0, s{sWB}, {s_*SLOT+12288}")
        for i in range(3): dma(i, 1, ("H", s_))
        e(f"s_add_u32 s{sOH}, s{sOH}, {32*1152}")
    def burst():
        k.vmem(f"buffer_load_dword v{vTD}, v{vT}, s[{SW}:{SW+3}], 0 offen", "touch")
        e(f"v_add_u32 v{vT}, {252*9216}, v{vT}")
    def hook_a():
        k.srd(SW, P_W1, 0, SIZE['w1'])
        for s_ in range(EW): wdma(s_)
    def hook_d():
        e(f"s_sub_u32 s4, s{S_SLOT}, 22"); e("s_lshl_b32 s4, s4, 2"); e(f"s_add_u32 s4, s4, s{S_WAVE}"); e("s_mul_i32 s4, s4, 63")
        strip_touch_addr(k, vT, 4, 0)
        e(f"s_and_b32 s4, s{S_WAVE}, 1"); e(f"s_lshr_b32 s7, s{S_WAVE}, 1")
        e("v_lshrrev_b32 v27, 2, v1"); e("v_bfe_u32 v28, v27, 1, 2"); e("v_mul_u32_u24 v27, 384, v27")
        e("v_and_b32 v29, 3, v1"); e("v_lshl_add_u32 v27, v29, 3, v27")
        e("s_mul_i32 s5, s4, 6"); e("s_mul_i32 s6, s7, 6")
        for q in range(4):
            e(f"s_add_u32 s3, s5, {q}"); e("v_xor_b32 v29, s3, v28"); e(f"v_lshl_add_u32 v{RAb+q}, v29, 5, v27")
            e(f"s_add_u32 s3, s6, {q}"); e("v_xor_b32 v29, s3, v28"); e(f"v_lshl_add_u32 v{RBb+q}, v29, 5, v27")
            e(f"v_add_u32 v{RBb+q}, 12288, v{RBb+q}")
        e(f"s_mul_i32 s3, s{sFT}, 6"); e("s_mul_i32 s31, s4, 3"); e("s_add_u32 s3, s3, s31"); e("s_mul_i32 s3, s3, 36")
        e(f"s_mul_i32 s31, s{sDT}, 12"); e("s_add_u32 s3, s3, s31"); e("s_add_u32 s3, s3, s6")
        e(f"s_lshl_b32 s{sUB}, s3, 10")
    ln_phase(k, "mlp1", hook_a, None, hook_d)
    for b in range(MB): burst()
    k.srd(24, P_B1, 0, SIZE['b1'])
    e(f"s_and_b32 s4, s{S_WAVE}, 1"); e(f"s_mul_i32 s3, s{sFT}, 384"); e("s_mul_i32 s31, s4, 192"); e("s_add_u32 s3, s3, s31")
    e("v_lshrrev_b32 v26, 4, v1"); e("v_lshlrev_b32 v27, 3, v26")
    for fb in range(6):
        k.vmem(f"buffer_load_dwordx2 v[{56+2*fb}:{57+2*fb}], v27, s[24:27], s3 offen offset:{32*fb}", "bias")
    MP = OPT('mp', 3)
    for s_ in range(EW, MP): wdma(s_)
    k.srd(SH, P_WS, WS_H, H_BYTES); k.srd(SU, P_WS, WS_U, U_BYTES)
    e(f"s_lshl_b32 s3, s{S_XCD}, 12"); e(f"s_lshl_b32 s4, s{S_WAVE}, 4"); e("s_add_u32 s3, s3, s4"); e(f"s_add_u32 s3, s3, {WS_F0}")
    e("v_lshlrev_b32 v26, 6, v1"); e("v_add_u32 v26, s3, v26")
    poll(k, "mlp1_p0", 26, 27, slp=OPT("slp0", 6))
    st(k, 4)
    for s_ in range(2): hdma(s_)
    def acc(fb, db): return ACC + (((fb >> 1)*6 + db)*2 + (fb & 1))*4
    def A(buf, i): return buf*48 + 4*i
    def B(buf, i): return buf*48 + 24 + 4*i
    e("s_mov_b32 s3, 0xffff0000")
    for fb in range(6):
        for h in range(2):
            e(f"v_lshlrev_b32 v{BIAS+4*fb+2*h}, 16, v{56+2*fb+h}")
            e(f"v_and_b32 v{BIAS+4*fb+2*h+1}, s3, v{56+2*fb+h}")
    for fb in range(6):
        for db in range(6):
            for r in range(0, 4, 2): e(f"v_pk_mov_b32 {vr(acc(fb,db)+r,2)}, {vr(BIAS+4*fb+r,2)}, {vr(BIAS+4*fb+r,2)} op_sel:[0,1]")
    def reads(ra, rb, buf):
        L = []
        for i in range(6):
            for h in range(2):
                L.append(f"ds_read_b64_tr_b16 {ar(B(buf,i)+2*h,2)}, v{rb+(i&3)} offset:{(i>>2)*128+h*6144}")
        for i in range(6):
            for h in range(2):
                L.append(f"ds_read_b64_tr_b16 {ar(A(buf,i)+2*h,2)}, v{ra+(i&3)} offset:{(i>>2)*128+h*6144}")
        return L
    hdma(2)
    k.wait(vm=[("H", 0)])
    e("s_barrier")
    for t in reads(RAb, RBb, 0): e(t)
    for s_ in range(3, 6):
        if MP <= s_ < DW: wdma(s_)
        if s_ < DH: hdma(s_)
    k.wait(vm=[("H", 2)])
    e(f"s_lshl_b32 s3, s2, 2"); e(f"s_add_u32 s3, s3, s{S_WAVE}"); e(f"s_cmp_eq_u32 s3, {176*4}")
    e(f"s_cselect_b32 s3, {WS_E}, {OOB}"); e("v_mov_b32 v26, s3"); e(f"v_mov_b32 v27, s{S_TAG}")
    e(f"buffer_store_dword v27, v26, s[{SF}:{SF+3}], 0 offen sc1")
    for q in range(4):
        e(f"v_add_u32 v{RA+q}, {SLOT}, v{RAb+q}"); e(f"v_add_u32 v{RB+q}, {SLOT}, v{RBb+q}")
    e(f"s_mov_b32 s{sWR}, {(DW % NS)*SLOT}"); e(f"s_mov_b32 s{sWH}, {(DH % NS)*SLOT}"); e(f"s_mov_b32 s{sRD}, {SLOT}")
    e(f"s_add_u32 s79, s{sWB}, 12288")
    e("s_waitcnt lgkmcnt(0)"); e("s_barrier")
    st(k, 5)
    for lab, cnt, pol in [("mlp1_loopn", NI, " nt"), ("mlp1_loop", 64//UNROLL - NI, "")]:
        if cnt == 0: continue
        wpol[0] = pol
        if not pol: st(k, 7)
        e(f"s_mov_b32 s{sCNT}, {cnt}")
        if OPT("jit4", 1):
            e("s_getpc_b64 s[92:93]"); e("s_add_u32 s92, s92, 4608"); e("s_addc_u32 s93, s93, 0"); e("s_mov_b32 s94, 9216"); e("s_mov_b32 s95, 0x20000")
            e(f"s_sub_u32 s3, s{S_SLOT}, 22"); e("s_lshl_b32 s3, s3, 2"); e(f"s_add_u32 s3, s3, s{S_WAVE}"); e("s_lshl_b32 s3, s3, 8")
            e("v_and_b32 v2, 1, v1"); e("v_lshlrev_b32 v2, 7, v2"); e("v_add_u32 v2, s3, v2")
        if SLOWT and pol:
            e(f"s_lshr_b32 s3, s{P_W1}, 7"); e(f"s_mul_i32 s4, s{sFT}, 3"); e("s_add_u32 s3, s3, s4"); e("s_sub_u32 s3, 3, s3"); e("s_and_b32 s3, s3, 7")
            e("s_cmp_lt_u32 s3, 3"); e(f"s_cselect_b32 s{sCNT}, {64//UNROLL}, s{sCNT}"); e(f"s_cbranch_scc1 {k.L('mlp1_loop')}")
        e(".p2align 6")
        k.label(lab)
        body0 = len(k.lines)
        for s_ in range(UNROLL):
            buf = s_ & 1
            g = Gaps(k); u = 0
            for fb in range(6):
                for db in range(6):
                    c = vr(acc(fb, db), 4)
                    g.mfma(u, f"{MF} {c}, {ar(A(buf,fb),4)}, {ar(B(buf,db),4)}, {c}"); u += 1
            dg = [2, 8, 14, 20, 26, 32]
            rg = [x for x in range(36) if x not in dg][:24]
            for n, t in enumerate(reads(RA, RB, buf ^ 1)): g.body(rg[n], t)
            g.head(0, f"s_add_u32 m0, s{sWR}, s{sWB}")
            g.head(1, f"s_min_u32 s{sOW}, s{sOW}, s{sOWm}")
            g.head(3, f"s_add_u32 s{sWR}, s{sWR}, {SLOT}")
            g.head(4, f"s_cmp_eq_u32 s{sWR}, {NS*SLOT}")
            g.head(5, f"s_cselect_b32 s{sWR}, 0, s{sWR}")
            g.head(9, f"s_add_u32 s{sRD}, s{sRD}, {SLOT}")
            g.head(10, f"s_cmp_eq_u32 s{sRD}, {NS*SLOT}")
            g.head(11, f"s_cselect_b32 s{sRD}, 0, s{sRD}")
            for i in range(3): g.body(dg[i], (lambda i=i: dma(i, 0, None)))
            g.head(15, f"s_add_u32 m0, s{sWH}, s79")
            g.head(16, f"s_add_u32 s{sOW}, s{sOW}, {32*9216}")
            g.head(17, f"s_min_u32 s{sOH}, s{sOH}, s{sOHm}")
            g.head(21, f"s_add_u32 s{sWH}, s{sWH}, {SLOT}")
            g.head(22, f"s_cmp_eq_u32 s{sWH}, {NS*SLOT}")
            g.head(23, f"s_cselect_b32 s{sWH}, 0, s{sWH}")
            for i in range(3): g.body(dg[3 + i], (lambda i=i: dma(i, 1, None)))
            g.head(33, f"s_add_u32 s{sOH}, s{sOH}, {32*1152}")
            if s_ == 0 and OPT("jit4", 1): g.body(29, "buffer_load_dword v3, v2, s[92:95], 0 offen")
            for q in range(4): g.body(15 + q, f"v_add_u32 v{RB+q}, s{sRD}, v{RBb+q}")
            for q in range(4): g.body(30 + q//2, f"v_add_u32 v{RA+q}, s{sRD}, v{RAb+q}")
            if s_ == UNROLL - 1:
                g.head(31, f"s_sub_u32 s{sCNT}, s{sCNT}, 1")
                g.head(34, f"s_cmp_lg_u32 s{sCNT}, 0")
            g.head(35, f"s_waitcnt vmcnt({(DH-2)*6}) lgkmcnt(0)")
            g.head(35, "s_barrier")
            if s_ == UNROLL - 1:
                g.head(35, f"s_cbranch_scc1 {k.L(lab)}")
            g.emit(0, 36)
        k.loops.append((body0, len(k.lines)))
    k.vm = []; k.lg = []
    st(k, 6)
    C0, C1, ONE, TMP = 26, 28, 30, 40
    c0 = -2*math.sqrt(2/math.pi)*LOG2E
    for r in range(2):
        e(f"v_mov_b32 v{C0+r}, {fhex(c0)}"); e(f"v_mov_b32 v{C1+r}, {fhex(c0*0.044715)}"); e(f"v_mov_b32 v{ONE+r}, 1.0")
    e("v_lshlrev_b32 v4, 4, v1")
    for j in range(3):
        for db in range(0, 6, 2):
            base = [acc(2*j, db), acc(2*j, db+1)]
            pairs = [b + 2*p for b in base for p in range(4)]
            dst = [b + p for b in base for p in range(4)]
            gelu_pairs(k, pairs, dst, TMP + 16*((db//2) & 1), C0, C1, ONE)
            if ZD and j >= 1 and db == OPT("pubdb", 2):
                e(f"s_waitcnt vmcnt({db})"); publish(k, f"mlp1j{j}", j)
            for q in range(2):
                off = (db + q)*1024
                so = f"s{sUB}"
                if off >= 4096:
                    e(f"s_add_u32 s3, s{sUB}, 4096"); so = "s3"; off -= 4096
                k.vmem(f"buffer_store_dwordx4 {vr(base[q],4)}, v4, s[{SU}:{SU+3}], {so} offen offset:{off} sc1")
        e(f"s_add_u32 s{sUB}, s{sUB}, {36*1024}")
    e("s_waitcnt vmcnt(18)")
    st(k, 8)
    e(f"s_branch {k.L('phase2')}")

def spare(k):
    e = k.e
    k.label("spare")
    k.vm = ["x"]; k.lg = []
    touch_code(k, "spare", 16, 30)
    ln_phase(k, "spare", lambda: None, lambda: None)
    if SLOWT:
        e("v_min_u32 v5, 53, v1"); e("v_cmp_lt_u32 vcc, 26, v5"); e("v_cndmask_b32 v2, 0, 1, vcc")
        e("v_mul_u32_u24 v3, 27, v2"); e("v_sub_u32 v5, v5, v3")
        e("v_mul_u32_u24 v3, 43, v5"); e("v_lshrrev_b32 v3, 7, v3"); e("v_mul_u32_u24 v6, 3, v3"); e("v_sub_u32 v5, v5, v6")
        e(f"s_lshr_b32 s3, s{P_W1}, 7"); e("s_sub_u32 s3, 3, s3"); e("s_and_b32 s3, s3, 7")
        e("v_lshl_add_u32 v3, v3, 3, s3"); e("v_mul_u32_u24 v3, 171, v3"); e("v_lshrrev_b32 v3, 9, v3"); e("v_mad_u32_u24 v3, v3, 3, v5")
        e(f"s_lshl_b32 s3, s{S_XCD}, 2"); e(f"s_add_u32 s3, s3, s{S_WAVE}"); e("s_lshl_b32 s3, s3, 1"); e("s_add_u32 s3, s3, 192")
        e("v_add_u32 v2, s3, v2"); e("v_mul_u32_u24 v2, 9216, v2"); e("v_lshl_add_u32 v2, v3, 7, v2")
        e(f"s_mov_b32 s4, {-(-(R2-192)//64)}")
        step = 64
    else:
        e("v_mul_u32_u24 v2, 7282, v1"); e("v_lshrrev_b32 v2, 16, v2")
        e("v_mul_u32_u24 v3, 9, v2"); e("v_sub_u32 v3, v1, v3"); e("v_min_u32 v2, 6, v2")
        e(f"s_mul_i32 s3, s{S_WAVE}, 7"); e("v_add_u32 v2, s3, v2"); e("v_mul_u32_u24 v2, 9216, v2"); e("v_lshl_add_u32 v2, v3, 7, v2")
        e(f"s_mul_i32 s3, s{S_XCD}, 1152"); e(f"s_add_u32 s3, s3, {R1*9216}"); e("v_add_u32 v2, s3, v2")
        e(f"s_mov_b32 s4, {-(-(R2-R1)//28)}")
        step = 28
    if SQ0 < 18:
        k.srd(8, P_WQ, 0, SIZE['wq'])
        e("v_lshrrev_b32 v5, 3, v0"); e("v_and_b32 v6, 7, v0"); e("v_lshlrev_b32 v6, 7, v6"); e("v_lshl_add_u32 v5, v5, 13, v6")
        e(f"s_lshl_b32 s3, s{S_XCD}, 10"); e(f"s_add_u32 s3, s3, {SQ0*32*8192}"); e("v_add_u32 v5, s3, v5")
        e(f"s_mov_b32 s5, {18 - SQ0}")
        k.label("qloop")
        e("buffer_load_dword v4, v5, s[8:11], 0 offen")
        e(f"v_add_u32 v5, {32*8192}, v5")
        e("s_waitcnt vmcnt(1)")
        e("s_sub_u32 s5, s5, 1"); e("s_cmp_lg_u32 s5, 0"); e(f"s_cbranch_scc1 {k.L('qloop')}")
    k.srd(8, P_B2, 0, SIZE['b2'])
    e("v_lshlrev_b32 v5, 7, v0"); e("buffer_load_dword v4, v5, s[8:11], 0 offen")
    k.srd(8, P_W1, 0, SIZE['w1'])
    k.label("pfloop")
    e("buffer_load_dword v4, v2, s[8:11], 0 offen")
    e(f"v_add_u32 v2, {step*9216}, v2")
    e("s_waitcnt vmcnt(1)")
    e("s_sub_u32 s4, s4, 1"); e("s_cmp_lg_u32 s4, 0"); e(f"s_cbranch_scc1 {k.L('pfloop')}")
    if W2C:
        k.srd(8, P_W2, 0, SIZE['w2']); k.srd(12, P_WS, WS_C, C_BYTES)
        e(f"s_lshr_b32 s3, s{P_W2}, 7"); e("s_sub_u32 s3, 3, s3"); e("s_and_b32 s3, s3, 7"); e("s_lshl_b32 s3, s3, 7")
        e(f"s_lshl_b32 s4, s{S_WAVE}, 10"); e("s_add_u32 s3, s3, s4"); e(f"s_mul_i32 s4, s{S_XCD}, {576*4096}"); e("s_add_u32 s5, s3, s4")
        e(f"s_mul_i32 s3, s{S_WAVE}, {4608*128}"); e(f"s_mul_i32 s4, s{S_XCD}, {576*128}"); e("s_add_u32 s6, s3, s4")
        e("v_lshrrev_b32 v2, 3, v1"); e("v_and_b32 v3, 7, v1"); e("v_lshlrev_b32 v3, 4, v3"); e("v_lshl_add_u32 v2, v2, 12, v3")
        e("v_lshlrev_b32 v3, 4, v1")
        def ld(h):
            for i in range(4):
                e(f"buffer_load_dwordx4 {vr(40+16*h+4*i,4)}, v2, s[8:11], s5 offen"); e("s_add_u32 s5, s5, 32768")
        def sto(h):
            for i in range(4): e(f"buffer_store_dwordx4 {vr(40+16*h+4*i,4)}, v3, s[12:15], s6 offen offset:{1024*i} sc1")
            e("s_add_u32 s6, s6, 4096")
        e("s_mov_b32 s4, 9")
        k.label("cploop")
        ld(0); ld(1)
        e("s_waitcnt vmcnt(4)"); sto(0)
        e("s_waitcnt vmcnt(4)"); sto(1)
        e("s_sub_u32 s4, s4, 1"); e("s_cmp_lg_u32 s4, 0"); e(f"s_cbranch_scc1 {k.L('cploop')}")
    e("s_waitcnt vmcnt(0)")
    st(k, 8)
    e(f"s_branch {k.L('phase2')}")

def attn(k):
    e = k.e
    SQ, SX, SK, SV, SO = 8, 12, 16, 20, 24
    sOQ, sOQ2, sOX, sOKV, sW4, sW3, sOB, sNV, sHQ = 68, 69, 70, 71, 72, 73, 74, 75, 76
    sKVH, sRT0, sRH = 32, 33, 34
    QS = 28672
    KR, VR = 98304, 0
    vQA, vQB, vLIN, vKE, vKO, vPF, vTD = 4, 5, 6, 7, 8, 9, 21
    vXN = 16
    RQ, RX = 10, 14
    RK, RV = 22, 26
    LS, NM, QF, SS = 34, 40, 64, 160
    FK, FV = 192, 224
    DX = OPT("dx", 4)
    k.label("attn")
    k.vm = ["x"]; k.lg = []
    e(f"s_cmp_ge_u32 s{S_SLOT}, 11"); e("s_cselect_b32 s3, 1, 0")
    e("s_mul_i32 s4, s3, 11"); e(f"s_sub_u32 s4, s{S_SLOT}, s4")
    e(f"s_lshl_b32 s5, s{S_XCD}, 1"); e(f"s_add_u32 s{sKVH}, s5, s3")
    e(f"s_and_b32 s{sHQ}, s{S_WAVE}, 1"); e(f"s_lshr_b32 s{sRH}, s{S_WAVE}, 1")
    e(f"s_lshl_b32 s{sW4}, s{S_WAVE}, 12")
    e(f"s_mul_i32 s{sW3}, s{S_WAVE}, 3072"); e(f"s_add_u32 s{sW3}, s{sW3}, 16384")
    e(f"s_lshl_b32 s{sOQ}, s{sKVH}, 9")
    e(f"s_lshl_b32 s3, s{S_WAVE}, 16"); e(f"s_add_u32 s{sOQ}, s{sOQ}, s3")
    e(f"s_add_u32 s{sOQ2}, s{sOQ}, {4*8192-2048}")
    e(f"s_mul_i32 s{sRT0}, s4, 12")
    e(f"v_lshlrev_b32 v{vLIN}, 4, v1")
    e("v_lshrrev_b32 v46, 5, v1"); e("v_and_b32 v47, 31, v1")
    e("v_lshlrev_b32 v48, 2, v46"); e("v_xor_b32 v48, v47, v48"); e("v_lshlrev_b32 v48, 4, v48")
    e(f"v_lshl_add_u32 v{vQA}, v46, 13, v48")
    e(f"v_xor_b32 v{vQB}, 128, v{vQA}"); e(f"v_add_u32 v{vQB}, {2*8192-1024}, v{vQB}")
    def wq(n):
        slot = (n % 5)*QS
        L = [([f"s_add_u32 m0, s{sW4}, {slot}"], None)]
        for i in range(4):
            v = vQA if i % 2 == 0 else vQB
            so = sOQ if i < 2 else sOQ2
            hs = [f"s_add_u32 s{sOQ}, s{sOQ}, {32*8192}"] if i == 2 else []
            L.append((hs, (lambda v=v, so=so, i=i: k.vmem(f"buffer_load_dwordx4 v{v}, s[{SQ}:{SQ+3}], s{so} offen offset:{1024*i}{'' if (QT0 <= n < QT0 + (NQ*11)//2 or n >= SQ0) else NT} lds", ("w", n)))))
        L.append(([f"s_add_u32 s{sOQ2}, s{sOQ2}, {32*8192}"], None))
        return L
    def xn(n):
        slot = (n % 5)*QS
        L = [([f"s_add_u32 m0, s{sW3}, {slot}"], None)]
        for i in range(3):
            L.append(([], (lambda i=i: k.vmem(f"buffer_load_dwordx4 v{vXN+i}, s[{SX}:{SX+3}], s{sOX} offen offset:{1024*i}{SC} lds", ("x", n)))))
        L.append(([f"s_add_u32 s{sOX}, s{sOX}, {128*1024}"], None))
        return L
    def kvdma(which, s):
        base = KR + ((s + 3) % 4)*16384 if which == "K" else VR + (s % 4)*16384
        srd = SK if which == "K" else SV
        L = [([f"s_add_u32 m0, s{sW4}, {base}"], None), ([f"s_add_u32 s3, s{sOKV}, {s*16384}"], None)]
        for i in range(4):
            v = vKE if i % 2 == 0 else vKO
            L.append(([], (lambda v=v, i=i: k.vmem(f"buffer_load_dwordx4 v{v}, s[{srd}:{srd+3}], s3 offen offset:{1024*i}{'' if KVT else NT} lds", (which, s)))))
        return L
    def hook_a():
        k.srd(SQ, P_WQ, 0, SIZE['wq'])
        for n in range(EWA): run_now(k, wq(n))
    def hook_d():
        e(f"s_mul_i32 s3, s{S_WAVE}, 3"); e(f"s_add_u32 s3, s3, s{sRT0}"); e(f"s_lshl_b32 s{sOX}, s3, 10")
        for i in range(3):
            e(f"s_cmp_lt_u32 s3, {128-i}"); e(f"s_cselect_b32 s4, 0, {OOB - (1<<24)}"); e(f"v_add_u32 v{vXN+i}, s4, v{vLIN}")
        e(f"s_lshl_b32 s{sOKV}, s{sKVH}, 19"); e(f"s_add_u32 s{sOKV}, s{sOKV}, {1536*256}"); e(f"s_add_u32 s{sOKV}, s{sOKV}, s{sW4}")
        e(f"s_lshl_b32 s3, s{sKVH}, 1"); e(f"s_add_u32 s3, s3, s{sHQ}"); e("s_lshl_b32 s3, s3, 9")
        e(f"s_mul_i32 s31, s{sRH}, 6"); e(f"s_add_u32 s31, s31, s{sRT0}")
        e("s_add_u32 s3, s3, s31"); e(f"s_lshl_b32 s{sOB}, s3, 10")
        e(f"s_sub_u32 s{sNV}, 128, s31")
        e("v_lshrrev_b32 v46, 4, v1"); e("v_and_b32 v47, 15, v1")
        e("v_lshlrev_b32 v48, 1, v46"); e("v_xor_b32 v48, v47, v48"); e("v_lshlrev_b32 v48, 4, v48")
        e(f"v_lshl_add_u32 v{vKE}, v46, 8, v48"); e(f"v_xor_b32 v{vKO}, 128, v{vKE}")
        e("v_and_b32 v48, 7, v47"); e("v_lshlrev_b32 v48, 1, v48"); e("v_xor_b32 v48, v46, v48"); e("v_lshlrev_b32 v48, 4, v48")
        e("v_lshl_add_u32 v48, v47, 8, v48"); e(f"v_add_u32 v48, {KR}, v48")
        for j in range(4): e(f"v_xor_b32 v{RK+j}, {64*j}, v48")
        e("v_lshrrev_b32 v48, 2, v1"); e("v_and_b32 v49, 7, v48"); e("v_lshlrev_b32 v49, 5, v49")
        e("v_lshl_add_u32 v49, v48, 8, v49"); e("v_and_b32 v50, 3, v1"); e("v_lshl_add_u32 v49, v50, 3, v49")
        for et in range(8): e(f"v_xor_b32 v{RV+et}, {32*et}, v49")
        e("v_bfe_u32 v48, v1, 2, 2"); e("v_lshl_add_u32 v49, v46, 3, v48"); e("v_lshlrev_b32 v49, 9, v49")
        e("v_lshl_add_u32 v49, v48, 6, v49"); e("v_lshl_add_u32 v49, v50, 4, v49")
        e(f"s_lshl_b32 s3, s{sHQ}, 8"); e("v_add_u32 v49, s3, v49")
        for j in range(4): e(f"v_xor_b32 v{RQ+j}, {64*j}, v49")
        e(f"s_mul_i32 s3, s{sRH}, 6144"); e("s_add_u32 s3, s3, 16384"); e(f"v_add_u32 v{RX}, s3, v{vLIN}")
        for t in range(6): e(f"v_mov_b32 v{LS+t}, 0")
        if QTS:
            e(f"s_mul_i32 s3, s{sRT0}, 5462"); e("s_lshr_b32 s3, s3, 14"); e(f"s_add_u32 s3, s3, s{S_WAVE}")
            e("s_lshl_b32 s4, s3, 4"); e("v_lshrrev_b32 v58, 2, v1"); e("v_add_u32 v58, s4, v58")
            e("v_lshrrev_b32 v59, 2, v58"); e("v_and_b32 v58, 3, v58"); e("v_lshlrev_b32 v58, 7, v58"); e("v_lshl_add_u32 v58, v59, 13, v58")
            e(f"s_lshl_b32 s4, s{sKVH}, 9"); e(f"s_add_u32 s4, s4, {QT0*32*8192}"); e("v_add_u32 v58, s4, v58")
            e("s_mul_i32 s4, s3, 24"); e("v_min_u32 v60, 23, v1"); e("v_add_u32 v60, s4, v60"); e("v_min_u32 v60, 1023, v60"); e("v_lshlrev_b32 v60, 7, v60")
            e(f"s_lshl_b32 s4, s{sKVH}, 19"); e(f"s_add_u32 s4, s4, {1536*256}"); e("v_add_u32 v60, s4, v60")
            if STAG:
                e(f"v_min_u32 v59, {16*NWT-1}, v1"); e("s_lshl_b32 s4, s2, 2"); e(f"s_add_u32 s4, s4, s{S_WAVE}"); e(f"s_mul_i32 s4, s4, {16*NWT}")
                e("v_add_u32 v59, s4, v59"); e("v_lshlrev_b32 v59, 7, v59"); e(f"v_add_u32 v59, {WT0*9216}, v59")
                e(f"s_mul_i32 s35, s2, {-(-NWT*65536//176)}"); e("s_lshr_b32 s35, s35, 16")
            else:
                e("v_lshrrev_b32 v59, 2, v0"); e("v_lshlrev_b32 v59, 7, v59"); e(f"s_lshl_b32 s4, s2, 13"); e(f"s_add_u32 s4, s4, {WT0*9216}"); e("v_add_u32 v59, s4, v59")
            if NWT: k.srd(24, P_W1, 0, SIZE['w1'])
        if OPT("jit", 4):
            e(f"s_lshl_b32 s3, s{S_SLOT}, 2"); e(f"s_add_u32 s3, s3, s{S_WAVE}"); e("s_lshl_b32 s3, s3, 7"); e("v_mov_b32 v15, s3")
            e("s_mov_b32 s94, 11264"); e("s_mov_b32 s95, 0x20000")
        e(f"s_lshl_b32 s3, s{S_SLOT}, 8"); e("v_add_u32 v19, s3, v0"); e("v_cmp_eq_u32 vcc, 0, v19"); e(f"v_mov_b32 v20, {OOB - (1<<24)}")
        e("v_cndmask_b32 v19, v20, v19, vcc"); e("v_mov_b32 v20, 1")
        e(f"s_mul_i32 s3, s{S_WAVE}, 3"); e(f"s_add_u32 s3, s3, s{sRT0}"); e("s_lshl_b32 s3, s3, 1")
        e("v_min_u32 v46, 5, v1"); e("v_add_u32 v46, s3, v46"); e("v_min_u32 v46, 255, v46")
        e(f"s_lshl_b32 s3, s{S_XCD}, 12"); e(f"s_add_u32 s3, s3, {WS_F0}"); e("v_lshlrev_b32 v46, 4, v46"); e("v_add_u32 v46, s3, v46")
    def w3_b():
        e(f"s_mul_i32 s3, s{sRT0}, 5462"); e("s_lshr_b32 s3, s3, 10")
        e("v_add_u32 v56, s3, v1"); e("v_lshrrev_b32 v57, 2, v56"); e("v_and_b32 v56, 3, v56"); e("v_lshlrev_b32 v56, 7, v56")
        e("v_lshl_add_u32 v56, v57, 13, v56"); e(f"s_lshl_b32 s3, s{sKVH}, 9"); e(f"s_add_u32 s3, s3, {64*8192}")
        k.vmem(f"buffer_load_dword v54, v56, s[{SQ}:{SQ+3}], s3 offen", "touch")
    QT = OPT("qt", 0)
    ln_phase(k, "attn", hook_a, None, hook_d)
    HP = OPT("hp", 3)
    wround = [0]
    for (st_, kind) in QTS:
        if st_ == 99 and kind == "q":
            e(f"buffer_load_dword v{vTD}, v58, s[{SQ}:{SQ+3}], 0 offen"); e(f"v_add_u32 v58, {176*8192}, v58")
        if st_ == 99 and kind == "w":
            if STAG:
                e(f"s_cmp_eq_u32 s35, {wround[0]}"); e(f"s_cselect_b32 s26, {SIZE['w1']}, 0"); wround[0] += 1
                e(f"buffer_load_dword v{vTD}, v59, s[24:27], 0 offen")
            else:
                e(f"buffer_load_dword v{vTD}, v59, s[24:27], 0 offen"); e(f"v_add_u32 v59, {11264*128}, v59")
    for n in range(EWA, HP): run_now(k, wq(n))
    k.srd(SX, P_WS, WS_XN, XN_BYTES)
    k.srd(SK, P_K, 0, SIZE['k']); k.srd(SV, P_V, 0, SIZE['v'])
    if not NWT: k.srd(SO, P_WS, WS_O, O_BYTES)
    poll(k, "attn_p0", 46, 47)
    st(k, 4)
    for n in range(2): run_now(k, xn(n))
    def qacc(t, eb): return QF + (((eb >> 1)*6 + t)*2 + (eb & 1))*4
    def QA(buf, eb): return buf*56 + 4*eb
    def QB(buf, t): return buf*56 + 32 + 4*t
    cur = [0]
    def qreads(n):
        buf = n & 1; off = (n % 5)*QS - cur[0]
        assert 0 <= off and off + QS <= 65536
        L = []
        for t in range(6):
            L.append(f"ds_read_b128 {ar(QB(buf,t),4)}, v{RX} offset:{off + 1024*t}")
        for eb in range(8):
            for h in range(2):
                L.append(f"ds_read_b64_tr_b16 {ar(QA(buf,eb)+2*h,2)}, v{RQ+(eb>>1)} offset:{off + h*2048 + (eb&1)*8}")
        return L
    def rebase(n):
        off = (n % 5)*QS - cur[0]
        if 0 <= off and off + QS <= 65536: return []
        d = off; cur[0] += d
        return [f"v_add_u32 v{r}, {d & 0xffffffff}, v{r}" for r in [RQ, RQ+1, RQ+2, RQ+3, RX]]
    k.wait(vm=[("x", 0)]); e("s_barrier")
    for t in qreads(0): e(t)
    if HP <= 2: run_now(k, wq(2))
    run_now(k, xn(2))
    k.wait(vm=[("x", 1)]); e("s_waitcnt lgkmcnt(0)"); e("s_barrier")
    st(k, 5)
    JIT2 = OPT("jit2", 1)
    def jit(g, u, lab, target, delta):
        def gp():
            e("s_getpc_b64 s[92:93]"); k.label(lab)
        g.head(u, gp)
        g.head(u + 2, f"s_add_u32 s92, s92, {k.L(target)}-{k.L(lab)}+{delta}" if target else f"s_add_u32 s92, s92, {delta}")
        g.head(u + 2, "s_addc_u32 s93, s93, 0")
        g.b.setdefault(u + 6, []).insert(0, (lambda: k.vmem(f"buffer_load_dword v{vTD}, v15, s[92:95], 0 offen", "touch")))
    def kread(b, n):
        kb, j = n >> 2, n & 3
        off = ((b//2 + 3) % 4)*16384 + ((b & 1)*2 + kb)*4096
        return lambda: k.dsop(f"ds_read_b128 {ar(FK+4*n,4)}, v{RK+j} offset:{off}", ("k", b, n))
    def vread(b, et, h):
        off = ((b//2) % 4)*16384 + (b & 1)*8192 + h*4096
        return lambda: k.dsop(f"ds_read_b64_tr_b16 {ar(FV+4*et+2*h,2)}, v{RV+et} offset:{off}", ("v", b, et))
    KVL = OPT("kvl", 0)
    if KVL:
        extra = {13: kvdma("K", 0), 14: kvdma("K", 1), 15: kvdma("V", 0), 16: kvdma("V", 1)}
    else:
        extra = {13: kvdma("K", 0), 14: kvdma("K", 1) + kvdma("K", 2), 15: kvdma("V", 0) + kvdma("K", 3),
                 16: kvdma("V", 1) + kvdma("V", 2)}
    for n in range(18):
        buf = n & 1
        g = Gaps(k); u = 0
        for eb in range(8):
            for t in range(6):
                c = vr(qacc(t, eb), 4)
                g.mfma(u, f"{MF} {c}, {ar(QA(buf,eb),4)}, {ar(QB(buf,t),4)}, {c if n else 0}"); u += 1
        ramp = {0: [("w", 3), ("x", 3), ("w", 4)], 1: [("x", 4), ("w", 5), ("x", 5)], 2: [("w", 6), ("x", 6), ("w", 7)]}
        todo = ramp.get(n, [("x", n + 4), ("w", n + 5)])
        L = []; post = []
        for (c_, m) in todo:
            if m < 18 and not (c_ == "w" and m < HP): L += wq(m) if c_ == "w" else xn(m)
        L += extra.get(n, [])
        for (st_, kind) in QTS:
            if st_ != n: continue
            if kind == "q":
                L.append(([], (lambda: k.vmem(f"buffer_load_dword v{vTD}, v58, s[{SQ}:{SQ+3}], 0 offen", "touch"))))
                post.append(f"v_add_u32 v58, {176*8192}, v58")
            elif kind == "w":
                hs_ = []
                if STAG:
                    hs_ = [f"s_cmp_eq_u32 s35, {wround[0]}", f"s_cselect_b32 s26, {SIZE['w1']}, 0"]; wround[0] += 1
                else: post.append(f"v_add_u32 v59, {11264*128}, v59")
                L.append((hs_, (lambda: k.vmem(f"buffer_load_dword v{vTD}, v59, s[24:27], 0 offen", "touch"))))
            else:
                srd = SK if kind == "k" else SV
                L.append(([], (lambda srd=srd: k.vmem(f"buffer_load_dword v{vTD}, v60, s[{srd}:{srd+3}], 0 offen", "touch"))))
        nd = sum(1 for hs, b in L if b)
        sp = max(3, min(6, 44 // max(nd, 1)))
        dg = [3 + sp*i for i in range(nd)]
        assert not dg or dg[-1] <= 45, (n, dg)
        place(g, L, dg)
        for t_ in post: g.body(47, t_)
        if JIT2 and n in (4, 12): jit(g, 36, f"jq{n}", None, 2048)
        rg = [x for x in range(48) if x not in dg]
        if n < 17:
            for i, t in enumerate(qreads(n + 1)): g.body(rg[i], t)
            if n < 16:
                for i, t in enumerate(rebase(n + 2)): g.body(rg[22 + i], t)
        if n < 16:
            g.head(46, (lambda n=n: (k.wait(vm=[("x", n + 2), ("w", n + 2)]), e("s_waitcnt lgkmcnt(0)"))))
            g.head(47, "s_barrier")
        elif n == 16:
            g.head(46, (lambda: (k.wait(vm=[("K", 0)]), e("s_waitcnt lgkmcnt(0)"))))
            g.head(47, "s_barrier")
        else:
            for i in range(4): g.body(2*i, kread(0, i))
            late = []
            for j in range(4):
                for t in range(6):
                    src = QF + (j*6 + t)*8; dst = QF + (j*6 + t)*4
                    for p in range(4):
                        u_ = 10 + 12*j + 2*t + p//2
                        ins = f"v_cvt_pk_bf16_f32 v{dst+p}, v{src+2*p}, v{src+2*p+1}"
                        if u_ < 48: g.body(u_, ins)
                        else: late.append((u_ - 48, ins))
            hs = [f"s_mov_b32 s{SQ}, s{P_W2}", f"s_mov_b32 s{SQ+1}, s{P_W2+1}", f"s_mov_b32 s{SQ+2}, {SIZE['w2']}",
                  f"s_add_u32 s{SX}, s{P_W1}, {R2*9216}", f"s_addc_u32 s{SX+1}, s{P_W1+1}, 0", f"s_mov_b32 s{SX+2}, {SIZE['w1'] - R2*9216}",
                  f"s_mul_i32 s4, s2, {4*OPT('pfl', 16)*128}"]
            if NWT: hs += [f"s_add_u32 s{SO}, s{P_WS}, {WS_O}", f"s_addc_u32 s{SO+1}, s{P_WS+1}, 0", f"s_mov_b32 s{SO+2}, {O_BYTES}"]
            for i, h in enumerate(hs): g.head(i, h)
            sh = {64: 0, 32: 1, 16: 2}[OPT('pfl', 16)]
            g.body(7, f"v_lshrrev_b32 v{vPF}, {sh}, v0"); g.body(8, f"v_lshlrev_b32 v{vPF}, 7, v{vPF}"); g.body(9, f"v_add_u32 v{vPF}, s4, v{vPF}")
            g.head(47, (lambda: k.wait(lg=[("k", 0, 0)])))
        g.emit(0, 48)
    st(k, 6)
    def Q(t, j): return QF + (j*6 + t)*4
    def S(b, t): return SS + (b & 1)*48 + t*8
    def O(t, et): return ((t*4 + (et >> 1))*2 + (et & 1))*4
    g = Gaps(k)
    U0 = 44
    for b in range(16):
        base = 96*b
        for n in range(8):
            kb, j = n >> 2, n & 3
            for t in range(6):
                d = vr(S(b, t) + 4*kb, 4)
                c = d if j else (vr(NM + 4*t, 4) if b else "0")
                g.mfma(base + 6*n + t, f"{MF} {d}, {ar(FK+4*n,4)}, {vr(Q(t,j),4)}, {c}")
            g.head(base + 6*n - 1, (lambda b=b, n=n: k.wait(lg=[("k", b, n)])))
            if b == 0 and n >= 4: g.body(10 + 2*(n - 4), kread(b, n))
            elif b > 0: g.body(base + 4*n - 13, kread(b, n))
        pb = base + 96 + 48
        for et in range(8):
            for t in range(6):
                d = ar(O(t, et), 4)
                g.mfma(pb + 6*et + t, f"{MF} {d}, {ar(FV+4*et,4)}, {vr(S(b,t),4)}, {d if b else 0}")
            g.head(pb + 6*et - 1, (lambda b=b, et=et: k.wait(lg=[("v", b, et)])))
            for h in range(2): g.body(base + 96 + 4*(8 + 2*et + h) - 13, vread(b, et, h))
    for b in range(16):
        base = 96*b + U0
        for t in range(6):
            s = S(b, t)
            for r in range(8):
                m = 8*t + r
                ue, ua = base + 2*m, base + 2*m + 1
                if b == 0: ue, ua = max(ue, 48), max(ua, 48)
                g.body(ue, f"v_exp_f32 v{s+r}, v{s+r}")
                g.body(ua, f"v_add_f32 v{LS+t}, v{LS+t}, v{s+r}")
        for t in range(6):
            s = S(b, t)
            for c in range(4):
                g.body(base + 5 + 4*(4*t + c), f"v_cvt_pk_bf16_f32 v{s+c}, v{s+2*c}, v{s+2*c+1}")
    for s in range(7):
        ub = 96*(2*s + 2) + 95
        need = [("V", s + 1)] + ([("K", s + 2)] if s + 2 < 8 else [])
        g.head(ub - 1, (lambda need=need: k.wait(vm=need)))
        g.head(ub - 1, "s_barrier")
        if s + 4 < 8:
            L = kvdma("K", s + 4) + kvdma("V", s + 4)
            for i, (hs, bd) in enumerate(L):
                uu = ub + 1 + 8*i
                for h in hs: g.head(uu, h)
                if bd: g.b.setdefault(uu, []).insert(0, bd)
    LN_ = OPT("pfl", 16)
    RL = 704*LN_
    seq = []
    for (srd, nl, ptr, size) in [(SX, (2048 - R2)*72, None, 0)] + ([(SQ, 18432, None, -1)] if W2C else []) + [(SX, 36864, P_WO, SIZE['wo']), (SX, 18432, P_X, SIZE['x']), (SQ, 147456, None, 0)]:
        for r in range(-(-nl // RL)): seq.append((srd, r, ptr if r == 0 else None, size))
    pp = OPTS("pfpos", "")
    if pp: pos = [int(x) for x in pp.split(",")]
    elif LN_ == 64: pos = [60] + [96*p + 2 for p in (2, 4, 5, 6, 8, 10, 12)]
    else:
        p0, p1 = 60, 96*OPT("pfend", 14)
        pos = [2*((p0 + (p1 - p0)*i//(len(seq) - 1))//2) for i in range(len(seq))]
    assert len(pos) == len(seq), (len(pos), len(seq))
    cur_r = 0
    for (srd, r, ptr, size), p in zip(seq, pos):
        if OPT("nopf", 0): break
        if r != cur_r:
            g.body(p - 6, f"v_add_u32 v{vPF}, {((r - cur_r)*RL*128) & 0xffffffff}, v{vPF}"); cur_r = r
        if ptr:
            for q, h in enumerate([f"s_mov_b32 s{SX}, s{ptr}", f"s_mov_b32 s{SX+1}, s{ptr+1}", f"s_mov_b32 s{SX+2}, {size}"]):
                g.head(p - 14 + 2*q, h)
            lastx = p
        va = vPF
        if size == -1:
            va = 15
            for q, h in enumerate([f"s_lshr_b32 s4, s{P_W2}, 7", "s_sub_u32 s4, 3, s4", "s_and_b32 s4, s4, 7", "s_lshl_b32 s4, s4, 7"]):
                g.head(p - 14 + 2*q, h)
            g.body(p - 4, f"v_lshl_add_u32 v15, v{vPF}, 3, s4")
        g.b.setdefault(p, []).insert(0, (lambda srd=srd, va=va: k.vmem(f"buffer_load_dword v{vTD}, v{va}, s[{srd}:{srd+3}], 0 offen", "touch")))
    assert max(p for (sd, r, pt, sz), p in zip(seq, pos) if sd == SX) < 96*OPT("rankper", 9) + 50
    if OPT("jit", 4):
        JP = OPT("jit", 4)
        for p in range(1, 15, JP): jit(g, 96*p + 16, f"j{p}", None, 3072)
        if JIT2:
            jit(g, 96*14 + 16, "jp2a", "phase2", 0); jit(g, 96*14 + 64, "jp2b", "phase2", 11264)
    if DYN:
        pr = OPT("rankper", 9)
        for q, h in enumerate([f"s_mov_b32 s{SX}, s{P_DBG}", f"s_mov_b32 s{SX+1}, s{P_DBG+1}", f"s_mov_b32 s{SX+2}, 256"]):
            g.head(96*pr + 50 + 2*q, h)
        g.b.setdefault(96*pr + 94, []).insert(0, (lambda: k.vmem(f"buffer_atomic_add v20, v19, s[{SX}:{SX+3}], 0 offen sc0 sc1", "tk")))
        g.head(96*(pr+2) + 60, (lambda: k.wait(vm=["tk"])))
        g.body(96*(pr+2) + 60, "v_and_b32 v20, 7, v20")
        g.body(96*(pr+2) + 62, f"v_add_u32 v20, s{S_TAG}, v20")
        g.head(96*(pr+2) + 62, f"s_lshl_b32 s3, s{S_XCD}, 7")
        g.b.setdefault(96*(pr+2) + 66, []).insert(0, (lambda: k.vmem(f"buffer_store_dword v20, v19, s[{SF}:{SF+3}], s3 offen offset:{WS_R} sc1", "rk")))
    for (u_, ins) in late: g.body(u_, ins)
    place(g, kvdma("K", 2) if KVL else kvdma("V", 3), [11, 15, 19, 21], 0)
    if KVL:
        for i, (hs, bd) in enumerate(kvdma("K", 3) + kvdma("V", 2) + kvdma("V", 3)):
            uu = 96 + 10*i
            for h in hs: g.head(uu, h)
            if bd: g.b.setdefault(uu, []).insert(0, bd)
    mx = []
    for t in range(6): mx.append(f"v_max3_f32 v{NM+4*t}, v{S(0,t)}, v{S(0,t)+1}, v{S(0,t)+2}")
    for t in range(6): mx.append(f"v_max_f32 v{NM+4*t}, v{NM+4*t}, v{S(0,t)+3}")
    for sw in ["v_permlane32_swap_b32", "v_permlane16_swap_b32"]:
        for t in range(6): mx.append(f"v_mov_b32 v{NM+4*t+1}, v{NM+4*t}")
        for t in range(6): mx.append(f"{sw} v{NM+4*t}, v{NM+4*t+1}")
        for t in range(6): mx.append(f"v_max_f32 v{NM+4*t}, v{NM+4*t}, v{NM+4*t+1}")
    for t in range(6):
        for r in (1, 2, 3, 0): mx.append(f"v_mul_f32 v{NM+4*t+r}, -1.0, v{NM+4*t}")
    for i, ins in enumerate(mx): g.body(min(25 + i//2, 47), ins)
    g.head(44, (lambda: k.wait(vm=[("K", 1), ("V", 0)]))); g.head(44, "s_barrier")
    g.emit(0, 48)
    for t in range(6):
        s = S(0, t)
        for r in range(0, 8, 2): e(f"v_pk_add_f32 {vr(s+r,2)}, {vr(s+r,2)}, {vr(NM+4*t,2)}")
    items = []
    for u_ in range(48, 96):
        items += g.h.get(u_, []) + g.b.get(u_, [])
    for i in range(len(items) - 1):
        pass
    pend = []
    for it in items:
        if isinstance(it, str) and it.startswith("v_exp"):
            g._do(it)
            for q in pend: g._do(q)
            pend = []
        else: pend.append(it)
    for q in pend: g._do(q)
    TB = 96*15 + 48
    if OPT("cyc", 0): st(k, 1)
    g.emit(96, TB)
    if OPT("cyc", 0): st(k, 2)
    def cost(it):
        if callable(it): return 1
        return 2 if it.startswith(("v_exp", "v_rcp")) else 1
    def fill(mf, queue, ldsq=None):
        for m in mf:
            if callable(m): m()
            else: e(m)
            n = 2
            if ldsq:
                ldsq.pop(0)(); n = 1
            while queue and n >= cost(queue[0]):
                it = queue.pop(0); n -= cost(it); e(it)
            if queue and n == 2:
                e(queue.pop(0))
    def soft15(t, skip=0):
        s = S(15, t); q = []
        for r in range(8):
            if r >= skip: q.append(f"v_exp_f32 v{s+r}, v{s+r}")
            if r >= 1 and r - 1 >= skip: q.append(f"v_add_f32 v{LS+t}, v{LS+t}, v{s+r-1}")
            if r >= 2 and r % 2 == 0: q.append(f"v_cvt_pk_bf16_f32 v{s+r//2-1}, v{s+r-2}, v{s+r-1}")
        q.append(f"v_add_f32 v{LS+t}, v{LS+t}, v{s+7}")
        q.append(f"v_cvt_pk_bf16_f32 v{s+3}, v{s+6}, v{s+7}")
        return q
    def lred(t):
        m = NM + 4*t
        return [f"v_cmp_nge_f32 vcc, {fhex(THR)}, v{LS+t}", f"v_mov_b32 v{m+1}, v{LS+t}", f"v_mov_b32 v{m}, v{LS+t}",
                f"v_permlane32_swap_b32 v{m}, v{m+1}", f"v_add_f32 v{m}, v{m}, v{m+1}", f"v_mov_b32 v{m+1}, v{m}",
                f"v_permlane16_swap_b32 v{m}, v{m+1}", f"v_add_f32 v{m}, v{m}, v{m+1}", f"v_rcp_f32 v{m}, v{m}"]
    def v15read(et, h):
        off = 3*16384 + 8192 + h*4096
        return lambda: k.dsop(f"ds_read_b64_tr_b16 {ar(FK+4*et+2*h,2)}, v{RV+et} offset:{off}", ("v", 15, et))
    ldsq = [vread(14, et, h) for et in range(4, 8) for h in range(2)] + [v15read(et, h) for et in range(8) for h in range(2)]
    mf = []
    for et in range(4):
        for t in range(6):
            d = ar(O(t, et), 4)
            ins = f"{MF} {d}, {ar(FV+4*et,4)}, {vr(S(14,t),4)}, {d}"
            if t == 5 and et < 3: mf.append(lambda ins=ins, et=et: (e(ins), k.wait(lg=[("v", 14, et + 1)])))
            else: mf.append(ins)
    queue = soft15(0, skip=2)
    half = len(mf)//2
    for i, m in enumerate(mf):
        if callable(m): m()
        else: e(m)
        ldsq.pop(0)()
        if queue: e(queue.pop(0))
    for it in queue: e(it)
    e("s_waitcnt lgkmcnt(0)"); k.lg = []
    st(k, 7)
    for t in range(6):
        if t >= 2:
            e(f"s_cmp_le_u32 s{sNV}, {t}"); e(f"s_cbranch_scc1 {k.L('attn_done')}")
        mf = []
        for et in range(4, 8):
            d = ar(O(t, et), 4); mf.append(f"{MF} {d}, {ar(FV+4*et,4)}, {vr(S(14,t),4)}, {d}")
        for et in range(8):
            d = ar(O(t, et), 4); mf.append(f"{MF} {d}, {ar(FK+4*et,4)}, {vr(S(15,t),4)}, {d}")
        lr = lred(t); sm = soft15(t + 1) if t < 5 else []
        queue = []
        while lr or sm:
            if lr: queue.append(lr.pop(0))
            for _ in range(2):
                if sm: queue.append(sm.pop(0))
        fill(mf, queue)
        for it in queue: e(it)
        e(f"s_cbranch_vccnz {k.L('slow')}")
        for j in range(4):
            T = S(14 + (j & 1), t)
            for r in range(8): e(f"v_accvgpr_read_b32 v{T+r}, a{O(t,2*j)+r}")
            for r in range(0, 8, 2): e(f"v_pk_mul_f32 {vr(T+r,2)}, {vr(T+r,2)}, {vr(NM+4*t,2)} op_sel_hi:[1,0]")
            for p in range(4): e(f"v_cvt_pk_bf16_f32 v{T+p}, v{T+2*p}, v{T+2*p+1}")
            e(f"s_add_u32 s3, s{sOB}, {j*131072 + t*1024}")
            k.vmem(f"buffer_store_dwordx4 {vr(T,4)}, v{vLIN}, s[{SO}:{SO+3}], s3 offen sc1")
    k.label("attn_done")
    st(k, 8)
    def slow():
        k.label("slow")
        e("s_nop 15")
        e(f"s_sub_u32 s5, s{sOKV}, s{sW4}")
        e("v_and_b32 v2, 15, v1"); e("v_lshrrev_b32 v3, 4, v1"); e("v_lshlrev_b32 v3, 4, v3"); e("v_lshl_add_u32 v2, v2, 8, v3")
        e("v_add_u32 v3, 4096, v2")
        e(f"s_lshl_b32 s6, s{S_WAVE}, 13"); e("s_add_u32 s6, s6, 65536")
        for et in range(8): e(f"v_add_u32 v{RV+et}, s6, v{RV+et}")
        for t in range(6): e(f"v_mov_b32 v{NM+4*t}, 0xff800000")
        def kloads():
            for n in range(8):
                e(f"buffer_load_dwordx4 {ar(FK+4*n,4)}, v{2+(n>>2)}, s[{SK}:{SK+3}], s3 offen offset:{64*(n&3)}")
        def qk(first):
            for n in range(8):
                kb, j = n >> 2, n & 3
                for t in range(6):
                    d = vr(S(0, t) + 4*kb, 4)
                    e(f"{MF} {d}, {ar(FK+4*n,4)}, {vr(Q(t,j),4)}, {d if j else first(t)}")
            e("s_nop 15")
        e("s_mov_b32 s3, s5"); e("s_mov_b32 s4, 16")
        k.label("slow1")
        kloads(); e("s_waitcnt vmcnt(0)")
        qk(lambda t: "0")
        for t in range(6):
            for r in range(0, 8, 2): e(f"v_max3_f32 v{NM+4*t}, v{NM+4*t}, v{S(0,t)+r}, v{S(0,t)+r+1}")
        e("s_add_u32 s3, s3, 8192"); e("s_sub_u32 s4, s4, 1"); e("s_cmp_lg_u32 s4, 0"); e(f"s_cbranch_scc1 {k.L('slow1')}")
        for sw in ["v_permlane32_swap_b32", "v_permlane16_swap_b32"]:
            for t in range(6): e(f"v_mov_b32 v{NM+4*t+1}, v{NM+4*t}")
            for t in range(6): e(f"{sw} v{NM+4*t}, v{NM+4*t+1}")
            for t in range(6): e(f"v_max_f32 v{NM+4*t}, v{NM+4*t}, v{NM+4*t+1}")
        for t in range(6):
            for r in (1, 2, 3, 0): e(f"v_mul_f32 v{NM+4*t+r}, -1.0, v{NM+4*t}")
            e(f"v_mov_b32 v{LS+t}, 0")
        for r in range(192): e(f"v_accvgpr_write_b32 a{r}, 0")
        e("s_mov_b32 s3, s5"); e("s_mov_b32 s4, 16")
        k.label("slow2")
        kloads()
        for i in range(8):
            if i % 4 == 0:
                e(f"s_add_u32 m0, s6, {(i>>2)*4096}"); e(f"s_add_u32 s7, s3, {(i>>2)*4096}")
            e(f"buffer_load_dwordx4 v{vKE if i % 2 == 0 else vKO}, s[{SV}:{SV+3}], s7 offen offset:{1024*(i&3)} lds")
        e("s_waitcnt vmcnt(0)")
        for et in range(8):
            for h in range(2): e(f"ds_read_b64_tr_b16 {ar(FV+4*et+2*h,2)}, v{RV+et} offset:{h*4096}")
        qk(lambda t: vr(NM + 4*t, 4))
        for t in range(6):
            s_ = S(0, t)
            for r in range(8): e(f"v_exp_f32 v{s_+r}, v{s_+r}")
            for r in range(8): e(f"v_add_f32 v{LS+t}, v{LS+t}, v{s_+r}")
            for c in range(4): e(f"v_cvt_pk_bf16_f32 v{s_+c}, v{s_+2*c}, v{s_+2*c+1}")
        e("s_waitcnt lgkmcnt(0)")
        for et in range(8):
            for t in range(6):
                d = ar(O(t, et), 4)
                e(f"{MF} {d}, {ar(FV+4*et,4)}, {vr(S(0,t),4)}, {d}")
        e("s_add_u32 s3, s3, 8192"); e("s_sub_u32 s4, s4, 1"); e("s_cmp_lg_u32 s4, 0"); e(f"s_cbranch_scc1 {k.L('slow2')}")
        e("s_nop 15")
        for sw in ["v_permlane32_swap_b32", "v_permlane16_swap_b32"]:
            for t in range(6): e(f"v_mov_b32 v{NM+t}, v{LS+t}")
            for t in range(6): e(f"{sw} v{LS+t}, v{NM+t}")
            for t in range(6): e(f"v_add_f32 v{LS+t}, v{LS+t}, v{NM+t}")
        for t in range(6): e(f"v_rcp_f32 v{NM+2*t}, v{LS+t}")
        for t in range(6):
            if t >= 2:
                e(f"s_cmp_le_u32 s{sNV}, {t}"); e(f"s_cbranch_scc1 {k.L('attn_done')}")
            for j in range(4):
                T = SS + ((t*4 + j) % 8)*8
                for r in range(8): e(f"v_accvgpr_read_b32 v{T+r}, a{O(t,2*j)+r}")
                for r in range(0, 8, 2): e(f"v_pk_mul_f32 {vr(T+r,2)}, {vr(T+r,2)}, {vr(NM+2*t,2)} op_sel_hi:[1,0]")
                for p in range(4): e(f"v_cvt_pk_bf16_f32 v{T+p}, v{T+2*p}, v{T+2*p+1}")
                e(f"s_add_u32 s3, s{sOB}, {j*131072 + t*1024}")
                e(f"buffer_store_dwordx4 {vr(T,4)}, v{vLIN}, s[{SO}:{SO+3}], s3 offen sc1")
        e(f"s_branch {k.L('attn_done')}")
    return slow

ACC2 = 112
def acc2(db, sb): return ACC2 + (sb >> 1)*72 + db*8 + (sb & 1)*4
S_ROLE, S_SB, S_DB, S_RH, S_KP, S_TILE = 29, 30, 31, 32, 33, 34
SA, SB_, SP, SX2, SO2 = 8, 12, 16, 20, 24
sOA, sOB2, sM0A, sM0B, sCNT2, sWRP = 68, 69, 70, 71, 72, 73
sPST, sPLD, sFST, sFLD, sXO, sOWN = 75, 76, 77, 78, 35, 79
vL2 = 4
XA, vXW, vXR = 30, 32, 33

def epi_setup(k):
    e = k.e
    k.srd(SX2, P_X, 0, SIZE['x']); k.srd(SO2, P_OUT, 0, SIZE['out'])
    e(f"s_lshl_b32 s3, s{S_RH}, 1"); e(f"s_add_u32 s3, s3, s{S_KP}")
    e(f"s_cmp_eq_u32 s3, s{S_ROLE}"); e(f"s_cselect_b32 s{sOWN}, 1, 0")
    e(f"s_lshl_b32 s5, s{S_TILE}, 2"); e("s_add_u32 s3, s3, s5")
    e("s_lshl_b32 s4, s3, 7"); e(f"s_lshl_b32 s6, s{S_ROLE}, 2"); e(f"s_add_u32 s{sFST}, s4, s6"); e(f"s_add_u32 s{sFST}, s{sFST}, {WS_F}")
    e("s_lshl_b32 s3, s3, 2"); e(f"s_add_u32 s3, s3, s{S_ROLE}"); e(f"s_mul_i32 s{sPST}, s3, 9216")
    e(f"s_add_u32 s5, s5, s{S_ROLE}"); e(f"s_lshl_b32 s{sFLD}, s5, 7"); e(f"s_add_u32 s{sFLD}, s{sFLD}, {WS_F}"); e(f"s_mul_i32 s5, s5, {4*9216}")
    e(f"s_lshl_b32 s3, s{S_WAVE}, 10"); e(f"s_add_u32 s{sPLD}, s5, s3")
    e(f"s_lshl_b32 s3, s{S_SB}, 2"); e(f"s_add_u32 s3, s3, s{S_ROLE}"); e(f"s_mul_i32 s3, s3, {32*1152}")
    e(f"s_mul_i32 s4, s{S_DB}, 288"); e("s_add_u32 s3, s3, s4"); e(f"s_lshl_b32 s4, s{S_WAVE}, 5"); e(f"s_add_u32 s{sXO}, s3, s4")
    e("v_and_b32 v34, 15, v1"); e("v_mul_u32_u24 v34, 1152, v34"); e("v_lshrrev_b32 v35, 4, v1")
    e(f"v_lshl_add_u32 v{XA}, v35, 3, v34"); e(f"v_add_u32 v{XA+1}, {16*1152}, v{XA}")
    e(f"s_mul_i32 s3, s{S_WAVE}, 18432"); e(f"v_add_u32 v{vXW}, s3, v{vL2}")
    e(f"s_xor_b32 s4, s{S_WAVE}, 2"); e(f"s_mul_i32 s3, s4, 18432"); e(f"v_add_u32 v{vXR}, s3, v{vL2}")

def mainloop2(k, role):
    e = k.e
    isA = role == "A"
    vD, vP, RS, RP = 5, 10, 12, 14
    k.label("role" + role)
    k.vm = ["own"]; k.lg = []
    NK = 64 if isA else 72
    UNEV = isA and OPT("unev", 0)
    N0 = 2 if UNEV else 0
    e(f"s_and_b32 s6, s{S_ROLE}, 1")
    if UNEV:
        e("s_mul_i32 s3, s6, 68"); e(f"s_sub_u32 s{sCNT2}, 8, s6")
    else:
        e(f"s_mul_i32 s3, s6, {NK}"); e(f"s_mov_b32 s{sCNT2}, {NK//8 - 1}")
    e(f"s_add_u32 s3, s3, s{S_KP}")
    PROG = (not isA) and OPT("prog", 0)
    if PROG:
        e("s_cmp_eq_u32 s6, 0"); e("s_cselect_b32 s4, 24, 0"); e("s_add_u32 s3, s3, s4")
        e("s_cmp_eq_u32 s6, 0"); e(f"s_cselect_b32 s{sWRP}, 3, -1")
    e(f"s_mul_i32 s{sM0A}, s{S_KP}, 10240"); e(f"s_mul_i32 s4, s{S_RH}, 5120"); e(f"s_add_u32 s{sM0A}, s{sM0A}, s4")
    if isA:
        k.srd(SA, P_WO, 0, SIZE['wo']); k.srd(SB_, P_WS, WS_O, O_BYTES)
        e(f"s_mul_i32 s{sOA}, s3, {32*1152}"); e(f"s_mul_i32 s4, s{S_RH}, {16*1152}"); e(f"s_add_u32 s{sOA}, s{sOA}, s4")
        e(f"s_mul_i32 s4, s{S_DB}, 288"); e(f"s_add_u32 s{sOA}, s{sOA}, s4")
        for i in range(5):
            e(f"v_add_u32 v34, {64*i}, v1")
            e("v_mul_u32_u24 v35, 3641, v34"); e("v_lshrrev_b32 v35, 16, v35")
            e(f"v_mul_u32_u24 v35, {1152-288}, v35"); e(f"v_lshl_add_u32 v{vD+i}, v{1 if i < 4 else 34}, 4, v35")
        e(f"v_mov_b32 v36, {OOB - (1<<24)}"); e("v_cmp_gt_u32 vcc, 32, v1"); e(f"v_cndmask_b32 v{vD+4}, v36, v{vD+4}, vcc")
        stepA = 64*1152
        e(f"s_lshl_b32 s4, s3, 7"); e(f"s_lshl_b32 s5, s{S_SB}, 3"); e("s_add_u32 s4, s4, s5")
        e(f"s_lshl_b32 s5, s{S_RH}, 2"); e("s_add_u32 s4, s4, s5"); e(f"s_lshl_b32 s{sOB2}, s4, 10")
        stepB = 2*128*1024
    else:
        k.srd(SA, P_WS, WS_U, U_BYTES); k.srd(SB_, P_W2, 0, SIZE['w2'])
        e("s_mul_i32 s4, s3, 36"); e(f"s_mul_i32 s5, s{S_DB}, 9"); e("s_add_u32 s4, s4, s5")
        e(f"s_mul_i32 s5, s{S_RH}, 5"); e("s_add_u32 s4, s4, s5"); e(f"s_lshl_b32 s{sOA}, s4, 10")
        stepA = 2*36*1024
        if W2C:
            e(f"s_lshl_b32 s4, s6, 9"); e(f"s_add_u32 s4, s4, {WS_F1 + 248*128}")
            e(f"s_add_u32 s40, s{P_WS}, s4"); e(f"s_addc_u32 s41, s{P_WS+1}, 0")
            for i in range(4): e(f"s_load_dword s{[42,43,38,39][i]}, s[40:41], {128*i}")
            e(f"s_lshl_b32 s4, s{S_SB}, 1"); e(f"s_add_u32 s4, s4, s{S_RH}")
            e(f"s_lshr_b32 s5, s{P_W2}, 7"); e("s_add_u32 s5, s5, s4"); e("s_and_b32 s5, s5, 7"); e("s_xor_b32 s5, s5, 3")
            e("s_waitcnt lgkmcnt(0)")
            for r_ in (42, 43, 38, 39):
                e(f"s_xor_b32 s{r_}, s{r_}, s{S_TAG}"); e(f"s_or_b32 s5, s5, s{r_}")
            e(f"s_add_u32 s40, s{P_WS}, {WS_C}"); e(f"s_addc_u32 s41, s{P_WS+1}, 0")
            e("s_lshr_b32 s7, s4, 3"); e(f"s_mul_i32 s7, s7, {4608*128}"); e("s_lshl_b32 s4, s4, 7")
            e("s_cmp_eq_u32 s5, 0")
            e("s_cselect_b32 s74, 7, 12"); e("s_cselect_b32 s4, s7, s4")
            e(f"s_cselect_b32 s{SB_}, s40, s{SB_}"); e(f"s_cselect_b32 s{SB_+1}, s41, s{SB_+1}"); e(f"s_cselect_b32 s{SB_+2}, {C_BYTES}, s{SB_+2}")
            e("s_add_u32 s5, s74, 5"); e(f"s_lshl_b32 s{sOB2}, s3, s5"); e(f"s_add_u32 s{sOB2}, s{sOB2}, s4")
            e("s_lshl_b32 s94, 16, s74"); e("s_sub_u32 s94, s94, 2048"); e("s_lshl_b32 s95, 64, s74"); e("s_sub_u32 s95, s95, s94")
            e("v_lshrrev_b32 v34, 3, v1"); e("v_and_b32 v35, 6, v34"); e("v_and_b32 v36, 7, v1"); e("v_xor_b32 v35, v35, v36")
            e("v_lshlrev_b32 v35, 4, v35"); e(f"v_lshl_add_u32 v{vP}, v34, s74, v35")
            e("s_lshl_b32 s4, 8, s74"); e("s_sub_u32 s4, s4, 1024"); e(f"v_add_u32 v{vP+1}, s4, v{vP}")
        else:
            e(f"s_lshl_b32 s{sOB2}, s3, 17"); e(f"s_lshl_b32 s4, s{S_SB}, 8"); e(f"s_add_u32 s{sOB2}, s{sOB2}, s4")
            e(f"s_lshl_b32 s4, s{S_RH}, 7"); e(f"s_add_u32 s{sOB2}, s{sOB2}, s4")
            e("v_lshrrev_b32 v34, 3, v1"); e("v_and_b32 v35, 6, v34"); e("v_and_b32 v36, 7, v1"); e("v_xor_b32 v35, v35, v36")
            e("v_lshlrev_b32 v35, 4, v35"); e(f"v_lshl_add_u32 v{vP}, v34, 12, v35")
            e(f"v_add_u32 v{vP+1}, {8*4096-1024}, v{vP}")
        stepB = 64*4096
        e(f"s_lshl_b32 s{sM0B}, s{S_WAVE}, 12"); e(f"s_add_u32 s{sM0B}, s{sM0B}, 81920")
    if OPT("l2only", 0): stepA = stepB = 0
    WSC = SC if OPT("wsc", 0) else ""
    def FA(buf, db): return buf*36 + 4*db
    def FB(n, sb): return 72 + (n % (4 if isA else 2))*16 + 4*sb
    def dmaA(n):
        slot = (n % 4)*20480
        L = [([f"s_add_u32 m0, s{sM0A}, {slot}"], None)]
        for i in range(5):
            if isA: v = vD + i
            else: v = vL2 if i < 4 else vD + 1
            hs = [f"s_add_u32 m0, s{sM0A}, {slot+4096}"] if i == 4 else []
            fl = WSC if isA else SC
            L.append((hs, (lambda v=v, i=i: k.vmem(f"buffer_load_dwordx4 v{v}, s[{SA}:{SA+3}], s{sOA} offen offset:{1024*(i&3)}{fl} lds", ("A", n)))))
        L.append(([f"s_add_u32 s{sOA}, s{sOA}, {stepA}"], None))
        return L
    def dmaB(n):
        L = []
        if isA:
            for sb in range(4):
                L.append(([], (lambda sb=sb: k.vmem(f"buffer_load_dwordx4 {ar(FB(n,sb),4)}, v{vP+(sb>>1)}, s[{SB_}:{SB_+3}], s{sOB2} offen offset:{1024*(sb&1)}{SC}", ("B", n)))))
            L.append(([f"s_add_u32 s{sOB2}, s{sOB2}, {stepB}"], None))
        else:
            slot = (n % 4)*16384
            L.append(([f"s_add_u32 m0, s{sM0B}, {slot}"], None))
            for i in range(4):
                hs = [f"s_add_u32 s{sOB2}, s{sOB2}, {'s94' if W2C else 16*4096-2048}"] if i == 2 else []
                L.append((hs, (lambda i=i: k.vmem(f"buffer_load_dwordx4 v{vP+(i&1)}, s[{SB_}:{SB_+3}], s{sOB2} offen offset:{1024*i}{SC if W2C else WSC} lds", ("B", n)))))
            L.append(([f"s_add_u32 s{sOB2}, s{sOB2}, {'s95' if W2C else (stepB-(16*4096-2048)) & 0xffffffff}"], None))
        return L
    def reads(n):
        buf = n & 1; sl = n % 4
        r = RS + (1 if sl == 3 else 0); off = 0 if sl == 3 else sl*20480
        L = []
        if isA:
            for db in range(9):
                for h in range(2):
                    L.append(f"ds_read_b64_tr_b16 {ar(FA(buf,db)+2*h,2)}, v{r} offset:{off + db*32 + h*5120}")
        else:
            for sb in range(4):
                for h in range(2):
                    L.append(f"ds_read_b64_tr_b16 {ar(FB(n,sb)+2*h,2)}, v{RP+sb} offset:{sl*16384 + h*2048}")
            for db in range(9):
                L.append(f"ds_read_b128 {ar(FA(buf,db),4)}, v{r} offset:{off + db*1024}")
        return L
    W = dmaA if isA else dmaB
    e("s_barrier")
    run_now(k, W(N0))
    if isA:
        e(f"s_lshl_b32 s4, s{S_KP}, 11"); e(f"v_add_u32 v{vP}, s4, v{vL2}"); e(f"v_xor_b32 v{vP+1}, 2048, v{vP}")
        e("v_lshrrev_b32 v34, 2, v1"); e("v_mul_u32_u24 v34, 288, v34"); e("v_and_b32 v35, 3, v1"); e("v_lshl_add_u32 v34, v35, 3, v34")
        e(f"s_mul_i32 s4, s{S_KP}, 10240"); e(f"v_add_u32 v{RS}, s4, v34"); e(f"v_add_u32 v{RS+1}, 61440, v{RS}")
        e(f"s_lshl_b32 s3, s{S_SB}, 7"); e(f"s_lshl_b32 s4, s{S_RH}, 6"); e("s_add_u32 s3, s3, s4")
        e("v_bfe_u32 v34, v1, 4, 1"); e("v_mul_u32_u24 v34, 63, v34"); e("v_add_u32 v34, s3, v34")
        e("v_mul_u32_u24 v34, 1366, v34"); e("v_lshrrev_b32 v34, 18, v34")
        e("v_and_b32 v36, 15, v1"); e(f"v_min_u32 v36, {8 if UNEV else 7}, v36"); e("s_lshl_b32 s3, s6, 3"); e("v_add_u32 v36, s3, v36"); e("v_min_u32 v36, 15, v36")
        e("v_and_b32 v35, 1, v36"); e("v_mad_u32_u24 v34, v35, 11, v34")
        e("v_lshrrev_b32 v35, 1, v36"); e("v_lshl_add_u32 v34, v34, 3, v35")
    else:
        e(f"s_mov_b32 s5, {OOB - (1<<24)}"); e(f"s_cmp_eq_u32 s{S_RH}, 0"); e(f"s_cselect_b32 s4, 4096, s5"); e(f"v_add_u32 v{vD+1}, s4, v{vL2}")
        e(f"s_mul_i32 s4, s{S_KP}, 10240"); e(f"v_add_u32 v{RS}, s4, v{vL2}"); e(f"v_add_u32 v{RS+1}, 61440, v{RS}")
        e("v_lshrrev_b32 v34, 2, v1"); e("v_bfe_u32 v35, v34, 1, 2"); e(f"s_lshl_b32 s4, s{S_KP}, 1"); e("v_xor_b32 v35, s4, v35")
        e("v_lshlrev_b32 v35, 5, v35"); e("v_lshl_add_u32 v35, v34, 7, v35"); e("v_and_b32 v36, 3, v1"); e("v_lshl_add_u32 v35, v36, 3, v35")
        e(f"v_add_u32 v35, s{sM0B}, v35")
        for sb in range(4): e(f"v_xor_b32 v{RP+sb}, {32*sb}, v35")
        k.srd(SP, P_B2, 0, SIZE['b2'])
        e(f"s_lshl_b32 s4, s{S_KP}, 2"); e(f"s_or_b32 s4, s4, s{S_ROLE}"); e("s_cmp_eq_u32 s4, 2"); e(f"s_cselect_b32 s{SP+2}, s{SP+2}, 0")
        e(f"s_lshl_b32 s4, s{S_SB}, 8"); e(f"s_lshl_b32 s5, s{S_RH}, 7"); e("s_add_u32 s4, s4, s5")
        e("v_and_b32 v28, 15, v1"); e("v_lshlrev_b32 v28, 1, v28")
        for sb in range(4):
            k.vmem(f"buffer_load_ushort v{24+sb}, v28, s[{SP}:{SP+3}], s4 offen offset:{32*sb}", "b2")
        e(f"s_mul_i32 s3, s{S_DB}, 144"); e("v_bfe_u32 v34, v1, 4, 1"); e("v_mul_u32_u24 v34, 143, v34"); e("v_add_u32 v34, s3, v34")
        e("v_mul_u32_u24 v34, 1366, v34"); e("v_lshrrev_b32 v34, 18, v34")
        e("v_and_b32 v35, 15, v1"); e("v_min_u32 v35, 11, v35")
        if PROG:
            e("s_xor_b32 s3, s6, 1"); e("s_lshl_b32 s3, s3, 1"); e("v_lshrrev_b32 v36, 1, v35"); e("v_cmp_eq_u32 s[92:93], s3, v36")
        e("v_mul_u32_u24 v36, 43, v35"); e("v_lshrrev_b32 v36, 7, v36")
        e("v_mul_u32_u24 v37, 3, v36"); e("v_sub_u32 v35, v35, v37")
        e("v_mad_u32_u24 v34, v35, 3, v34"); e("v_add_u32 v34, 22, v34"); e("v_lshl_add_u32 v34, v34, 3, v36")
        e(f"s_lshl_b32 s3, s6, 2"); e("v_add_u32 v34, s3, v34")
    e("v_lshlrev_b32 v38, 7, v34"); e(f"v_add_u32 v38, {WS_F1}, v38")
    PRE = (not isA) and OPT("pre", 0)
    if PRE:
        k.vmem(f"buffer_load_dword v37, v38, s[{SF}:{SF+3}], 0 offen sc1", "fl")
    epi_setup(k)
    k.wait(vm=["own"])
    publish(k, "role" + role)
    st(k, 0)
    if isA:
        run_now(k, W(N0 + 1)); run_now(k, W(N0 + 2)); run_now(k, W(N0 + 3))
        for r in range(0, 144, 2): e(f"v_pk_mov_b32 {vr(ACC2+r,2)}, 0, 0")
    else:
        if not PRE: run_now(k, W(1)); run_now(k, W(2))
        if OPT("fine", 0): st(k, 3)
        e(f"s_waitcnt vmcnt({1 if PRE else 8})")
        if OPT("fine", 0): st(k, 4)
        for sb in range(4): e(f"v_lshlrev_b32 v{40+2*sb}, 16, v{24+sb}")
        for db in range(9):
            for sb in range(4):
                for r in range(0, 4, 2): e(f"v_pk_mov_b32 {vr(acc2(db,sb)+r,2)}, {vr(40+2*sb,2)}, {vr(40+2*sb,2)}")
    if OPT("fine", 0): e("s_waitcnt vmcnt(0)"); st(k, 5)
    poll(k, "p1" + role, 38, 37, "s[92:93]" if PROG else None, pre=PRE, slp=OPT("slp1", 1))
    st(k, 1)
    if isA:
        for n in range(3): run_now(k, dmaB(N0 + n))
    else:
        run_now(k, dmaA(0))
        if PRE: run_now(k, W(1))
        run_now(k, dmaA(1))
    k.srd(SP, P_WS, WS_P, P_BYTES)
    if not isA: k.wait(vm=[("A", 0)])
    e("s_barrier")
    for t in reads(N0): e(t)
    if not isA:
        if PRE: run_now(k, W(2))
        run_now(k, dmaA(2)); run_now(k, dmaB(3)); run_now(k, dmaA(3))
    k.wait(vm=[("B", N0 + 1) if isA else ("A", 1)]); e("s_waitcnt lgkmcnt(0)"); e("s_barrier")
    st(k, 2)
    if OPT("jit3", 1):
        e("s_getpc_b64 s[92:93]"); k.label("j3" + role)
        e(f"s_add_u32 s92, s92, {k.L('tail'+role)}-{k.L('j3'+role)}"); e("s_addc_u32 s93, s93, 0"); e("s_mov_b32 s94, 16384"); e("s_mov_b32 s95, 0x20000")
        e("s_lshr_b32 s3, s2, 3"); e("s_lshl_b32 s3, s3, 2"); e(f"s_add_u32 s3, s3, s{S_WAVE}"); e("s_lshl_b32 s3, s3, 7"); e("v_mov_b32 v36, s3")
    if UNEV: e(f"s_branch {k.L('loopmid')}")
    DB = 3 if isA else 4
    e(".p2align 6")
    k.label(f"loop{role}")
    body0 = len(k.lines)
    for n in range(4):
        buf = n & 1
        if UNEV and n == 2: k.label("loopmid")
        g = Gaps(k); u = 0
        for db in range(9):
            for sb in range(4):
                c = vr(acc2(db, sb), 4)
                g.mfma(u, f"{MF} {c}, {ar(FA(buf,db),4)}, {ar(FB(n,sb),4)}, {c}"); u += 1
        L = dmaB(n + DB) + dmaA(n + 4)
        dg = [2 + 4*i for i in range(9)]
        place(g, L, dg)
        rg = [x for x in range(36) if x not in dg]
        for i, t in enumerate(reads(n + 1)): g.body(rg[i], t)
        if n == 3: g.head(28, f"s_sub_u32 s{sCNT2}, s{sCNT2}, 1")
        if n == 0 and OPT("jit3", 1): g.body(32, "buffer_load_dword v37, v36, s[92:95], 0 offen")
        if PROG and n == 3:
            g.head(29, f"s_cmp_eq_u32 s{sCNT2}, s{sWRP}"); g.head(29, f"s_cselect_b32 s4, {36*stepB}, 0"); g.head(30, f"s_cselect_b32 s5, {36*stepA}, 0")
            g.head(32, f"s_sub_u32 s{sOB2}, s{sOB2}, s4"); g.head(35, f"s_sub_u32 s{sOA}, s{sOA}, s5")
        if PROG and n < 2:
            g.head(35, f"s_cmp_eq_u32 s{sCNT2}, {NK//8 - 1}"); g.head(35, f"s_cbranch_scc1 {k.L('chk'+str(n))}")
            g.head(35, (lambda n=n: k.label("ret" + str(n))))
        g.head(35, "s_waitcnt vmcnt(18) lgkmcnt(0)")
        g.head(35, "s_barrier")
        if n == 3:
            g.head(35, f"s_cmp_lg_u32 s{sCNT2}, 0")
            g.head(35, f"s_cbranch_scc1 {k.L('loop'+role)}")
        g.emit(0, 36)
    k.loops.append((body0, len(k.lines)))
    if not OPT("fine", 0): st(k, 3)
    k.label("tail" + role)
    k.vm = [("B", DB - 2)]*4 + [("A", 2)]*5 + [("B", DB - 1)]*4 + [("A", 3)]*5; k.lg = []
    TA = lambda m, db: [0, 36, 136, 172][m] + 4*db
    TB_ = lambda m, sb: 72 + 16*m + 4*sb
    def treads(m):
        r = RS + (1 if m == 3 else 0); off = 0 if m == 3 else m*20480
        L = []
        def fb(sb):
            for h in range(2):
                L.append((f"ds_read_b64_tr_b16 {ar(TB_(m,sb)+2*h,2)}, v{RP+sb} offset:{m*16384 + h*2048}", ("t", m, 0 if sb >= 2 else 9)))
        if not isA: fb(2); fb(3)
        for db in range(9):
            if isA:
                for h in range(2): L.append((f"ds_read_b64_tr_b16 {ar(TA(m,db)+2*h,2)}, v{r} offset:{off + db*32 + h*5120}", ("t", m, db)))
            else: L.append((f"ds_read_b128 {ar(TA(m,db),4)}, v{r} offset:{off + db*1024}", ("t", m, db)))
        if not isA: fb(0); fb(1)
        return L
    g = Gaps(k); u = 0
    for m in range(4):
        for db in range(9):
            if m: g.head(u - 1, (lambda m=m, db=db: k.wait(lg=[("t", m, db)], vm=[("B", 3)] if (isA and m == 3 and db == 0) else ())))
            for sb in (2, 3):
                c = vr(acc2(db, sb), 4)
                g.mfma(u, f"{MF} {c}, {ar(TA(m,db),4)}, {ar(TB_(m,sb),4)}, {c}"); u += 1
        if m < 3:
            for i, (t, tag) in enumerate(treads(m + 1)): g.body(18*m + i, (lambda t=t, tag=tag: k.dsop(t, tag)))
        if m < 2:
            g.head(18*m + 16, (lambda m=m: k.wait(vm=[("A", m + 2)]))); g.head(18*m + 16, "s_barrier")
    if isA:
        for i, (hs, b) in enumerate(dmaB(3)[:4]): g.body(1 + 4*i, b)
    for db in range(9):
        for m in range(4):
            for sb in (0, 1):
                c = vr(acc2(db, sb), 4)
                g.mfma(u, f"{MF} {c}, {ar(TA(m,db),4)}, {ar(TB_(m,sb),4)}, {c}"); u += 1
    W0, WS_ = OPT("xw0", 62), OPT("xws", 10)
    def drain():
        e("s_waitcnt lgkmcnt(0)"); k.lg = []
    g.head(W0, drain); g.head(W0, "s_barrier")
    wp = [W0 + 1 + (i*WS_)//3 for i in range(18)]
    for i in range(18): g.body(wp[i], f"ds_write_b128 v{vXW}, {vr(ACC2+72+4*i,4)} offset:{1024*i}")
    xp = [x for x in range(74, 120, 2) if x not in wp and x - 1 not in wp][:6]
    for j in range(3):
        for sb in range(2):
            g.body(xp[2*j + sb], f"buffer_load_dwordx2 {vr(18+4*j+2*sb,2)}, v{XA+sb}, s[{SX2}:{SX2+3}], s{sXO} offen offset:{128*j}")
    R0_ = wp[-1] + 4
    g.head(R0_, "s_waitcnt lgkmcnt(0)"); g.head(R0_, "s_barrier")
    for i in range(18): g.body(min(R0_ + 1 + i, 143), f"ds_read_b128 {vr(40+4*i,4)}, v{vXR} offset:{1024*i}")
    if OPT("fine2", 0):
        g.head(W0 + 1, lambda: st(k, 0)); g.head(R0_ + 1, lambda: st(k, 1))
    g.emit(0, 144)
    if OPT("fine2", 0): st(k, 2)
    k.vm = []; k.lg = []
    if isA: e(f"s_branch {k.L('epi')}")

def phase2(k):
    e = k.e
    k.label("phase2")
    st_save(k, 9, 0)
    if DYN:
        e("s_and_b32 s3, s2, 7"); e("s_lshl_b32 s3, s3, 7"); e(f"s_add_u32 s3, s3, {WS_R}")
        e("s_cmp_ge_u32 s2, 248"); e(f"s_cbranch_scc1 {k.L('rk_poll')}")
        e(f"s_load_dword s5, s[{P_WS}:{P_WS+1}], s3")
        e("s_waitcnt lgkmcnt(0)")
        e(f"s_sub_u32 s5, s5, s{S_TAG}"); e("s_cmp_lt_u32 s5, 8"); e(f"s_cbranch_scc1 {k.L('rk_ok')}")
        k.label("rk_poll")
        e("v_mov_b32 v34, s3"); e("s_mov_b32 s7, 0x80000")
        k.label("rk_loop")
        e(f"buffer_load_dword v35, v34, s[{SF}:{SF+3}], 0 offen sc1")
        e("s_waitcnt vmcnt(0)")
        e("v_readfirstlane_b32 s5, v35")
        e(f"s_sub_u32 s5, s5, s{S_TAG}"); e("s_cmp_lt_u32 s5, 8"); e(f"s_cbranch_scc1 {k.L('rk_ok')}")
        e("s_sleep 8"); e("s_sub_u32 s7, s7, 1"); e("s_cmp_lg_u32 s7, 0"); e(f"s_cbranch_scc1 {k.L('rk_loop')}")
        k.label("rk_ok")
        e("s_and_b32 s5, s5, 7"); e("s_xor_b32 s5, s5, 4")
        if STAMPS: e("v_writelane_b32 v39, s5, 16")
    else:
        e("s_and_b32 s5, s2, 7")
        if STAMPS: e("v_writelane_b32 v39, s5, 16")
    e(f"s_lshr_b32 s{S_ROLE}, s5, 1")
    e("s_and_b32 s3, s5, 1"); e("s_lshl_b32 s3, s3, 3"); e("s_lshr_b32 s4, s2, 5"); e(f"s_add_u32 s{S_SB}, s3, s4")
    e(f"s_bfe_u32 s{S_DB}, s2, 0x20003")
    e(f"s_lshl_b32 s{S_TILE}, s{S_SB}, 2"); e(f"s_add_u32 s{S_TILE}, s{S_TILE}, s{S_DB}")
    e(f"s_and_b32 s{S_RH}, s{S_WAVE}, 1"); e(f"s_lshr_b32 s{S_KP}, s{S_WAVE}, 1")
    e(f"v_lshlrev_b32 v{vL2}, 4, v1")
    e(f"s_cmp_ge_u32 s{S_ROLE}, 2"); e(f"s_cbranch_scc1 {k.L('roleB')}")
    mainloop2(k, "A")
    mainloop2(k, "B")
    k.label("epi")
    T, X, OWNL = 40, 18, 73728
    e(f"v_add_u32 v{vXW}, {OWNL}, v{vL2}")
    def reduce(own):
        k.lg = [("r", i) for i in range(18)]
        for db in range(9):
            k.wait(lg=[("r", 2*db + 1)])
            a = ACC2 + 8*db; t = T + 8*db
            for r in range(0, 8, 2): e(f"v_pk_add_f32 {vr(a+r,2)}, {vr(a+r,2)}, {vr(t+r,2)}")
            for p in range(4): e(f"v_cvt_pk_bf16_f32 v{a+p}, v{a+2*p}, v{a+2*p+1}")
            if own:
                k.dsop(f"ds_write_b128 v{vXW}, {vr(a,4)} offset:{1024*db}", "w")
            else:
                if db % 4 == 0 and db: e(f"s_add_u32 s{sPST}, s{sPST}, 4096")
                e(f"buffer_store_dwordx4 {vr(a,4)}, v{vL2}, s[{SP}:{SP+3}], s{sPST} offen offset:{1024*(db&3)} sc1")
    e(f"s_cmp_eq_u32 s{sOWN}, 1"); e(f"s_cbranch_scc1 {k.L('own')}")
    reduce(False)
    e(f"v_mov_b32 v8, s{S_TAG}"); e("v_mov_b32 v9, 0")
    if OPT("fine2", 0): st(k, 5)
    e("s_barrier")
    e("s_waitcnt vmcnt(0)")
    e("s_mov_b64 exec, 1")
    e(f"buffer_store_dword v8, v9, s[{SF}:{SF+3}], s{sFST} offen sc1")
    e("s_mov_b64 exec, -1")
    e(f"s_branch {k.L('pub')}")
    k.label("own")
    reduce(True)
    e("s_waitcnt lgkmcnt(0)"); e("s_barrier")
    k.label("pub")
    if not OPT("fine", 0): st(k, 4)
    k.lg = []
    OW = 184
    e(f"s_lshl_b32 s3, s{S_WAVE}, 10"); e(f"v_add_u32 v{vXW}, s3, v{vXW}")
    for j in range(3): e(f"ds_read_b128 {vr(OW+4*j,4)}, v{vXW} offset:{4096*j}")
    e("s_mov_b32 s4, 0xffff0000")
    e(f"v_mov_b32 v12, {fhex(-LOG2E)}"); e("v_mov_b32 v14, 1.0")
    e("v_and_b32 v10, 3, v1"); e(f"v_cmp_ne_u32 s[62:63], s{S_ROLE}, v10"); e("v_lshlrev_b32 v10, 2, v10"); e(f"v_add_u32 v10, s{sFLD}, v10")
    for i, x in enumerate((1, 2, 3)):
        e(f"s_xor_b32 s3, s{S_ROLE}, {x}"); e("s_mul_i32 s3, s3, 9216"); e(f"s_add_u32 s{68+i}, s3, s{sPLD}")
    def PR(j, i): return 128 + 12*j + 4*i
    PP = OPT("pp", 1)
    if PP:
        e(f"s_lshl_b32 s6, 1, s{S_ROLE}"); e("s_xor_b32 s6, s6, 15"); e("s_mov_b32 s7, 0x80000")
        e(f"v_add_u32 v16, 4096, v{vL2}"); e(f"s_cmp_eq_u32 s{S_WAVE}, 0"); e(f"s_cselect_b32 s3, 0, {OOB - (1<<26)}"); e("s_add_u32 s3, s3, 8192"); e(f"v_add_u32 v17, s3, v{vL2}")
        k.label("p2")
        e(f"buffer_load_dword v11, v10, s[{SF}:{SF+3}], 0 offen sc1")
        e("s_waitcnt vmcnt(0)")
        e(f"v_cmp_eq_u32 vcc, s{S_TAG}, v11")
        e("s_and_b32 s5, vcc_lo, s6")
        e(f"s_cbranch_scc0 {k.L('p2_none')}")
        e("s_xor_b32 s6, s6, s5")
        for i, x in enumerate((1, 2, 3)):
            e(f"s_xor_b32 s3, s{S_ROLE}, {x}"); e("s_bitcmp1_b32 s5, s3"); e(f"s_cbranch_scc0 {k.L('p2_s'+str(i))}")
            for j in range(3):
                e(f"buffer_load_dwordx4 {vr(PR(j,i),4)}, v{[vL2,16,17][j]}, s[{SP}:{SP+3}], s{68+i} offen sc1")
            k.label("p2_s" + str(i))
        e("s_cmp_eq_u32 s6, 0"); e(f"s_cbranch_scc1 {k.L('p2_ok')}")
        k.label("p2_none")
        e("s_sub_u32 s7, s7, 1"); e("s_cmp_lg_u32 s7, 0"); e(f"s_cbranch_scc1 {k.L('p2')}")
        k.label("p2_ok")
    else:
        poll(k, "p2", 10, 11, "s[62:63]")
    if not OPT("fine", 0) and not OPT("fine2", 0): st(k, 5)
    def ploads(j):
        for i in range(3):
            so = f"s{68+i}"
            if j:
                e(f"s_add_u32 s3, s{68+i}, {j*4096}"); so = "s3"
            k.vmem(f"buffer_load_dwordx4 {vr(PR(j,i),4)}, v{vL2}, s[{SP}:{SP+3}], {so} offen sc1", ("p", j))
    def unpack(dst, src):
        for p in range(4):
            e(f"v_lshlrev_b32 v{dst+2*p}, 16, v{src+p}"); e(f"v_and_b32 v{dst+2*p+1}, s4, v{src+p}")
    def padd(d, a, b):
        for r in range(0, 8, 2): e(f"v_pk_add_f32 {vr(d+r,2)}, {vr(a+r,2)}, {vr(b+r,2)}")
    def fin(j, isB):
        Y, U1, U2, U3 = 40 + 32*(j & 1), 48 + 32*(j & 1), 56 + 32*(j & 1), 64 + 32*(j & 1)
        mine = (OW + 4*j, PR(j, 0)); other = (PR(j, 1), PR(j, 2))
        ys, ss = (mine, other) if isB else (other, mine)
        unpack(Y, ys[0]); unpack(U1, ys[1]); padd(Y, Y, U1)
        for r in range(0, 8, 2): e(f"v_pk_mul_f32 {vr(U1+r,2)}, {vr(Y+r,2)}, v[12:13] op_sel_hi:[1,0]")
        for r in range(8): e(f"v_exp_f32 v{U1+r}, v{U1+r}")
        unpack(U2, ss[0]); unpack(U3, ss[1]); padd(U2, U2, U3)
        for r in range(0, 8, 2): e(f"v_pk_add_f32 {vr(U1+r,2)}, {vr(U1+r,2)}, v[14:15] op_sel_hi:[1,0]")
        for r in range(8): e(f"v_rcp_f32 v{U1+r}, v{U1+r}")
        unpack(U3, X + 4*j)
        for r in range(0, 8, 2): e(f"v_pk_mul_f32 {vr(Y+r,2)}, {vr(Y+r,2)}, {vr(U1+r,2)}")
        for r in range(0, 8, 2): e(f"v_pk_fma_f32 {vr(Y+r,2)}, {vr(Y+r,2)}, {vr(U2+r,2)}, {vr(U3+r,2)}")
        for p in range(4): e(f"v_cvt_pk_bf16_f32 v{Y+p}, v{Y+2*p}, v{Y+2*p+1}")
        for sb in range(2):
            k.vmem(f"buffer_store_dwordx2 {vr(Y+2*sb,2)}, v{XA+sb}, s[{SO2}:{SO2+3}], s{sXO} offen offset:{128*j}", "st")
    if not PP:
        e(f"s_cmp_lg_u32 s{S_WAVE}, 0"); e(f"s_cbranch_scc1 {k.L('no3')}")
        ploads(2)
        k.label("no3")
        k.vm = []
        ploads(0); ploads(1)
    e("s_waitcnt lgkmcnt(0)")
    e(f"s_cmp_ge_u32 s{S_ROLE}, 2"); e(f"s_cbranch_scc1 {k.L('finB')}")
    for isB in (False, True):
        if isB: k.label("finB")
        k.vm = [("p", 0), ("p", 1), ("p", 2)] if PP else [("p", 0)]*3 + [("p", 1)]*3
        k.wait(vm=[("p", 0)]); fin(0, isB)
        k.wait(vm=[("p", 1)]); fin(1, isB)
        e(f"s_cmp_lg_u32 s{S_WAVE}, 0"); e(f"s_cbranch_scc1 {k.L('fin')}")
        k.wait(vm=[("p", 2)]); fin(2, isB)
        if not isB: e(f"s_branch {k.L('fin')}")
    k.label("fin")
    if STAMPS:
        e("s_waitcnt vmcnt(0)"); st(k, 6); st_save(k, 7, 9); st_flush(k)
    if OPTS("probe", ""):
        i, j, cls = [int(x) for x in OPTS("probe", "").split(",")]
        e("s_nop 1"); e(f"v_readlane_b32 s3, v39, {i}"); e(f"v_readlane_b32 s4, v39, {j}"); e("s_nop 3")
        e("s_sub_u32 s3, s4, s3"); e("s_lshl_b32 s3, s3, 3"); e("s_min_u32 s3, s3, 100000")
        if cls == 0: e("s_cmp_lt_u32 s2, 176"); e("s_cselect_b32 s3, s3, 0")
        if cls == 1: e("s_sub_u32 s4, s2, 176"); e("s_cmp_lt_u32 s4, 72"); e("s_cselect_b32 s3, s3, 0")
        e("s_memrealtime s[4:5]"); e("s_waitcnt lgkmcnt(0)")
        k.label("spinp")
        e("s_memrealtime s[6:7]"); e("s_waitcnt lgkmcnt(0)")
        e("s_sub_u32 s6, s6, s4"); e("s_cmp_lt_u32 s6, s3"); e(f"s_cbranch_scc1 {k.L('spinp')}")
    if OPT("spin", 0):
        e("s_waitcnt vmcnt(0)"); e("s_memrealtime s[4:5]"); e("s_waitcnt lgkmcnt(0)")
        e("s_sub_u32 s3, s4, s98"); e(f"s_mul_i32 s3, s3, {OPT('spin', 0)}"); e("s_lshr_b32 s3, s3, 2"); e("s_min_u32 s3, s3, 100000")
        k.label("spin")
        e("s_memrealtime s[6:7]"); e("s_waitcnt lgkmcnt(0)")
        e("s_sub_u32 s6, s6, s4"); e("s_cmp_lt_u32 s6, s3"); e(f"s_cbranch_scc1 {k.L('spin')}")
    e("s_endpgm")

def fused():
    k = EK("fused_kernel", 256, 256, 163840, vgpr=512, sgpr=102, accum=256)
    k.loops = []
    e = k.e
    e("s_cmp_ge_u32 s2, 256"); e(f"s_cbranch_scc1 {k.L('exit')}")
    if OPT("spin", 0): e("s_memrealtime s[98:99]")
    st(k, 0)
    e("s_load_dwordx16 s[36:51], s[0:1], 0")
    e("s_load_dwordx8 s[52:59], s[0:1], 64")
    e("s_load_dwordx2 s[60:61], s[0:1], 96")
    e(f"s_and_b32 s{S_XCD}, s2, 7"); e(f"s_lshr_b32 s{S_SLOT}, s2, 3")
    e("v_lshrrev_b32 v1, 6, v0"); e("s_nop 0"); e(f"v_readfirstlane_b32 s{S_WAVE}, v1")
    e("v_and_b32 v1, 63, v0")
    touch_code(k, "entry", 40, 2)
    e("v_and_b32 v176, 7, v1"); e("v_lshrrev_b32 v177, 3, v1")
    e("s_lshl_b32 s3, s2, 3"); e("v_add_u32 v178, s3, v176"); e("v_mul_u32_u24 v178, 1152, v178")
    e("v_lshl_add_u32 v170, v177, 4, v178")
    e(f"s_mul_i32 s3, s{S_WAVE}, 384"); e("v_add_u32 v170, s3, v170")
    e(f"s_cmp_eq_u32 s{S_WAVE}, 3"); e(f"s_cselect_b32 s14, 0, {SIZE['x']}"); e("s_mov_b32 s15, 0x20000")
    e("s_waitcnt lgkmcnt(0)")
    e(f"s_mov_b32 s12, s{P_X}"); e(f"s_mov_b32 s13, s{P_X+1}")
    for i in range(3):
        e(f"buffer_load_dwordx4 {vr(100+4*i,4)}, v170, s[12:15], 0 offen offset:{128*i}{XNT}")
    e(f"s_cmp_ge_u32 s{S_SLOT}, 31"); e(f"s_cbranch_scc1 {k.L('spare')}")
    e(f"s_cmp_ge_u32 s{S_SLOT}, 22"); e(f"s_cbranch_scc1 {k.L('mlp1')}")
    slow = attn(k)
    if ZD:
        import phase2z
        phase2z.phase2(k)
    else: phase2(k)
    k.label("exit"); e("s_endpgm")
    if OPT("prog", 0) and not ZD:
        k.label("chk0")
        e(f"buffer_load_dword v37, v38, s[{SF}:{SF+3}], 0 offen sc1")
        e(f"s_branch {k.L('ret0')}")
        k.label("chk1")
        e("s_waitcnt vmcnt(9)")
        e(f"v_cmp_ne_u32 vcc, s{S_TAG}, v37")
        e(f"s_cbranch_vccz {k.L('ret1')}")
        poll(k, "p1x", 38, 37)
        e(f"s_branch {k.L('ret1')}")
    e(".p2align 6"); mlp1(k)
    e(".p2align 6"); spare(k)
    k.label("end")
    slow()
    return k
```

```python
from common import *
from k1 import Gaps, MF
import fused as F
from fused import P_X, P_WO, P_W2, P_B2, P_OUT, P_WS, S_WAVE, S_TAG, SF, OOB, SC, st, st_save, st_flush, run_now, place, publish

ACC = 112
def acc(db, sb): return ACC + (sb >> 1)*72 + db*8 + (sb & 1)*4
S_Q, S_SB, S_DB, S_RH, S_KP, S_TILE = 29, 30, 31, 32, 33, 34
SU, SW2, SP, SWO, SO_ = 8, 12, 16, 20, 24
sOU, sOW2, sOWO, sOO, sM0S, sM0P = 68, 69, 70, 71, 72, 73
sPST, sPLD, sFST, sXO, sOWN = 75, 76, 77, 35, 79
vL = 4
vU5, vW2, RSB, RP = 5, 6, 8, 10
vWO, vO, RSA = 14, 19, 21
XA, vXW, vXR, vPB, vPA, vPT, vF2, vOWN = 23, 25, 26, 27, 28, 29, 30, 31
ABASE = 81920
PA_OFF = 64*16*9216

def chk(k, name, vaddr, level, mask=None):
    e = k.e
    e(f"s_add_u32 s3, s{S_TAG}, {level}")
    e("s_mov_b32 s7, 0x80000")
    k.label(name)
    e(f"v_subrev_u32 v{vPT}, s3, v{vPT}")
    e(f"v_cmp_lt_u32 vcc, {3-level}, v{vPT}")
    if mask: e(f"s_and_b64 vcc, vcc, {mask}")
    e(f"s_cbranch_vccz {k.L(name+'_ok')}")
    e("s_sleep 1")
    e(f"buffer_load_dword v{vPT}, v{vaddr}, s[{SF}:{SF+3}], 0 offen sc1")
    e("s_waitcnt vmcnt(0)")
    e("s_sub_u32 s7, s7, 1"); e("s_cmp_lg_u32 s7, 0"); e(f"s_cbranch_scc1 {k.L(name)}")
    k.label(name + "_ok")

def phase2(k):
    e = k.e
    k.label("phase2")
    st_save(k, 9, 0)
    k.vm = ["own"]; k.lg = []
    e(f"s_bfe_u32 s{S_Q}, s2, 0x20001")
    e("s_and_b32 s3, s2, 1"); e("s_lshl_b32 s3, s3, 3"); e("s_lshr_b32 s4, s2, 5"); e(f"s_add_u32 s{S_SB}, s3, s4")
    e(f"s_bfe_u32 s{S_DB}, s2, 0x20003")
    e(f"s_and_b32 s{S_RH}, s{S_WAVE}, 1"); e(f"s_lshr_b32 s{S_KP}, s{S_WAVE}, 1")
    e(f"v_lshlrev_b32 v{vL}, 4, v1")
    e(f"s_mul_i32 s3, s{S_DB}, 144"); e("v_bfe_u32 v34, v1, 3, 1"); e("v_mul_u32_u24 v34, 143, v34"); e("v_add_u32 v34, s3, v34")
    e("v_mul_u32_u24 v34, 1366, v34"); e("v_lshrrev_b32 v34, 18, v34")
    e("v_and_b32 v35, 7, v1"); e("v_min_u32 v35, 5, v35"); e("v_mul_u32_u24 v36, 43, v35"); e("v_lshrrev_b32 v36, 7, v36")
    e("v_mul_u32_u24 v37, 3, v36"); e("v_sub_u32 v35, v35, v37")
    e("v_mad_u32_u24 v34, v35, 3, v34"); e("v_add_u32 v34, 22, v34"); e("v_lshl_add_u32 v34, v34, 3, v36")
    e(f"s_lshl_b32 s3, s{S_Q}, 1"); e("v_add_u32 v34, s3, v34")
    e(f"v_lshlrev_b32 v{vPB}, 7, v34"); e(f"v_add_u32 v{vPB}, {WS_F1}, v{vPB}")
    k.vmem(f"buffer_load_dword v{vPT}, v{vPB}, s[{SF}:{SF+3}], 0 offen sc1", "fl")
    CT = OPT("ct", 1)
    if CT:
        e("s_getpc_b64 s[40:41]"); e("s_mov_b32 s42, 65536"); e("s_mov_b32 s43, 0x20000")
        e("s_lshr_b32 s3, s2, 3"); e("s_lshl_b32 s3, s3, 9"); e(f"s_lshl_b32 s4, s{S_WAVE}, 7"); e("s_add_u32 s3, s3, s4"); e("v_mov_b32 v38, s3")
        k.vmem("buffer_load_dword v37, v38, s[40:43], 0 offen", "ct")
        e("v_add_u32 v38, 16384, v38")
    k.srd(SW2, P_W2, 0, SIZE['w2'])
    e(f"s_mul_i32 s5, s{S_Q}, 36"); e(f"s_mul_i32 s3, s{S_KP}, 3"); e("s_add_u32 s5, s5, s3")
    e(f"s_lshl_b32 s{sOW2}, s5, 17"); e(f"s_lshl_b32 s4, s{S_SB}, 8"); e(f"s_add_u32 s{sOW2}, s{sOW2}, s4")
    e(f"s_lshl_b32 s4, s{S_RH}, 7"); e(f"s_add_u32 s{sOW2}, s{sOW2}, s4")
    e("v_lshrrev_b32 v34, 3, v1"); e("v_and_b32 v35, 6, v34"); e("v_and_b32 v36, 7, v1"); e("v_xor_b32 v35, v35, v36")
    e("v_lshlrev_b32 v35, 4, v35"); e(f"v_lshl_add_u32 v{vW2}, v34, 12, v35"); e(f"v_add_u32 v{vW2+1}, {8*4096-1024}, v{vW2}")
    e(f"s_lshl_b32 s{sM0P}, s{S_WAVE}, 12"); e(f"s_add_u32 s{sM0P}, s{sM0P}, 81920")
    e(f"s_mul_i32 s{sM0S}, s{S_KP}, 10240"); e(f"s_mul_i32 s4, s{S_RH}, 5120"); e(f"s_add_u32 s{sM0S}, s{sM0S}, s4")
    def dks(n): return 6 if n % 6 != 5 else -29
    def w2(n):
        L = [([f"s_add_u32 m0, s{sM0P}, {(n % 4)*16384}"], None)]
        for i in range(4):
            hs = [f"s_add_u32 s{sOW2}, s{sOW2}, {16*4096-2048}"] if i == 2 else []
            L.append((hs, (lambda i=i: k.vmem(f"buffer_load_dwordx4 v{vW2+(i&1)}, s[{SW2}:{SW2+3}], s{sOW2} offen offset:{1024*i} lds", ("W", n)))))
        L.append(([f"s_add_u32 s{sOW2}, s{sOW2}, {(dks(n)*131072-(16*4096-2048)) & 0xffffffff}"], None))
        return L
    def uu(n):
        slot = (n % 4)*20480
        L = [([f"s_add_u32 m0, s{sM0S}, {slot}"], None)]
        for i in range(5):
            hs = [f"s_add_u32 m0, s{sM0S}, {slot+4096}"] if i == 4 else []
            L.append((hs, (lambda i=i: k.vmem(f"buffer_load_dwordx4 v{vL if i < 4 else vU5}, s[{SU}:{SU+3}], s{sOU} offen offset:{1024*(i&3)}{SC} lds", ("U", n)))))
        L.append(([f"s_add_u32 s{sOU}, s{sOU}, {(dks(n)*36*1024) & 0xffffffff}"], None))
        return L
    def wo(n):
        slot = ABASE + (n % 4)*20480
        L = [([f"s_add_u32 m0, s{sM0S}, {slot}"], None)]
        for i in range(5):
            hs = [f"s_add_u32 m0, s{sM0S}, {slot+4096}"] if i == 4 else []
            L.append((hs, (lambda i=i: k.vmem(f"buffer_load_dwordx4 v{vWO+i}, s[{SWO}:{SWO+3}], s{sOWO} offen offset:{1024*(i&3)} lds", ("WO", n)))))
        L.append(([f"s_add_u32 s{sOWO}, s{sOWO}, {64*1152}"], None))
        return L
    def OF(n, sb): return 192 + ((n + 1) % 4)*16 + 4*sb
    def oo(n):
        L = []
        for sb in range(4):
            L.append(([], (lambda sb=sb: k.vmem(f"buffer_load_dwordx4 {ar(OF(n,sb),4)}, v{vO+(sb>>1)}, s[{SO_}:{SO_+3}], s{sOO} offen offset:{1024*(sb&1)}{SC}", ("O", n)))))
        L.append(([f"s_add_u32 s{sOO}, s{sOO}, {2*128*1024}"], None))
        return L
    e("s_barrier")
    run_now(k, w2(0))
    k.srd(SP, P_B2, 0, SIZE['b2'])
    e(f"s_or_b32 s4, s{S_KP}, s{S_Q}"); e("s_cmp_eq_u32 s4, 0"); e(f"s_cselect_b32 s{SP+2}, s{SP+2}, 0")
    e(f"s_lshl_b32 s4, s{S_SB}, 8"); e(f"s_lshl_b32 s3, s{S_RH}, 7"); e("s_add_u32 s4, s4, s3")
    e("v_and_b32 v34, 15, v1"); e("v_lshlrev_b32 v34, 1, v34")
    for sb in range(4):
        k.vmem(f"buffer_load_ushort v{40+2*sb}, v34, s[{SP}:{SP+3}], s4 offen offset:{32*sb}", "b2")
    k.srd(SU, P_WS, WS_U, U_BYTES)
    e("s_mul_i32 s4, s5, 36"); e(f"s_mul_i32 s3, s{S_DB}, 9"); e("s_add_u32 s4, s4, s3")
    e(f"s_mul_i32 s3, s{S_RH}, 5"); e("s_add_u32 s4, s4, s3"); e(f"s_lshl_b32 s{sOU}, s4, 10")
    e(f"s_mov_b32 s3, {OOB - (1<<24)}"); e(f"s_cmp_eq_u32 s{S_RH}, 0"); e(f"s_cselect_b32 s4, 4096, s3"); e(f"v_add_u32 v{vU5}, s4, v{vL}")
    e(f"s_mul_i32 s4, s{S_KP}, 10240"); e(f"v_add_u32 v{RSB}, s4, v{vL}"); e(f"v_add_u32 v{RSB+1}, 61440, v{RSB}")
    e("v_lshrrev_b32 v34, 2, v1"); e("v_bfe_u32 v35, v34, 1, 2"); e(f"s_lshl_b32 s4, s{S_KP}, 1"); e("v_xor_b32 v35, s4, v35")
    e("v_lshlrev_b32 v35, 5, v35"); e("v_lshl_add_u32 v35, v34, 7, v35"); e("v_and_b32 v36, 3, v1"); e("v_lshl_add_u32 v35, v36, 3, v35")
    e(f"v_add_u32 v35, s{sM0P}, v35")
    for sb in range(4): e(f"v_xor_b32 v{RP+sb}, {32*sb}, v35")
    k.srd(SWO, P_WO, 0, SIZE['wo']); k.srd(SO_, P_WS, WS_O, O_BYTES)
    e(f"s_lshl_b32 s5, s{S_Q}, 5"); e(f"s_add_u32 s5, s5, s{S_KP}")
    e(f"s_mul_i32 s{sOWO}, s5, {32*1152}"); e(f"s_mul_i32 s4, s{S_RH}, {16*1152}"); e(f"s_add_u32 s{sOWO}, s{sOWO}, s4")
    e(f"s_mul_i32 s4, s{S_DB}, 288"); e(f"s_add_u32 s{sOWO}, s{sOWO}, s4")
    for i in range(5):
        e(f"v_add_u32 v34, {64*i}, v1")
        e("v_mul_u32_u24 v35, 3641, v34"); e("v_lshrrev_b32 v35, 16, v35")
        e(f"v_mul_u32_u24 v35, {1152-288}, v35"); e(f"v_lshl_add_u32 v{vWO+i}, v{1 if i < 4 else 34}, 4, v35")
    e(f"v_mov_b32 v36, {OOB - (1<<24)}"); e("v_cmp_gt_u32 vcc, 32, v1"); e(f"v_cndmask_b32 v{vWO+4}, v36, v{vWO+4}, vcc")
    e(f"s_lshl_b32 s4, s5, 7"); e(f"s_lshl_b32 s3, s{S_SB}, 3"); e("s_add_u32 s4, s4, s3")
    e(f"s_lshl_b32 s3, s{S_RH}, 2"); e("s_add_u32 s4, s4, s3"); e(f"s_lshl_b32 s{sOO}, s4, 10")
    e(f"s_lshl_b32 s4, s{S_KP}, 11"); e(f"v_add_u32 v{vO}, s4, v{vL}"); e(f"v_xor_b32 v{vO+1}, 2048, v{vO}")
    e("v_lshrrev_b32 v34, 2, v1"); e("v_mul_u32_u24 v34, 288, v34"); e("v_and_b32 v35, 3, v1"); e("v_lshl_add_u32 v34, v35, 3, v34")
    e(f"s_mul_i32 s4, s{S_KP}, 10240"); e(f"s_add_u32 s4, s4, {ABASE}"); e(f"v_add_u32 v{RSA}, s4, v34"); e(f"v_add_u32 v{RSA+1}, 61440, v{RSA}")
    e(f"s_lshl_b32 s3, s{S_SB}, 7"); e(f"s_lshl_b32 s4, s{S_RH}, 6"); e("s_add_u32 s3, s3, s4")
    e("v_bfe_u32 v34, v1, 2, 1"); e("v_mul_u32_u24 v34, 63, v34"); e("v_add_u32 v34, s3, v34")
    e("v_mul_u32_u24 v34, 1366, v34"); e("v_lshrrev_b32 v34, 18, v34")
    e("v_and_b32 v35, 1, v1"); e("v_mad_u32_u24 v34, v35, 11, v34")
    e("v_bfe_u32 v35, v1, 1, 1"); e("v_lshl_add_u32 v34, v34, 3, v35")
    e(f"s_lshl_b32 s3, s{S_Q}, 1"); e("v_add_u32 v34, s3, v34")
    e(f"v_lshlrev_b32 v{vPA}, 7, v34"); e(f"v_add_u32 v{vPA}, {WS_F1}, v{vPA}")
    e(f"s_lshl_b32 s{S_TILE}, s{S_SB}, 2"); e(f"s_add_u32 s{S_TILE}, s{S_TILE}, s{S_DB}")
    e(f"s_lshl_b32 s3, s{S_RH}, 1"); e(f"s_add_u32 s3, s3, s{S_KP}")
    e(f"s_cmp_eq_u32 s3, s{S_Q}"); e(f"s_cselect_b32 s{sOWN}, 1, 0")
    e(f"s_lshl_b32 s5, s{S_TILE}, 2"); e("s_add_u32 s3, s3, s5")
    e("s_lshl_b32 s4, s3, 7"); e(f"s_lshl_b32 s6, s{S_Q}, 2"); e(f"s_add_u32 s{sFST}, s4, s6"); e(f"s_add_u32 s{sFST}, s{sFST}, {WS_F}")
    e("s_lshl_b32 s3, s3, 2"); e(f"s_add_u32 s3, s3, s{S_Q}"); e(f"s_mul_i32 s{sPST}, s3, 9216")
    e(f"s_add_u32 s5, s5, s{S_Q}"); e("s_lshl_b32 s4, s5, 7"); e(f"s_add_u32 s4, s4, {WS_F}"); e(f"s_mul_i32 s5, s5, {4*9216}")
    e("v_and_b32 v34, 3, v1"); e(f"v_cmp_ne_u32 s[92:93], s{S_Q}, v34"); e("v_lshlrev_b32 v34, 2, v34"); e(f"v_add_u32 v{vF2}, s4, v34")
    e(f"s_lshl_b32 s3, s{S_WAVE}, 10"); e(f"s_add_u32 s{sPLD}, s5, s3")
    e(f"s_lshl_b32 s3, s{S_SB}, 2"); e(f"s_add_u32 s3, s3, s{S_Q}"); e(f"s_mul_i32 s3, s3, {32*1152}")
    e(f"s_mul_i32 s4, s{S_DB}, 288"); e("s_add_u32 s3, s3, s4"); e(f"s_lshl_b32 s4, s{S_WAVE}, 5"); e(f"s_add_u32 s{sXO}, s3, s4")
    e("v_and_b32 v34, 15, v1"); e("v_mul_u32_u24 v34, 1152, v34"); e("v_lshrrev_b32 v35, 4, v1")
    e(f"v_lshl_add_u32 v{XA}, v35, 3, v34"); e(f"v_add_u32 v{XA+1}, {16*1152}, v{XA}")
    e(f"s_mul_i32 s3, s{S_WAVE}, 18432"); e(f"v_add_u32 v{vXW}, s3, v{vL}")
    e(f"s_xor_b32 s4, s{S_WAVE}, 2"); e(f"s_mul_i32 s3, s4, 18432"); e(f"v_add_u32 v{vXR}, s3, v{vL}")
    e(f"s_lshr_b32 s3, s{S_Q}, 1"); e(f"s_and_b32 s4, s{S_Q}, 1"); e("s_xor_b32 s4, s4, 1"); e("s_lshl_b32 s4, s4, 1"); e("s_add_u32 s3, s3, s4")
    e("s_mul_i32 s3, s3, 18432"); e(f"s_lshl_b32 s4, s{S_WAVE}, 10"); e("s_add_u32 s3, s3, s4"); e(f"v_add_u32 v{vOWN}, s3, v{vL}")
    e(f"v_add_u32 v32, 4096, v{vL}"); e(f"s_cmp_eq_u32 s{S_WAVE}, 0"); e(f"s_cselect_b32 s3, 0, {OOB - (1<<26)}"); e("s_add_u32 s3, s3, 8192"); e(f"v_add_u32 v33, s3, v{vL}")
    k.wait(vm=["own"])
    publish(k, "z")
    st(k, 0)
    e(f"s_waitcnt vmcnt({9 if CT else 8})")
    chk(k, "zc1", vPB, 1)
    st(k, 1)
    k.vm = [("W", 0)]*4 + ["b2"]*4
    run_now(k, uu(0)); run_now(k, w2(1)); run_now(k, uu(1))
    k.wait(vm=["b2"])
    for sb in range(4): e(f"v_lshlrev_b32 v{40+2*sb}, 16, v{40+2*sb}")
    for db in range(9):
        for sb in range(4):
            for r in range(0, 4, 2): e(f"v_pk_mov_b32 {vr(acc(db,sb)+r,2)}, {vr(40+2*sb,2)}, {vr(40+2*sb,2)}")
    k.srd(SP, P_WS, WS_P, P_BYTES)
    def FA(buf, db): return buf*36 + 4*db
    def readsB(n, TA, TB, order):
        sl = n % 4
        r = RSB + (1 if sl == 3 else 0); off = 0 if sl == 3 else sl*20480
        L = []
        def fb(sb):
            for h in range(2): L.append((f"ds_read_b64_tr_b16 {ar(TB+4*sb+2*h,2)}, v{RP+sb} offset:{sl*16384 + h*2048}", ("t", n, 0 if sb >= 2 else 9)))
        for sb in order[0]: fb(sb)
        for db in range(9): L.append((f"ds_read_b128 {ar(TA+4*db,4)}, v{r} offset:{off + db*1024}", ("t", n, db)))
        for sb in order[1]: fb(sb)
        return L
    def readsA(n, TA):
        sl = n % 4
        r = RSA + (1 if sl == 3 else 0); off = 0 if sl == 3 else sl*20480
        return [(f"ds_read_b64_tr_b16 {ar(TA+4*db+2*h,2)}, v{r} offset:{off + db*32 + h*5120}", ("t", n, db)) for db in range(9) for h in range(2)]
    NORM = ((0, 1, 2, 3), ()); TAIL = ((2, 3), (0, 1))
    k.wait(vm=[("U", 0)]); e("s_barrier")
    for t, _ in readsB(0, 0, 72, NORM): e(t)
    run_now(k, w2(2)); run_now(k, uu(2)); run_now(k, w2(3)); run_now(k, uu(3))
    k.wait(vm=[("U", 1)]); e("s_waitcnt lgkmcnt(0)"); e("s_barrier")
    st(k, 2)
    def step(mf, L, rd, need, extra_pre=None, extra_post=None):
        g = Gaps(k)
        for u, m in enumerate(mf): g.mfma(u, m)
        dg = [2 + 4*i for i in range(9)]
        place(g, L, dg)
        rg = [x for x in range(36) if x not in dg]
        for i, (t, _) in enumerate(rd): g.body(rg[i], t)
        if extra_pre: g.head(35, extra_pre)
        def w():
            k.wait(vm=need); e("s_waitcnt lgkmcnt(0)")
        g.head(35, w)
        if extra_post: g.head(35, extra_post)
        g.head(35, "s_barrier")
        g.emit(0, 36)
    def flagload(v):
        return lambda: k.vmem(f"buffer_load_dword v{vPT}, v{v}, s[{SF}:{SF+3}], 0 offen sc1", "fl")
    def flagchk(name, v, level, mask=None):
        def f():
            k.wait(vm=["fl"]); chk(k, name, v, level, mask)
        return f
    for n in range(14):
        mf = [f"{MF} {vr(acc(db,sb),4)}, {ar(FA(n&1,db),4)}, {ar(72+16*(n&1)+4*sb,4)}, {vr(acc(db,sb),4)}" for db in range(9) for sb in range(4)]
        pre = {0: flagload(vPB), 6: flagload(vPB), 11: flagload(vPA)}.get(n)
        if CT and n == 9: pre = lambda: k.vmem("buffer_load_dword v37, v38, s[40:43], 0 offen", "ct")
        post = {1: flagchk("zc2", vPB, 2), 7: flagchk("zc3", vPB, 3), 13: flagchk("zc4", vPA, 3)}.get(n)
        step(mf, w2(n + 4) + uu(n + 4), readsB(n + 1, FA((n+1) & 1, 0), 72 + 16*((n+1) & 1), NORM), [("U", n + 2)], pre, post)
    def tail(n0, TA, TB, rd, vis, first_loads, late_loads, late_pos, lock, hp0=63):
        g = Gaps(k); u = 0
        for m in range(4):
            for db in range(9):
                if m: g.head(u - 1, (lambda m=m, db=db: k.wait(lg=[("t", n0 + m, db)], vm=[("O", n0 + m)] if db == 0 else ())))
                for sb in (2, 3):
                    c = vr(acc(db, sb), 4); g.mfma(u, f"{MF} {c}, {ar(TA[m]+4*db,4)}, {ar(TB(m,sb),4)}, {c}"); u += 1
            if m < 3:
                for i, (t, tag) in enumerate(rd(m + 1)): g.body(18*m + i, (lambda t=t, tag=tag: k.dsop(t, tag)))
            if m < 2:
                g.head(18*m + 16, (lambda m=m: k.wait(vm=[(vis, n0 + m + 2)]))); g.head(18*m + 16, "s_barrier")
        for i, (hs, b) in enumerate(first_loads): g.body(1 + 4*i, b)
        for db in range(9):
            for m in range(4):
                for sb in (0, 1):
                    c = vr(acc(db, sb), 4); g.mfma(u, f"{MF} {c}, {ar(TA[m]+4*db,4)}, {ar(TB(m,sb),4)}, {c}"); u += 1
        W0 = 62
        def drain():
            e("s_waitcnt lgkmcnt(0)"); k.lg = []
        g.head(W0, drain)
        if lock: g.head(W0, "s_barrier")
        wp = [W0 + 1 + (i*10)//3 for i in range(18)]
        for i in range(18): g.body(wp[i], f"ds_write_b128 v{vXW}, {vr(ACC+72+4*i,4)} offset:{1024*i}")
        R0 = wp[-1] + 4
        g.head(R0, "s_waitcnt lgkmcnt(0)"); g.head(R0, "s_barrier")
        for i in range(18): g.body(min(R0 + 1 + i, 143), f"ds_read_b128 {vr(40+4*i,4)}, v{vXR} offset:{1024*i}")
        place(g, late_loads, late_pos(wp, R0), hp0)
        g.emit(0, 144)
    def reduce(nm, poff, between):
        def body(own):
            k.lg = [("r", i) for i in range(18)]
            for db in range(9):
                k.wait(lg=[("r", 2*db + 1)])
                a = ACC + 8*db; t = 40 + 8*db
                for r in range(0, 8, 2): e(f"v_pk_add_f32 {vr(a+r,2)}, {vr(a+r,2)}, {vr(t+r,2)}")
                d = 40 + 4*db
                for p in range(4): e(f"v_cvt_pk_bf16_f32 v{d+p}, v{a+2*p}, v{a+2*p+1}")
                if own: k.dsop(f"ds_write_b128 v{vXR}, {vr(d,4)} offset:{1024*db}", "w")
                if db % 4 == 0: e(f"s_add_u32 s3, s{sPST}, {poff + (db//4)*4096}")
                e(f"buffer_store_dwordx4 {vr(d,4)}, v{vL}, s[{SP}:{SP+3}], s3 offen offset:{1024*(db&3)} sc1")
        e(f"s_cmp_eq_u32 s{sOWN}, 1"); e(f"s_cselect_b32 s{SP+2}, 0, {P_BYTES}"); e(f"s_cbranch_scc1 {k.L(nm+'_own')}")
        body(False)
        e(f"s_branch {k.L(nm+'_j')}")
        k.label(nm + "_own")
        body(True)
        k.label(nm + "_j")
        e(f"s_mov_b32 s{SP+2}, {P_BYTES}")
        k.vm += [nm]*9
        k.lg = []
    LA = wo(0) + oo(0) + wo(1) + oo(1) + wo(2) + oo(2)
    def posB(wp, R0):
        c = [x for x in range(65, 142) if x not in wp and x != R0]
        n = sum(1 for hs, b in LA if b)
        return [c[(i*(len(c) - 1))//(n - 1)] for i in range(n)]
    tail(14, [0, 36, 136, 172], lambda m, sb: 72 + 16*m + 4*sb,
         lambda m: readsB(14 + m, [0, 36, 136, 172][m], 72 + 16*m, TAIL), "U", [], LA, posB, True)
    st(k, 3)
    reduce("rb", 0, None)
    k.wait(vm=[("WO", 1)]); e("s_waitcnt lgkmcnt(0)"); e("s_barrier")
    for t, _ in readsA(0, 0): e(t)
    for j in range(3): e(f"ds_read_b128 {ar(144+4*j,4)}, v{vOWN} offset:{4096*j}")
    run_now(k, wo(3))
    e(f"v_mov_b32 v34, s{S_TAG}"); e("v_add_u32 v34, 3, v34")
    e(f"s_cmp_eq_u32 s{sOWN}, 1"); e(f"s_cselect_b32 s3, {OOB - (1<<24)}, 0"); e("v_cmp_eq_u32 vcc, 0, v1"); e(f"v_mov_b32 v35, {OOB - (1<<24)}"); e("v_mov_b32 v36, s3")
    e("v_cndmask_b32 v35, v35, v36, vcc")
    e("s_waitcnt lgkmcnt(0)"); e("s_barrier")
    if OPT("fine", 0): st(k, 0)
    for n in range(12):
        mf = [f"{MF} {vr(acc(db,sb),4)}, {ar(FA(n&1,db),4)}, {ar(OF(n,sb),4)}, {vr(acc(db,sb),4) if n else 0}" for db in range(9) for sb in range(4)]
        pre = None; post = None
        if n == 2:
            def post():
                k.wait(vm=["rb"]); k.vmem(f"buffer_store_dword v34, v35, s[{SF}:{SF+3}], s{sFST} offen sc1", "f")
        if n == 9: pre = flagload(vF2)
        if n == 11: post = flagchk("zc5", vF2, 3, "s[92:93]")
        step(mf, oo(n + 3) + wo(n + 4), readsA(n + 1, FA((n+1) & 1, 0)), [("WO", n + 2), ("O", n + 1)], pre, post)
    if OPT("fine", 0): st(k, 1)
    YP, X = 184, 220
    LY = []
    for i, x_ in enumerate((1, 2, 3)):
        hs = [f"s_xor_b32 s3, s{S_Q}, {x_}", "s_mul_i32 s3, s3, 9216", f"s_add_u32 s{68+i}, s3, s{sPLD}"]
        LY.append((hs, None))
    LY.append(([f"s_mov_b32 s{SU}, s{P_X}", f"s_mov_b32 s{SU+1}, s{P_X+1}", f"s_mov_b32 s{SU+2}, {SIZE['x']}",
                f"s_mov_b32 s{SW2}, s{P_OUT}", f"s_mov_b32 s{SW2+1}, s{P_OUT+1}", f"s_mov_b32 s{SW2+2}, {SIZE['out']}"], None))
    for j in range(3):
        for i in range(3):
            LY.append(([], (lambda i=i, j=j: k.vmem(f"buffer_load_dwordx4 {vr(YP+12*j+4*i,4)}, v{[vL,32,33][j]}, s[{SP}:{SP+3}], s{68+i} offen sc1", "y"))))
    for j in range(3):
        for sb in range(2):
            LY.append(([], (lambda j=j, sb=sb: k.vmem(f"buffer_load_dwordx2 {vr(X+4*j+2*sb,2)}, v{XA+sb}, s[{SU}:{SU+3}], s{sXO} offen offset:{128*j}", "y"))))
    tail(12, [0, 36, 72, 108], lambda m, sb: OF(12 + m, sb), lambda m: readsA(12 + m, [0, 36, 72, 108][m]), "WO",
         oo(15)[:4], LY, (lambda wp, R0: [wp[i + 3] + 1 for i in range(15)]), False, hp0=54)
    reduce("ra", PA_OFF, None)
    e("s_waitcnt lgkmcnt(0)"); e("s_barrier")
    OW = 232
    for j in range(3): e(f"ds_read_b128 {vr(OW+4*j,4)}, v{vOWN} offset:{4096*j}")
    e("s_mov_b32 s4, 0xffff0000")
    e(f"v_mov_b32 v12, {fhex(-LOG2E)}"); e("v_mov_b32 v14, 1.0")
    def unpack(dst, src):
        for p in range(4):
            e(f"v_lshlrev_b32 v{dst+2*p}, 16, v{src+p}"); e(f"v_and_b32 v{dst+2*p+1}, s4, v{src+p}")
    def padd(d, a, b):
        for r in range(0, 8, 2): e(f"v_pk_add_f32 {vr(d+r,2)}, {vr(a+r,2)}, {vr(b+r,2)}")
    G, XF, U1, U2 = 112, 136, 160, 168
    k.wait(vm=["y"])
    def gate(j):
        Y = G + 8*j
        for p in range(4): e(f"v_accvgpr_read_b32 v{U2+p}, a{144+4*j+p}")
        unpack(Y, U2)
        for i in range(3):
            unpack(U1, YP + 12*j + 4*i); padd(Y, Y, U1)
        for r in range(0, 8, 2): e(f"v_pk_mul_f32 {vr(U1+r,2)}, {vr(Y+r,2)}, v[12:13] op_sel_hi:[1,0]")
        for r in range(8): e(f"v_exp_f32 v{U1+r}, v{U1+r}")
        unpack(XF + 8*j, X + 4*j)
        for r in range(0, 8, 2): e(f"v_pk_add_f32 {vr(U1+r,2)}, {vr(U1+r,2)}, v[14:15] op_sel_hi:[1,0]")
        for r in range(8): e(f"v_rcp_f32 v{U1+r}, v{U1+r}")
        for r in range(0, 8, 2): e(f"v_pk_mul_f32 {vr(Y+r,2)}, {vr(Y+r,2)}, {vr(U1+r,2)}")
    gate(0); gate(1)
    e("s_waitcnt vmcnt(0)")
    e(f"buffer_store_dword v34, v35, s[{SF}:{SF+3}], s{sFST} offen offset:16 sc1")
    st(k, 4)
    e(f"s_cmp_lg_u32 s{S_WAVE}, 0"); e(f"s_cbranch_scc1 {k.L('zg2')}")
    gate(2)
    k.label("zg2")
    e("s_waitcnt lgkmcnt(0)")
    SS_ = 64
    for j in range(3): unpack(SS_ + 8*j, OW + 4*j)
    for i in range(3): e(f"s_add_u32 s{68+i}, s{68+i}, {PA_OFF}")
    def PR(j, i): return YP + 12*j + 4*i
    e(f"s_lshl_b32 s6, 1, s{S_Q}"); e("s_xor_b32 s6, s6, 15"); e("s_mov_b32 s7, 0x80000"); e(f"s_add_u32 s74, s{S_TAG}, 3")
    k.label("p2")
    e(f"buffer_load_dword v{vPT}, v{vF2}, s[{SF}:{SF+3}], 0 offen offset:16 sc1")
    e("s_waitcnt vmcnt(0)")
    e(f"v_cmp_eq_u32 vcc, s74, v{vPT}")
    e("s_and_b32 s5, vcc_lo, s6")
    e(f"s_cbranch_scc0 {k.L('p2_none')}")
    e("s_xor_b32 s6, s6, s5")
    for i, x_ in enumerate((1, 2, 3)):
        e(f"s_xor_b32 s3, s{S_Q}, {x_}"); e("s_bitcmp1_b32 s5, s3"); e(f"s_cbranch_scc0 {k.L('p2_s'+str(i))}")
        for j in range(3):
            e(f"buffer_load_dwordx4 {vr(PR(j,i),4)}, v{[vL,32,33][j]}, s[{SP}:{SP+3}], s{68+i} offen sc1")
        k.label("p2_s" + str(i))
    e("s_cmp_eq_u32 s6, 0"); e(f"s_cbranch_scc1 {k.L('p2_ok')}")
    k.label("p2_none")
    e("s_sub_u32 s7, s7, 1"); e("s_cmp_lg_u32 s7, 0"); e(f"s_cbranch_scc1 {k.L('p2')}")
    k.label("p2_ok")
    st(k, 5)
    k.vm = [("p", 0), ("p", 1), ("p", 2)]
    for j in range(3):
        if j == 2:
            e(f"s_cmp_lg_u32 s{S_WAVE}, 0"); e(f"s_cbranch_scc1 {k.L('fin')}")
        k.wait(vm=[("p", j)])
        S_ = SS_ + 8*j
        for i in range(3):
            unpack(U1, PR(j, i)); padd(S_, S_, U1)
        for r in range(0, 8, 2): e(f"v_pk_fma_f32 {vr(S_+r,2)}, {vr(S_+r,2)}, {vr(G+8*j+r,2)}, {vr(XF+8*j+r,2)}")
        for p in range(4): e(f"v_cvt_pk_bf16_f32 v{S_+p}, v{S_+2*p}, v{S_+2*p+1}")
        for sb in range(2):
            k.vmem(f"buffer_store_dwordx2 {vr(S_+2*sb,2)}, v{XA+sb}, s[{SW2}:{SW2+3}], s{sXO} offen offset:{128*j}", "st")
    k.label("fin")
    if STAMPS:
        e("s_waitcnt vmcnt(0)"); st(k, 6); st_save(k, 7, 9); st_flush(k)
    e("s_endpgm")
```
